```python
import torch

def _softmax(x, axis=-1):
    return torch.softmax(x, dim=axis)
def _gelu(x):
    return torch.nn.functional.gelu(x, approximate="tanh")
def _silu(x):
    return torch.nn.functional.silu(x)
def _sigmoid(x):
    return torch.sigmoid(x)
def _layernorm(x, axis=-1, eps=1e-5):
    m = x.mean(dim=axis, keepdim=True)
    v = x.var(dim=axis, keepdim=True, unbiased=False)
    return (x - m) / torch.sqrt(v + eps)
def _scatter_add(tgt, idx, src, axis=0):
    return tgt.clone().index_add_(axis, idx, src)
def _segment_sum(src, seg, n):
    out = torch.zeros((n,) + src.shape[1:], dtype=src.dtype)
    return out.index_add_(0, seg, src)
def _pad(x, pw):
    flat = tuple(v for pair in reversed(pw) for v in pair)
    return torch.nn.functional.pad(x, flat)

kernel_name = 'concat_heads__linear_attn_block__grouped_kv_mqa__prompt'

def setup_inputs():

    _w = (lambda a: (lambda t: t.to(torch.bfloat16) if t.is_floating_point() else t)(torch.as_tensor(a)))
    def _A_setup():
        B, S, D = 1, 2048, 1024
        return {
            "x": _w((lambda *s: torch.randn(*s, dtype=torch.bfloat16) * 0.05)(B, S, D)),
            "wqkv": _w((lambda *s: torch.randn(*s, dtype=torch.bfloat16) * 0.8)(D, 3 * D)),
            "wo": _w((lambda *s: torch.randn(*s, dtype=torch.bfloat16) * 0.05)(D, D)),
        }
    _A_in = _A_setup()

    def _B_setup():
        B, S, D, H = 1, 2048, 1024, 32
        Dh = D // H
        return {
            "x": _w((lambda *s: torch.randn(*s, dtype=torch.bfloat16) * 0.05)(B, S, D)),
            "wq": _w((lambda *s: torch.randn(*s, dtype=torch.bfloat16) * 0.8)(D, H * Dh)),
            "wk": _w((lambda *s: torch.randn(*s, dtype=torch.bfloat16) * 0.8)(D, Dh)),
            "wv": _w((lambda *s: torch.randn(*s, dtype=torch.bfloat16) * 0.05)(D, Dh)),
            "wo": _w((lambda *s: torch.randn(*s, dtype=torch.bfloat16) * 0.05)(H * Dh, D)),
        }
    _B_in = _B_setup()

    return {
        "A_x": _A_in["x"],
        "A_wqkv": _A_in["wqkv"],
        "A_wo": _A_in["wo"],
        "B_x": _B_in["x"],
        "B_wq": _B_in["wq"],
        "B_wk": _B_in["wk"],
        "B_wv": _B_in["wv"],
        "B_wo": _B_in["wo"],
    }

def reference(A_x, A_wqkv, A_wo, B_x, B_wq, B_wk, B_wv, B_wo):
    def _A_ref(x, wqkv, wo):
        B, S, D = x.shape
        H = 32; Dh = D // H
        qkv = (lambda x, *d: x.permute(*d))((x @ wqkv).reshape(B, S, 3, H, Dh), 2, 0, 3, 1, 4)
        q, k, v = qkv[0], qkv[1], qkv[2]
        phi = lambda t: torch.where(t > 0, t + 1, torch.exp(t)) + 1e-6
        pq, pk = phi(q), phi(k)
        kv = torch.einsum("bhsd,bhse->bhde", pk, v)
        z = torch.einsum("bhsd->bhd", pk)
        num = torch.einsum("bhqd,bhde->bhqe", pq, kv)
        den = torch.einsum("bhqd,bhd->bhq", pq, z)[..., None] + 1e-6
        o = num / den
        return (lambda x, *d: x.permute(*d))(o, 0, 2, 1, 3).reshape(B, S, D) @ wo

    def _B_ref(x, wq, wk, wv, wo):
        B, S, D = x.shape
        H = 32
        Dh = D // H
        q = (lambda x, *d: x.permute(*d))((x @ wq).reshape(B, S, H, Dh), 0, 2, 1, 3)
        k = x @ wk
        v = x @ wv
        scores = torch.einsum("bhqd,bkd->bhqk", q, k) * (Dh ** -0.5)
        p = _softmax(scores, axis=-1)
        o = torch.einsum("bhqk,bkd->bhqd", p, v)
        return (lambda x, *d: x.permute(*d))(o, 0, 2, 1, 3).reshape(B, S, H * Dh) @ wo

    a = _A_ref(A_x, A_wqkv, A_wo)
    b = _B_ref(B_x, B_wq, B_wk, B_wv, B_wo)
    return torch.concatenate([a, b], axis=-1)
```

```python
import re, struct

def f2u(x):
    return struct.unpack("<I", struct.pack("<f", x))[0]
def hexf(x):
    return "0x%08x" % f2u(x)

def vr(a, n=1):
    return f"v{a}" if n == 1 else f"v[{a}:{a+n-1}]"
def sr(a, n=1):
    return f"s{a}" if n == 1 else f"s[{a}:{a+n-1}]"

class Asm:
    def __init__(self):
        self.lines = []
    def __call__(self, s):
        for l in s.split("\n"):
            l = l.strip()
            if l:
                self.lines.append(l)
    def label(self, name):
        self.lines.append(name + ":")
    def comment(self, s):
        self.lines.append("; " + s)
    def text(self):
        out = []
        for l in self.lines:
            if l.endswith(":") or l.startswith("."):
                out.append(l)
            else:
                out.append("    " + l)
        return "\n".join(out) + "\n"

_reg = re.compile(r"^(-|\|)?(abs\()?([vsa])(?:(\d+)|\[(\d+):(\d+)\])\)?\|?$")
def regs_of(tok):
    tok = tok.strip()
    m = _reg.match(tok)
    if not m:
        if tok == "vcc": return {("s", 106), ("s", 107)}
        if tok == "m0": return {("m0", 0)}
        if tok == "exec": return {("exec", 0)}
        return set()
    k = m.group(3)
    if m.group(4) is not None:
        return {(k, int(m.group(4)))}
    return {(k, i) for i in range(int(m.group(5)), int(m.group(6)) + 1)}

TRANS = ("v_exp_f32", "v_log_f32", "v_rcp_f32", "v_rsq_f32", "v_sqrt_f32", "v_sin_f32", "v_cos_f32")

def parse(line):
    line = line.split(";")[0].strip()
    if not line or line.endswith(":") or line.startswith("."):
        return None
    parts = line.split(None, 1)
    op = parts[0]
    ops = []
    if len(parts) > 1:
        rest = parts[1]
        depth = 0; cur = ""
        for ch in rest:
            if ch in "[(": depth += 1
            if ch in "])": depth -= 1
            if ch == "," and depth == 0:
                ops.append(cur.strip()); cur = ""
            else:
                cur += ch
        ops.append(cur.strip())
        last = ops[-1].split()
        ops[-1] = last[0] if last else ""
        mods = last[1:]
    else:
        mods = []
    d = dict(op=op, ops=ops, mods=mods, line=line)
    R = [regs_of(o) for o in ops]
    wr, rd = set(), set()
    kind = "other"
    if op.startswith("v_mfma"):
        kind = "mfma"; wr = R[0]; d["A"] = R[1]; d["B"] = R[2]; d["C"] = R[3]; rd = R[1] | R[2] | R[3]
        d["passes"] = 8 if "32x32x16" in op else 4
        d["p2"] = "4x4x4" in op
    elif op.startswith("v_cmp"):
        kind = "valu"; wr = R[0]; rd = set().union(*R[1:])
    elif op.startswith("v_permlane32_swap") or op.startswith("v_permlane16_swap"):
        kind = "valu"; wr = R[0] | R[1]; rd = R[0] | R[1]; d["permlane"] = True
    elif op.startswith("v_readfirstlane") or op.startswith("v_readlane"):
        kind = "valu"; wr = R[0]; rd = set().union(*R[1:]); d["readlane"] = True
    elif op.startswith("v_"):
        kind = "valu"; wr = R[0]; rd = set().union(*R[1:]) if len(R) > 1 else set()
        if op.startswith(("v_fmac", "v_pk_fmac")) or "sdwa" in op: rd |= R[0]
        if op.startswith(("v_add_co", "v_sub_co", "v_addc_co")): wr = R[0] | R[1]; rd = set().union(*R[2:])
        if op.startswith("v_cndmask") and len(ops) == 3: rd |= regs_of("vcc")
        d["trans"] = op.replace("_e32", "").replace("_e64", "") in TRANS
    elif op.startswith(("buffer_load", "global_load")):
        kind = "vmem"
        if "lds" in mods or "lds" in op:
            rd = set().union(*R) | {("m0", 0)}; d["ldsdma"] = True
        else:
            wr = R[0]; rd = set().union(*R[1:])
    elif op.startswith(("buffer_store", "global_store", "buffer_atomic", "global_atomic")):
        kind = "vmem"; rd = set().union(*R)
        if op.startswith("buffer_store"): d["sdata"] = R[0]
        elif op.startswith("global_store"): d["sdata"] = R[1]
        d["wide"] = "x4" in op or "x3" in op
    elif op.startswith("ds_read") or op.startswith("ds_bpermute") or op.startswith("ds_swizzle"):
        kind = "ds"; wr = R[0]; rd = set().union(*R[1:])
    elif op.startswith("ds_write"):
        kind = "ds"; rd = set().union(*R)
    elif op.startswith("s_"):
        kind = "salu"
        if op.startswith(("s_cmp", "s_waitcnt", "s_nop", "s_barrier", "s_branch", "s_cbranch", "s_endpgm", "s_setprio", "s_sleep", "s_bitcmp")):
            rd = set().union(*R) if R else set()
        else:
            wr = R[0] if R else set(); rd = set().union(*R[1:]) if len(R) > 1 else set()
            if "saveexec" in op: wr |= {("exec", 0)}
    d.update(kind=kind, wr=wr, rd=rd)
    d["ws"] = (int(ops[0], 0) + 1) if op == "s_nop" else 1
    return d

def check_hazards(lines, name=""):
    ins = [p for p in (parse(l) for l in lines) if p]
    probs = []
    n = len(ins)
    for i, a in enumerate(ins):
        dist = 0
        for j in range(i + 1, min(n, i + 40)):
            b = ins[j]
            need = 0
            if a["kind"] == "mfma":
                P = a["passes"]
                D = a["wr"]
                if b["kind"] == "mfma":
                    if b["C"] & D and not (b["C"] == D and b["passes"] == P): need = max(need, {4: 6, 8: 10}[P])
                    if a.get("p2") and b["C"] == D: need = max(need, 2)
                    if (b["A"] | b["B"]) & D: need = max(need, {4: 8, 8: 12}[P])
                    if b["wr"] & D and not (b["C"] == D): need = max(need, {4: 6, 8: 10}[P])
                elif b["kind"] in ("valu", "vmem", "ds"):
                    if (b["rd"] | b["wr"]) & D: need = max(need, {4: 8, 8: 12}[P])
                    if b["kind"] == "valu" and b["wr"] & a["C"]: need = max(need, {4: 3, 8: 7}[P])
            elif a["kind"] == "valu":
                W = a["wr"]
                vW = {r for r in W if r[0] in "va"}
                sW = {r for r in W if r[0] == "s"}
                if b["kind"] == "mfma" and b["rd"] & vW: need = max(need, 2)
                if a.get("trans") and b["kind"] in ("valu",) and not b.get("trans") and b["rd"] & vW: need = max(need, 1)
                if a.get("trans") and b["kind"] in ("vmem", "ds") and b["rd"] & vW: need = max(need, 1)
                if b.get("permlane") and b["rd"] & vW: need = max(need, 2)
                if b.get("readlane") and b["rd"] & vW: need = max(need, 1)
                if sW and b["kind"] == "vmem" and b["rd"] & sW: need = max(need, 5)
                if sW and b["kind"] == "valu" and b["rd"] & sW: need = max(need, 2)
                if sW and b.get("readlane") and b["rd"] & sW: need = max(need, 4)
                if "sdwa" in a["op"] and b["kind"] == "valu" and (b["rd"] | b["wr"]) & vW: need = max(need, 1)
            elif a["kind"] == "vmem" and a.get("wide"):
                if b["kind"] == "valu" and b["wr"] & a["sdata"]: need = max(need, 2)
                elif b["wr"] & a["sdata"]: need = max(need, 1)
            elif a["kind"] == "salu":
                if ("m0", 0) in a["wr"] and b.get("ldsdma"): need = max(need, 1)
            if need > dist:
                probs.append(f"{name}: '{a['line']}' -> '{b['line']}' needs {need} has {dist}")
            dist += b["ws"]
            if dist >= 20: break
    return probs
```

```python
import sys, math
from asmlib import *

KNAME = "concat_heads__linear_attn_block__grouped_kv_mqa__prompt"
WS_QA = 0
WS_QB = 4 << 20
WS_OA = 8 << 20
WS_OB = 12 << 20
WS_KV = 16 << 20
WS_KVP = WS_KV + (256 << 10)
WS_ZP = WS_KVP + (2 << 20)
WS_USED = WS_ZP + (64 << 10)

LOG2E = 1.4426950408889634
KSCALE = (32 ** -0.5) * LOG2E
EPS = 1e-6

PROBS = []
def chk(lines, name):
    PROBS.extend(check_hazards(lines, name))

def mfma32(d, a, b, c=None):
    cs = vr(d, 16) if c is None else (vr(c, 16) if isinstance(c, int) else c)
    return f"v_mfma_f32_32x32x16_bf16 {vr(d,16)}, {vr(a,4)}, {vr(b,4)}, {cs}"
def mfma16(d, a, b, c=None):
    cs = vr(d, 4) if c is None else (vr(c, 4) if isinstance(c, int) else c)
    return f"v_mfma_f32_16x16x32_bf16 {vr(d,4)}, {vr(a,4)}, {vr(b,4)}, {cs}"

def srd(A, dst, lo, nbytes):
    A(f"s_mov_b32 s{dst}, s{lo}")
    A(f"s_and_b32 s{dst+1}, s{lo+1}, 0xffff")
    A(f"s_mov_b32 s{dst+2}, {nbytes}")
    A(f"s_mov_b32 s{dst+3}, 0x20000")

def descriptor(name, nv, ns):
    return f"""
.section .rodata,"a"
.p2align 6
.amdhsa_kernel {name}
  .amdhsa_next_free_vgpr {nv}
  .amdhsa_next_free_sgpr {ns}
  .amdhsa_accum_offset {(nv+3)//4*4}
  .amdhsa_group_segment_fixed_size 0
  .amdhsa_kernarg_size 88
  .amdhsa_user_sgpr_count 2
  .amdhsa_user_sgpr_kernarg_segment_ptr 1
  .amdhsa_system_sgpr_workgroup_id_x 1
.end_amdhsa_kernel
"""

def header(name):
    return f""".text
.globl {name}
.p2align 8
.type {name},@function
{name}:
"""

K1_STAGE = 53248
K1_WOFF = 32768
K1_EOFF = 49152
K1_LDS = 3 * K1_STAGE

def gen_k1():
    A = Asm()
    SX, SW, SE, SWS = 4, 8, 12, 16
    sXCD, sIDX, sWAVE, sRB, sCBG, sT0, sW4, sT1 = 20, 21, 22, 23, 24, 25, 26, 27
    sTYPE, sCOL, sS1, sS2, sWSTR, sROT, sBASE, sCNT, sDELTA, sWADV = 28, 29, 30, 31, 32, 33, 34, 35, 36, 37
    sXO, sWO = 60, 68
    A("s_cmp_ge_u32 s2, 256")
    A("s_cbranch_scc1 K1_END")
    A("s_load_dwordx4 s[40:43], s[0:1], 0")
    A("s_load_dwordx4 s[44:47], s[0:1], 24")
    A("s_load_dwordx4 s[48:51], s[0:1], 40")
    A("s_load_dwordx2 s[52:53], s[0:1], 80")
    A("v_lshrrev_b32 v1, 6, v0")
    A("v_and_b32 v2, 63, v0")
    A(f"s_and_b32 s{sXCD}, s2, 7")
    A(f"s_lshr_b32 s{sIDX}, s2, 3")
    A(f"v_readfirstlane_b32 s{sWAVE}, v1")
    A(f"s_and_b32 s{sRB}, s{sXCD}, 1")
    A(f"s_lshl_b32 s{sRB}, s{sRB}, 2")
    A(f"s_and_b32 s{sT0}, s{sIDX}, 3")
    A(f"s_add_u32 s{sRB}, s{sRB}, s{sT0}")
    A(f"s_lshr_b32 s{sCBG}, s{sXCD}, 1")
    A(f"s_lshl_b32 s{sCBG}, s{sCBG}, 3")
    A(f"s_lshr_b32 s{sT0}, s{sIDX}, 2")
    A(f"s_add_u32 s{sCBG}, s{sCBG}, s{sT0}")
    A(f"s_mov_b32 s{sTYPE}, 0")
    A(f"s_lshl_b32 s{sCOL}, s{sCBG}, 7")
    A(f"s_mov_b32 s{sS1}, 32")
    A(f"s_mov_b32 s{sS2}, 64")
    A(f"s_mov_b32 s{sWSTR}, 6144")
    A(f"s_mov_b32 s{sROT}, 0")
    A(f"s_cmp_lt_u32 s{sCBG}, 8")
    A("s_cbranch_scc1 K1_TYPED")
    A(f"s_cmp_lt_u32 s{sCBG}, 24")
    A("s_cbranch_scc0 K1_TYPEB")
    A(f"s_mov_b32 s{sTYPE}, 1")
    A(f"s_lshl_b32 s{sCOL}, s{sCBG}, 6")
    A(f"s_add_u32 s{sCOL}, s{sCOL}, {1024 - 8*64}")
    A(f"s_mov_b32 s{sS1}, 1024")
    A(f"s_mov_b32 s{sS2}, 32")
    A("s_branch K1_TYPED")
    A.label("K1_TYPEB")
    A(f"s_mov_b32 s{sTYPE}, 2")
    A(f"s_sub_u32 s{sCOL}, s{sCOL}, {24*128}")
    A(f"s_mov_b32 s{sWSTR}, 2048")
    A(f"s_lshr_b32 s{sROT}, s{sCBG}, 1")
    A(f"s_and_b32 s{sROT}, s{sROT}, 3")
    A.label("K1_TYPED")
    A("s_waitcnt lgkmcnt(0)")
    A(f"s_cmp_eq_u32 s{sTYPE}, 2")
    A("s_cselect_b64 s[54:55], s[44:45], s[40:41]")
    A("s_cselect_b64 s[56:57], s[46:47], s[42:43]")
    A(f"s_bitcmp1_b32 s{sCBG}, 0")
    A("s_cselect_b64 s[58:59], s[50:51], s[48:49]")
    srd(A, SX, 54, 4 << 20)
    A(f"s_mov_b32 s{SW}, s56")
    A(f"s_and_b32 s{SW+1}, s57, 0xffff")
    A(f"s_lshl_b32 s{SW+2}, s{sWSTR}, 10")
    A(f"s_mov_b32 s{SW+3}, 0x20000")
    srd(A, SE, 58, 65536)
    srd(A, SWS, 52, WS_USED)
    A(f"s_cmp_lt_u32 s{sWAVE}, 4")
    A("s_cbranch_scc1 K1_COMPUTE")

    VX, VW, VE = 3, 6, 7
    A(f"s_sub_u32 s{sW4}, s{sWAVE}, 4")
    A("v_lshrrev_b32 v4, 4, v2")
    A(f"s_lshl_b32 s{sT0}, s{sW4}, 2")
    A(f"v_add_u32 v4, s{sT0}, v4")
    A("v_and_b32 v4, 7, v4")
    A("v_and_b32 v5, 7, v2")
    A("v_xor_b32 v4, v4, v5")
    A("v_lshlrev_b32 v4, 4, v4")
    A("v_lshrrev_b32 v5, 3, v2")
    A("v_lshlrev_b32 v5, 11, v5")
    A(f"v_add_u32 v{VX}, v4, v5")
    for n in range(8):
        A(f"s_add_u32 s{sT0}, s{sROT}, {n}")
        A(f"s_and_b32 s{sT0}, s{sT0}, 3")
        A(f"s_add_u32 s{sT0}, s{sT0}, {n & 4}")
        A(f"s_lshl_b32 s{sT1}, s{sRB}, 3")
        A(f"s_add_u32 s{sT0}, s{sT0}, s{sT1}")
        A(f"s_lshl_b32 s{sT0}, s{sT0}, 2")
        A(f"s_add_u32 s{sT0}, s{sT0}, s{sW4}")
        A(f"s_lshl_b32 s{sXO+n}, s{sT0}, 14")
    A("v_lshrrev_b32 v4, 4, v2")
    A("v_and_b32 v5, 15, v2")
    A("v_lshlrev_b32 v8, 2, v4")
    A("v_xor_b32 v5, v5, v8")
    A(f"v_mul_lo_u32 v{VW}, v4, s{sWSTR}")
    A("v_and_b32 v8, 3, v5")
    A("v_lshlrev_b32 v8, 4, v8")
    A(f"v_add_u32 v{VW}, v{VW}, v8")
    A("v_bfe_u32 v8, v5, 2, 1")
    A(f"v_mul_lo_u32 v8, v8, s{sS1}")
    A("v_bfe_u32 v9, v5, 3, 1")
    A(f"v_mul_lo_u32 v9, v9, s{sS2}")
    A(f"v_add3_u32 v8, v8, v9, s{sCOL}")
    A(f"v_lshl_add_u32 v{VW}, v8, 1, v{VW}")
    for n in range(4):
        A(f"s_lshl_b32 s{sT0}, s{sW4}, 2")
        A(f"s_add_u32 s{sT0}, s{sT0}, {16*n}")
        A(f"s_mul_i32 s{sWO+n}, s{sT0}, s{sWSTR}")
    A(f"s_lshl_b32 s{sWADV}, s{sWSTR}, 6")
    A(f"s_lshl_b32 s{sT0}, s{sW4}, 10")
    A(f"v_lshl_add_u32 v{VE}, v2, 4, s{sT0}")
    A(f"s_mov_b32 s{sBASE}, s{sT0}")
    A(f"s_add_u32 s{sT1}, s{sT0}, {3*K1_STAGE}")
    def issue(isB):
        seq = []
        for n in range(8):
            seq.append((n * 4096, f"buffer_load_dwordx4 v{VX}, s[{SX}:{SX+3}], s{sXO+n} offen lds"))
        for n in range(4):
            seq.append((K1_WOFF + n * 4096, f"buffer_load_dwordx4 v{VW}, s[{SW}:{SW+3}], s{sWO+n} offen lds"))
        order = [0, 8, 1, 2, 9, 3, 4, 10, 5, 6, 11, 7]
        seq = [seq[i] for i in order]
        if isB:
            seq.insert(2, (K1_EOFF, f"buffer_load_dwordx4 v{VE}, s[{SE}:{SE+3}], 0 offen lds"))
        for off, ins in seq:
            A(f"s_add_u32 m0, s{sBASE}, {off}")
            A("s_nop 0")
            A(ins)
        A(f"v_add_u32 v{VX}, 128, v{VX}")
        A(f"v_add_u32 v{VW}, s{sWADV}, v{VW}")
        if isB:
            A(f"v_add_u32 v{VE}, 4096, v{VE}")
        A(f"s_add_u32 s{sBASE}, s{sBASE}, {K1_STAGE}")
        A(f"s_cmp_ge_u32 s{sBASE}, s{sT1}")
        A(f"s_cselect_b32 s{sBASE}, s{sT0}, s{sBASE}")
    A(f"s_cmp_eq_u32 s{sTYPE}, 2")
    A("s_cbranch_scc1 K1_LOADB")
    for isB in (False, True):
        n = 13 if isB else 12
        tag = "B" if isB else "A"
        if isB: A.label("K1_LOADB")
        A(f"s_mov_b32 s{sCNT}, 3")
        A.label(f"K1_LPRE{tag}")
        issue(isB)
        A(f"s_sub_u32 s{sCNT}, s{sCNT}, 1")
        A(f"s_cmp_lg_u32 s{sCNT}, 0")
        A(f"s_cbranch_scc1 K1_LPRE{tag}")
        A(f"s_waitcnt vmcnt({2*n})")
        A("s_barrier")
        A(f"s_mov_b32 s{sCNT}, 13")
        A.label(f"K1_LLOOP{tag}")
        A(f"s_waitcnt vmcnt({n})")
        A("s_barrier")
        issue(isB)
        A(f"s_sub_u32 s{sCNT}, s{sCNT}, 1")
        A(f"s_cmp_lg_u32 s{sCNT}, 0")
        A(f"s_cbranch_scc1 K1_LLOOP{tag}")
        A(f"s_waitcnt vmcnt({n})")
        A("s_barrier")
        A("s_waitcnt vmcnt(0)")
        A("s_barrier")
        A("s_endpgm")

    A.label("K1_COMPUTE")
    XA, WA, EA = 16, 20, 22
    FB = [32, 60]
    FX = lambda b, t: FB[b] + 4 * t
    FW = lambda b, u: FB[b] + 16 + 4 * u
    FE = lambda b: FB[b] + 24
    XACC = 96
    ACC = lambda t, u: 112 + 16 * (2 * t + u)
    sWM, sWN = 38, 39
    A(f"s_lshr_b32 s{sWM}, s{sWAVE}, 1")
    A(f"s_and_b32 s{sWN}, s{sWAVE}, 1")
    A("v_and_b32 v3, 31, v2")
    A("v_lshrrev_b32 v4, 5, v2")
    A("v_bfe_u32 v5, v2, 1, 3")
    A(f"s_lshl_b32 s{sT0}, s{sWM}, 14")
    A(f"v_lshl_add_u32 v6, v3, 7, s{sT0}")
    for ks in range(4):
        A(f"v_add_u32 v7, {2*ks}, v4")
        A("v_xor_b32 v7, v7, v5")
        A(f"v_lshl_add_u32 v{XA+ks}, v7, 4, v6")
    A("v_bfe_u32 v5, v2, 2, 2")
    A("v_lshl_add_u32 v6, v4, 3, v5")
    A("v_bfe_u32 v7, v2, 4, 1")
    A("v_bfe_u32 v8, v2, 1, 1")
    A("v_lshl_add_u32 v7, v7, 1, v8")
    A("v_and_b32 v8, 1, v2")
    A("v_lshlrev_b32 v8, 3, v8")
    A("v_lshl_add_u32 v8, v6, 8, v8")
    for u in range(2):
        A(f"s_lshl_b32 s{sT0}, s{sWN}, 1")
        A(f"s_add_u32 s{sT0}, s{sT0}, {u}")
        A(f"v_xor_b32 v9, s{sT0}, v5")
        A("v_lshl_add_u32 v9, v9, 2, v7")
        A(f"v_lshl_add_u32 v{WA+u}, v9, 4, v8")
    A("v_bfe_u32 v7, v2, 4, 1")
    A("v_lshlrev_b32 v7, 5, v7")
    A("v_and_b32 v8, 3, v2")
    A("v_lshl_add_u32 v7, v8, 3, v7")
    A(f"v_lshl_add_u32 v{EA}, v6, 6, v7")
    A(f"s_cmp_eq_u32 s{sTYPE}, 2")
    A(f"s_cselect_b32 s{sT0}, 0, {hexf(EPS)}")
    A(f"s_cmp_eq_u32 s{sTYPE}, 0")
    A(f"s_cselect_b32 s{sT1}, {hexf(EPS)}, 0")
    for t in range(4):
        for r in range(16):
            A(f"v_mov_b32 v{ACC(t,0)+r}, s{sT0}")
            A(f"v_mov_b32 v{ACC(t,1)+r}, s{sT1}")
    for r in range(16):
        A(f"v_mov_b32 v{XACC+r}, 0")
    A(f"s_mov_b32 s72, {K1_STAGE}")
    A(f"s_mov_b32 s{sBASE}, 0")
    A(f"s_mov_b32 s{sCNT}, 16")

    def reads(b, ks, extra):
        R = []
        R.append(f"ds_read_b128 {vr(FX(b,0),4)}, v{XA+ks} offset:0")
        for u in range(2):
            R.append(f"ds_read_b64_tr_b16 {vr(FW(b,u),2)}, v{WA+u} offset:{K1_WOFF+ks*4096}")
            R.append(f"ds_read_b64_tr_b16 {vr(FW(b,u)+2,2)}, v{WA+u} offset:{K1_WOFF+ks*4096+1024}")
        for t in range(1, 4):
            R.append(f"ds_read_b128 {vr(FX(b,t),4)}, v{XA+ks} offset:{t*4096}")
        if extra:
            R.append(f"ds_read_b64_tr_b16 {vr(FE(b),2)}, v{EA} offset:{K1_EOFF+ks*1024}")
            R.append(f"ds_read_b64_tr_b16 {vr(FE(b)+2,2)}, v{EA} offset:{K1_EOFF+ks*1024+256}")
        return R

    def mainloop(tag, transposed, extra):
        A.label(f"K1_ML{tag}")
        A("s_barrier")
        for r in reads(0, 0, extra): A(r)
        A.label(f"K1_LOOP{tag}")
        start = len(A.lines)
        for s in range(4):
            b = s & 1
            mf = []
            for t in range(4):
                for u in range(2):
                    mf.append(mfma32(ACC(t,u), FW(b,u), FX(b,t)) if transposed else mfma32(ACC(t,u), FX(b,t), FW(b,u)))
            if extra == "K": mf.append(mfma32(XACC, FE(b), FX(b,0)))
            if extra == "V": mf.append(mfma32(XACC, FX(b,0), FE(b)))
            fill = reads(b ^ 1, (s + 1) & 3, extra)
            post = []
            if s == 2:
                post = [f"s_add_u32 s{sBASE}, s{sBASE}, 1",
                        f"s_cmp_eq_u32 s{sBASE}, 3",
                        f"s_cselect_b32 s{sDELTA}, {-2*K1_STAGE & 0xffffffff}, s72",
                        f"s_cselect_b32 s{sBASE}, 0, s{sBASE}"]
                post += [f"v_add_u32 v{XA+i}, s{sDELTA}, v{XA+i}" for i in range(7 if extra else 6)]
            if s == 3:
                post = [f"s_sub_u32 s{sCNT}, s{sCNT}, 1", f"s_cmp_lg_u32 s{sCNT}, 0"]
            A("s_waitcnt lgkmcnt(0)")
            for k, m in enumerate(mf):
                A(m)
                if s == 3 and k == 0: A("s_barrier")
                n = 2
                while n and fill:
                    A(fill.pop(0)); n -= 1
                if n == 2:
                    n = 4
                    while n and post:
                        A(post.pop(0)); n -= 1
            for p in post: A(p)
        A(f"s_cbranch_scc1 K1_LOOP{tag}")
        body = A.lines[start:]
        chk(body + body, f"k1 loop {tag}")
        A("s_waitcnt lgkmcnt(0)")
        A("s_nop 15")

    VC1, VC2, VEPS = 4, 6, 8
    def consts():
        A(f"v_mov_b32 v{VC1}, {hexf(LOG2E)}")
        A(f"v_mov_b32 v{VC1+1}, {hexf(LOG2E)}")
        A(f"v_mov_b32 v{VC2}, {hexf(-EPS*LOG2E)}")
        A(f"v_mov_b32 v{VC2+1}, {hexf(-EPS*LOG2E)}")
        A(f"v_mov_b32 v{VEPS}, {hexf(EPS)}")
    TMP = 32
    def phi_tile(base):
        for i in range(8):
            A(f"v_pk_fma_f32 {vr(TMP+2*i,2)}, {vr(base+2*i,2)}, {vr(VC1,2)}, {vr(VC2,2)}")
        for i in range(16):
            A(f"v_exp_f32 v{TMP+i}, v{TMP+i} clamp")
            A(f"v_max_f32 v{base+i}, v{base+i}, v{VEPS}")
        for i in range(8):
            A(f"v_pk_add_f32 {vr(base+2*i,2)}, {vr(base+2*i,2)}, {vr(TMP+2*i,2)}")
        pack_tile(base)
    def pack_tile(base):
        for i in range(8):
            A(f"v_cvt_pk_bf16_f32 v{base+i}, v{base+2*i}, v{base+2*i+1}")

    def q_store_setup(wsoff, cbsub):
        A("v_lshlrev_b32 v3, 4, v2")
        A(f"s_sub_u32 s{sT1}, s{sCBG}, {cbsub}")
        A(f"s_lshl_b32 s{sT1}, s{sT1}, 1")
        A(f"s_add_u32 s{sT1}, s{sT1}, s{sWN}")
        A(f"s_lshl_b32 s{sT1}, s{sT1}, 12")
        A(f"s_add_u32 s{sT1}, s{sT1}, {wsoff}")
        for t in range(4):
            A(f"s_add_u32 s{sT0}, s{sROT}, {t}")
            A(f"s_and_b32 s{sT0}, s{sT0}, 3")
            A(f"s_lshl_b32 s{sXO+4}, s{sWM}, 2")
            A(f"s_add_u32 s{sT0}, s{sT0}, s{sXO+4}")
            A(f"s_lshl_b32 s{sXO+4}, s{sRB}, 3")
            A(f"s_add_u32 s{sT0}, s{sT0}, s{sXO+4}")
            if t == 0: A(f"s_mov_b32 s{sXO+5}, s{sT0}")
            A(f"s_lshl_b32 s{sT0}, s{sT0}, 16")
            A(f"s_add_u32 s{sXO+t}, s{sT0}, s{sT1}")
    def q_store(t, u):
        for half in range(2):
            A(f"buffer_store_dwordx4 {vr(ACC(t,u)+4*half,4)}, v3, s[{SWS}:{SWS+3}], s{sXO+t} offen offset:{u*2048+half*1024}")

    A(f"s_cmp_eq_u32 s{sTYPE}, 1")
    A("s_cbranch_scc1 K1_MLN")
    A(f"s_cmp_eq_u32 s{sTYPE}, 0")
    A("s_cbranch_scc1 K1_MLT")
    A(f"s_cmp_eq_u32 s{sWN}, 1")
    A("s_cbranch_scc1 K1_MLT")
    A(f"s_bitcmp1_b32 s{sCBG}, 0")
    A("s_cbranch_scc1 K1_MLTV")
    mainloop("TK", True, "K")
    e0 = len(A.lines)
    A(f"v_mov_b32 v{VC1}, {hexf(KSCALE)}")
    A(f"v_mov_b32 v{VC1+1}, {hexf(KSCALE)}")
    for i in range(8):
        A(f"v_pk_mul_f32 {vr(XACC+2*i,2)}, {vr(XACC+2*i,2)}, {vr(VC1,2)}")
    A(f"s_mov_b32 s{sDELTA}, {WS_KV}")
    A("s_branch K1_EPX")
    mainloop("TV", True, "V")
    A(f"s_mov_b32 s{sDELTA}, {WS_KV + 2048}")
    A.label("K1_EPX")
    pack_tile(XACC)
    q_store_setup(WS_QB, 24)
    A(f"s_lshl_b32 s{sT0}, s{sXO+5}, 12")
    A(f"s_add_u32 s{sT0}, s{sT0}, s{sDELTA}")
    for half in range(2):
        A(f"buffer_store_dwordx4 {vr(XACC+4*half,4)}, v3, s[{SWS}:{SWS+3}], s{sT0} offen offset:{half*1024}")
    A("s_branch K1_EPQB2")
    mainloop("T", True, None)
    A(f"s_cmp_eq_u32 s{sTYPE}, 0")
    A("s_cbranch_scc1 K1_EPQA")
    q_store_setup(WS_QB, 24)
    A.label("K1_EPQB2")
    for t in range(4):
        for u in range(2):
            pack_tile(ACC(t,u))
            q_store(t, u)
    A("s_endpgm")
    A.label("K1_EPQA")
    consts()
    q_store_setup(WS_QA, 0)
    for t in range(4):
        for u in range(2):
            phi_tile(ACC(t,u))
            q_store(t, u)
    A("s_endpgm")
    mainloop("N", False, None)
    consts()
    ONES = 12
    KVD, ZD = 64, 80
    for i in range(4):
        A(f"v_mov_b32 v{ONES+i}, 0x3f803f80")
    for t in range(4):
        phi_tile(ACC(t,0))
        pack_tile(ACC(t,1))
        A("s_nop 1")
        for half in range(2):
            first = (t == 0 and half == 0)
            A(mfma32(KVD, ACC(t,0)+4*half, ACC(t,1)+4*half, "0" if first else None))
            A(mfma32(ZD, ONES, ACC(t,0)+4*half, "0" if first else None))
    A("v_lshlrev_b32 v3, 4, v2")
    A(f"s_sub_u32 s{sT0}, s{sCBG}, 8")
    A(f"s_lshl_b32 s{sT0}, s{sT0}, 1")
    A(f"s_add_u32 s{sT0}, s{sT0}, s{sWN}")
    A(f"s_lshl_b32 s{sT1}, s{sRB}, 1")
    A(f"s_add_u32 s{sT1}, s{sT1}, s{sWM}")
    A(f"s_lshl_b32 s{sXO}, s{sT0}, 4")
    A(f"s_add_u32 s{sXO}, s{sXO}, s{sT1}")
    A(f"s_lshl_b32 s{sXO}, s{sXO}, 12")
    A(f"s_add_u32 s{sXO}, s{sXO}, {WS_KVP}")
    A(f"s_lshl_b32 s{sXO+1}, s{sT0}, 11")
    A(f"s_lshl_b32 s{sT1}, s{sT1}, 2")
    A(f"s_add_u32 s{sXO+1}, s{sXO+1}, s{sT1}")
    A(f"s_add_u32 s{sXO+1}, s{sXO+1}, {WS_ZP}")
    A("v_and_b32 v4, 31, v2")
    A("v_lshlrev_b32 v4, 6, v4")
    A("s_nop 7")
    for q in range(4):
        A(f"buffer_store_dwordx4 {vr(KVD+4*q,4)}, v3, s[{SWS}:{SWS+3}], s{sXO} offen offset:{q*1024}")
    A(f"buffer_store_dword v{ZD}, v4, s[{SWS}:{SWS+3}], s{sXO+1} offen")
    A.label("K1_END")
    A("s_endpgm")
    chk(A.lines, "k1")
    return header("proj_kernel") + A.text() + descriptor("proj_kernel", 240, 96)

K2_KVX = 131072
K2_ZX = K2_KVX + 2048
K2_LDS = K2_ZX + 64

def gen_k2():
    A = Asm()
    SWS = 4
    sWAVE, sH, sRB, sRT, sT0, sT1, sCNT, sM0, sGO, sQO = 20, 21, 22, 23, 24, 25, 26, 27, 28, 29
    VL16, VCUR, VNXT = 1, 3, 4
    Q, ONES, KF, VF, P, L = 16, 24, 28, 36, 44, 52
    S = [64, 80]
    O, NEGM = 96, 112
    A("s_cmp_ge_u32 s2, 256")
    A("s_cbranch_scc1 K2_END")
    A("s_load_dwordx2 s[52:53], s[0:1], 80")
    A("v_lshrrev_b32 v5, 6, v0")
    A("v_and_b32 v2, 63, v0")
    A(f"s_and_b32 s{sH}, s2, 31")
    A(f"s_lshr_b32 s{sRB}, s2, 5")
    A(f"v_readfirstlane_b32 s{sWAVE}, v5")
    A(f"v_lshlrev_b32 v{VL16}, 4, v2")
    A(f"s_lshl_b32 s{sRT}, s{sRB}, 3")
    A(f"s_add_u32 s{sRT}, s{sRT}, s{sWAVE}")
    A(f"s_lshl_b32 s{sQO}, s{sRT}, 16")
    A(f"s_lshl_b32 s{sT0}, s{sH}, 11")
    A(f"s_add_u32 s{sQO}, s{sQO}, s{sT0}")
    A(f"s_lshl_b32 s{sM0}, s{sWAVE}, 12")
    A(f"s_add_u32 s{sGO}, s{sM0}, {WS_KV}")
    A("s_waitcnt lgkmcnt(0)")
    srd(A, SWS, 52, WS_USED)
    def dma_chunk():
        A(f"s_mov_b32 m0, s{sM0}")
        A("s_nop 0")
        for n in range(4):
            A(f"buffer_load_dwordx4 v{VL16}, s[{SWS}:{SWS+3}], s{sGO} offen offset:{n*1024} lds")
        A(f"s_add_u32 s{sGO}, s{sGO}, 32768")
        A(f"s_add_u32 s{sM0}, s{sM0}, 32768")
        A(f"s_and_b32 s{sM0}, s{sM0}, 0x1ffff")
    dma_chunk()
    A(f"s_add_u32 s{sT0}, s{sQO}, {WS_QB}")
    for half in range(2):
        A(f"buffer_load_dwordx4 {vr(Q+4*half,4)}, v{VL16}, s[{SWS}:{SWS+3}], s{sT0} offen offset:{half*1024}")
    KVP, ZP, PQ = 64, 96, 104
    A("v_lshlrev_b32 v5, 3, v2")
    A(f"s_lshl_b32 s{sT0}, s{sH}, 16")
    A(f"s_lshl_b32 s{sT1}, s{sWAVE}, 9")
    A(f"s_add_u32 s{sT0}, s{sT0}, s{sT1}")
    A(f"s_add_u32 s{sT0}, s{sT0}, {WS_KVP}")
    for p in range(16):
        A(f"buffer_load_dwordx2 {vr(KVP+2*p,2)}, v5, s[{SWS}:{SWS+3}], s{sT0} offen")
        if p < 15: A(f"s_add_u32 s{sT0}, s{sT0}, 4096")
    A("v_and_b32 v6, 31, v2")
    A("v_lshlrev_b32 v6, 6, v6")
    A("v_lshrrev_b32 v7, 5, v2")
    A("v_lshl_add_u32 v6, v7, 5, v6")
    A(f"s_lshl_b32 s{sT0}, s{sH}, 11")
    A(f"s_add_u32 s{sT0}, s{sT0}, {WS_ZP}")
    for i in range(2):
        A(f"buffer_load_dwordx4 {vr(ZP+4*i,4)}, v6, s[{SWS}:{SWS+3}], s{sT0} offen offset:{16*i}")
    A(f"s_add_u32 s{sT0}, s{sQO}, {WS_QA}")
    for half in range(2):
        A(f"buffer_load_dwordx4 {vr(PQ+4*half,4)}, v{VL16}, s[{SWS}:{SWS+3}], s{sT0} offen offset:{half*1024}")
    dma_chunk()
    dma_chunk()
    A("v_bfe_u32 v8, v2, 2, 1")
    A("v_bfe_u32 v9, v2, 4, 1")
    A("v_cmp_eq_u32 vcc, v8, v9")
    A("v_mov_b32 v8, 0x3f803f80")
    A("s_nop 0")
    A(f"v_cndmask_b32 v{ONES}, 0, v8, vcc")
    for i in range(1, 4):
        A(f"v_mov_b32 v{ONES+i}, v{ONES}")
    A(f"s_lshr_b32 s{sT0}, s{sWAVE}, 2")
    A(f"s_lshl_b32 s{sT0}, s{sT0}, 10")
    A(f"s_and_b32 s{sT1}, s{sWAVE}, 1")
    A(f"s_lshl_b32 s{sT1}, s{sT1}, 9")
    A(f"s_add_u32 s{sT0}, s{sT0}, s{sT1}")
    A(f"s_bfe_u32 s{sT1}, s{sWAVE}, 0x10001")
    A(f"s_lshl_b32 s{sT1}, s{sT1}, 3")
    A(f"s_add_u32 s{sT0}, s{sT0}, s{sT1}")
    A(f"s_add_u32 s{sT0}, s{sT0}, {K2_KVX}")
    A("v_lshrrev_b32 v8, 1, v2")
    A("v_lshlrev_b32 v8, 4, v8")
    A("v_and_b32 v9, 1, v2")
    A("v_lshl_add_u32 v8, v9, 2, v8")
    A(f"v_add_u32 v8, s{sT0}, v8")
    A("v_and_b32 v9, 31, v2")
    A("v_lshlrev_b32 v9, 1, v9")
    A(f"v_add_u32 v9, {K2_ZX}, v9")
    A("v_lshlrev_b32 v10, 3, v7")
    A(f"v_add_u32 v10, {K2_ZX}, v10")
    A(f"v_add_u32 v11, {K2_KVX}, v{VL16}")
    A("s_waitcnt vmcnt(8)")
    n = 16
    while n > 1:
        n //= 2
        for i in range(n):
            A(f"v_pk_add_f32 {vr(KVP+2*i,2)}, {vr(KVP+2*i,2)}, {vr(KVP+2*(i+n),2)}")
    A(f"v_cvt_pk_bf16_f32 v{KVP}, v{KVP}, v{KVP+1}")
    A(f"v_pk_add_f32 {vr(ZP,2)}, {vr(ZP,2)}, {vr(ZP+4,2)}")
    A(f"v_pk_add_f32 {vr(ZP+2,2)}, {vr(ZP+2,2)}, {vr(ZP+6,2)}")
    A(f"ds_write_b32 v8, v{KVP}")
    A(f"v_pk_add_f32 {vr(ZP,2)}, {vr(ZP,2)}, {vr(ZP+2,2)}")
    A(f"v_add_f32 v{ZP}, v{ZP}, v{ZP+1}")
    A(f"v_mov_b32 v{ZP+1}, v{ZP}")
    A("s_nop 1")
    A(f"v_permlane32_swap_b32 v{ZP}, v{ZP+1}")
    A(f"v_add_f32 v{ZP}, v{ZP}, v{ZP+1}")
    A(f"v_cvt_pk_bf16_f32 v{ZP}, v{ZP}, v{ZP}")
    A(f"ds_write_b16 v9, v{ZP}")
    A("s_waitcnt lgkmcnt(0)")
    A("s_barrier")
    KVA, ZA = 28, 36
    A(f"ds_read_b128 {vr(KVA,4)}, v11")
    A(f"ds_read_b128 {vr(KVA+4,4)}, v11 offset:1024")
    A(f"ds_read2_b64 {vr(ZA,4)}, v10 offset0:0 offset1:2")
    A(f"ds_read2_b64 {vr(ZA+4,4)}, v10 offset0:4 offset1:6")
    A(f"ds_read_b128 {vr(44,4)}, v{VL16}")
    A(f"ds_read_b128 {vr(48,4)}, v{VL16} offset:1024")
    A("s_waitcnt lgkmcnt(2)")
    A(mfma32(S[1], ZA, PQ, "0"))
    A(mfma32(S[1], ZA+4, PQ+4))
    A(mfma32(S[0], KVA, PQ, "0"))
    A(mfma32(S[0], KVA+4, PQ+4))
    A("s_waitcnt lgkmcnt(0)")
    A(mfma32(NEGM, 44, Q, "0"))
    A(mfma32(NEGM, 48, Q+4))
    A("s_nop 7")
    A(f"v_add_f32 v8, {hexf(EPS)}, v{S[1]}")
    A("v_rcp_f32 v8, v8")
    A("s_nop 0")
    A("v_mov_b32 v9, v8")
    A("s_nop 1")
    for i in range(8):
        A(f"v_pk_mul_f32 {vr(S[0]+2*i,2)}, {vr(S[0]+2*i,2)}, v[8:9]")
    for i in range(8):
        A(f"v_cvt_pk_bf16_f32 v{S[0]+i}, v{S[0]+2*i}, v{S[0]+2*i+1}")
    A(f"s_add_u32 s{sT0}, s{sQO}, {WS_OA}")
    for half in range(2):
        A(f"buffer_store_dwordx4 {vr(S[0]+4*half,4)}, v{VL16}, s[{SWS}:{SWS+3}], s{sT0} offen offset:{half*1024}")
    A(f"v_max3_f32 v8, v{NEGM}, v{NEGM+1}, v{NEGM+2}")
    for i in range(3, 15, 2):
        A(f"v_max3_f32 v8, v8, v{NEGM+i}, v{NEGM+i+1}")
    A(f"v_max_f32 v8, v8, v{NEGM+15}")
    A("v_mov_b32 v9, v8")
    A("s_nop 1")
    A("v_permlane32_swap_b32 v8, v9")
    A("v_max_f32 v8, v8, v9")
    A("v_sub_f32 v8, 0, v8")
    for i in range(16):
        A(f"v_mov_b32 v{NEGM+i}, v8")
    for i in range(16):
        A(f"v_mov_b32 v{O+i}, 0")
    for i in range(4):
        A(f"v_mov_b32 v{L+i}, 0")
        A(f"v_mov_b32 v{VF+4+i}, 0")
    A(mfma32(S[0], 44, Q, NEGM))
    A(mfma32(S[0], 48, Q+4))
    A(f"v_mov_b32 v{VCUR}, v{VL16}")
    A(f"v_add_u32 v{VNXT}, 32768, v{VL16}")
    A(f"ds_read_b128 {vr(KF,4)}, v{VCUR} offset:4096")
    A(f"ds_read_b128 {vr(KF+4,4)}, v{VCUR} offset:5120")
    A(f"ds_read_b128 {vr(VF,4)}, v{VCUR} offset:2048")
    for i in range(4):
        A(f"v_mov_b32 v{P+4+i}, 0")
    A(f"s_mov_b32 s{sCNT}, 0")
    A("s_waitcnt lgkmcnt(0)")
    A("s_nop 3")
    A.label("K2_LOOP")
    start = len(A.lines)
    for jj in range(8):
        Sc, Sn = S[jj & 1], S[(jj + 1) & 1]
        E = lambda i: f"v_exp_f32 v{Sc+i}, v{Sc+i}"
        C = lambda i: f"v_cvt_pk_bf16_f32 v{P+i}, v{Sc+2*i}, v{Sc+2*i+1}"
        def addr(tile, part):
            if tile < 8: return f"v{VCUR} offset:{tile*4096+part*1024}"
            return f"v{VNXT} offset:{(tile-8)*4096+part*1024}"
        A("s_waitcnt lgkmcnt(2)")
        A(mfma32(Sn, KF, Q, NEGM))
        A(E(0)); A(E(1)); A(E(2)); A(E(3))
        A(mfma32(Sn, KF+4, Q+4))
        if jj == 6:
            A("s_waitcnt vmcnt(0)")
            A("s_barrier")
        A(f"ds_read_b128 {vr(KF,4)}, {addr(jj+2,0)}")
        A(f"ds_read_b128 {vr(KF+4,4)}, {addr(jj+2,1)}")
        A(C(0)); A(C(1)); A(E(4)); A(E(5)); A(E(6))
        A("s_waitcnt lgkmcnt(3)")
        A(mfma32(O, VF+4, P+4))
        A(f"ds_read_b128 {vr(VF+4,4)}, {addr(jj,3)}")
        A(E(7)); A(C(2)); A(C(3)); A(E(8))
        A(mfma16(L, ONES, P+4))
        A(E(9)); A(E(10))
        A("s_waitcnt lgkmcnt(3)")
        A(mfma32(O, VF, P))
        A(f"ds_read_b128 {vr(VF,4)}, {addr(jj+1,2)}")
        A(E(11)); A(C(4)); A(C(5)); A(E(12))
        A(mfma16(L, ONES, P))
        A(E(13)); A(E(14)); A(E(15)); A(C(6)); A(C(7))
        if jj == 6:
            A(f"s_cmp_ge_u32 s{sCNT}, 5")
            A("s_cbranch_scc1 K2_NODMA")
            dma_chunk()
            A.label("K2_NODMA")
    A(f"v_mov_b32 v{VCUR}, v{VNXT}")
    A(f"v_add_u32 v{VNXT}, 32768, v{VNXT}")
    A(f"v_and_b32 v{VNXT}, 0x1ffff, v{VNXT}")
    A(f"s_add_u32 s{sCNT}, s{sCNT}, 1")
    A(f"s_cmp_lt_u32 s{sCNT}, 8")
    A("s_cbranch_scc1 K2_LOOP")
    body = A.lines[start:]
    chk(body + body, "k2 loop")
    A("s_waitcnt lgkmcnt(0)")
    A(mfma32(O, VF+4, P+4))
    A(mfma16(L, ONES, P+4))
    A("s_nop 15")
    A(f"v_max3_f32 v8, |v{O}|, |v{O+1}|, |v{O+2}|")
    for i in range(3, 15, 2):
        A(f"v_max3_f32 v8, v8, |v{O+i}|, |v{O+i+1}|")
    A(f"v_max_f32 v8, v8, |v{O+15}|")
    A(f"v_mov_b32 v9, {hexf(2.0**60)}")
    A(f"v_cmp_nlt_f32 vcc, v{L}, v9")
    A(f"v_mov_b32 v9, {hexf(2.0**120)}")
    A("v_cmp_nlt_f32 s[30:31], v8, v9")
    A("s_nop 1")
    A("s_or_b64 vcc, vcc, s[30:31]")
    A("s_cbranch_vccnz K2_SLOW")
    A.label("K2_FIN")
    A(f"v_rcp_f32 v8, v{L}")
    A("s_nop 0")
    A("v_mov_b32 v9, v8")
    A("s_nop 1")
    for i in range(8):
        A(f"v_pk_mul_f32 {vr(O+2*i,2)}, {vr(O+2*i,2)}, v[8:9]")
    for i in range(8):
        A(f"v_cvt_pk_bf16_f32 v{O+i}, v{O+2*i}, v{O+2*i+1}")
    A(f"s_add_u32 s{sT0}, s{sQO}, {WS_OB}")
    for half in range(2):
        A(f"buffer_store_dwordx4 {vr(O+4*half,4)}, v{VL16}, s[{SWS}:{SWS+3}], s{sT0} offen offset:{half*1024}")
    A.label("K2_END")
    A("s_endpgm")
    A.label("K2_SLOW")
    A(f"v_mov_b32 v8, 0xff800000")
    A(f"s_mov_b32 s{sT0}, {WS_KV}")
    A(f"s_mov_b32 s{sCNT}, 0")
    A.label("K2_SLOW1")
    A(f"buffer_load_dwordx4 {vr(KF,4)}, v{VL16}, s[{SWS}:{SWS+3}], s{sT0} offen")
    A(f"buffer_load_dwordx4 {vr(KF+4,4)}, v{VL16}, s[{SWS}:{SWS+3}], s{sT0} offen offset:1024")
    A("s_waitcnt vmcnt(0)")
    A(mfma32(S[0], KF, Q, "0"))
    A(mfma32(S[0], KF+4, Q+4))
    A("s_nop 15")
    for i in range(0, 16, 2):
        A(f"v_max3_f32 v8, v8, v{S[0]+i}, v{S[0]+i+1}")
    A(f"s_add_u32 s{sT0}, s{sT0}, 4096")
    A(f"s_add_u32 s{sCNT}, s{sCNT}, 1")
    A(f"s_cmp_lt_u32 s{sCNT}, 64")
    A("s_cbranch_scc1 K2_SLOW1")
    A("v_mov_b32 v9, v8")
    A("s_nop 1")
    A("v_permlane32_swap_b32 v8, v9")
    A("v_max_f32 v8, v8, v9")
    A("v_sub_f32 v8, 0, v8")
    for i in range(16):
        A(f"v_mov_b32 v{NEGM+i}, v8")
        A(f"v_mov_b32 v{O+i}, 0")
    for i in range(4):
        A(f"v_mov_b32 v{L+i}, 0")
    A(f"s_mov_b32 s{sT0}, {WS_KV}")
    A(f"s_mov_b32 s{sCNT}, 0")
    A.label("K2_SLOW2")
    for i in range(2):
        A(f"buffer_load_dwordx4 {vr(KF+4*i,4)}, v{VL16}, s[{SWS}:{SWS+3}], s{sT0} offen offset:{1024*i}")
        A(f"buffer_load_dwordx4 {vr(VF+4*i,4)}, v{VL16}, s[{SWS}:{SWS+3}], s{sT0} offen offset:{2048+1024*i}")
    A("s_waitcnt vmcnt(0)")
    A(mfma32(S[0], KF, Q, NEGM))
    A(mfma32(S[0], KF+4, Q+4))
    A("s_nop 15")
    for i in range(16):
        A(f"v_exp_f32 v{S[0]+i}, v{S[0]+i}")
    A("s_nop 0")
    for i in range(8):
        A(f"v_cvt_pk_bf16_f32 v{P+i}, v{S[0]+2*i}, v{S[0]+2*i+1}")
    A("s_nop 1")
    A(mfma32(O, VF, P))
    A(mfma16(L, ONES, P))
    A(mfma32(O, VF+4, P+4))
    A(mfma16(L, ONES, P+4))
    A("s_nop 15")
    A(f"s_add_u32 s{sT0}, s{sT0}, 4096")
    A(f"s_add_u32 s{sCNT}, s{sCNT}, 1")
    A(f"s_cmp_lt_u32 s{sCNT}, 64")
    A("s_cbranch_scc1 K2_SLOW2")
    A("s_branch K2_FIN")
    chk(A.lines, "k2")
    return header("attn_kernel") + A.text() + descriptor("attn_kernel", 128, 64)

K3_STAGE = 32768
K3_NB = 5
K3_WOFF = 16384
K3_LDS = K3_NB * K3_STAGE

def gen_k3():
    A = Asm()
    SO, SW, SOUT = 4, 8, 12
    sXCD, sIDX, sWAVE, sRB, sCB, sT0, sW4, sT1, sBR = 20, 21, 22, 23, 24, 25, 26, 27, 28
    sBASE, sCNT, sDELTA, sAO = 34, 35, 36, 37
    sWO = 60
    A("s_cmp_ge_u32 s2, 256")
    A("s_cbranch_scc1 K3_END")
    A("s_load_dwordx2 s[40:41], s[0:1], 16")
    A("s_load_dwordx4 s[44:47], s[0:1], 56")
    A("s_load_dwordx2 s[52:53], s[0:1], 80")
    A("v_lshrrev_b32 v1, 6, v0")
    A("v_and_b32 v2, 63, v0")
    A(f"s_and_b32 s{sXCD}, s2, 7")
    A(f"s_lshr_b32 s{sIDX}, s2, 3")
    A(f"v_readfirstlane_b32 s{sWAVE}, v1")
    A(f"s_lshr_b32 s{sBR}, s{sXCD}, 2")
    A(f"s_and_b32 s{sRB}, s{sXCD}, 1")
    A(f"s_lshl_b32 s{sRB}, s{sRB}, 3")
    A(f"s_and_b32 s{sT0}, s{sIDX}, 7")
    A(f"s_add_u32 s{sRB}, s{sRB}, s{sT0}")
    A(f"s_bfe_u32 s{sCB}, s{sXCD}, 0x10001")
    A(f"s_lshl_b32 s{sCB}, s{sCB}, 2")
    A(f"s_lshr_b32 s{sT0}, s{sIDX}, 3")
    A(f"s_add_u32 s{sCB}, s{sCB}, s{sT0}")
    A("s_waitcnt lgkmcnt(0)")
    A(f"s_cmp_eq_u32 s{sBR}, 1")
    A("s_cselect_b64 s[54:55], s[44:45], s[40:41]")
    srd(A, SO, 52, WS_USED)
    srd(A, SW, 54, 2 << 20)
    srd(A, SOUT, 46, 8 << 20)
    A(f"s_cmp_lt_u32 s{sWAVE}, 4")
    A("s_cbranch_scc1 K3_COMPUTE")
    VA, VW = 3, 6
    A(f"s_sub_u32 s{sW4}, s{sWAVE}, 4")
    A(f"v_lshlrev_b32 v{VA}, 4, v2")
    A(f"s_lshl_b32 s{sAO}, s{sRB}, 2")
    A(f"s_add_u32 s{sAO}, s{sAO}, s{sW4}")
    A(f"s_lshl_b32 s{sAO}, s{sAO}, 16")
    A(f"s_lshl_b32 s{sT0}, s{sBR}, 22")
    A(f"s_add_u32 s{sAO}, s{sAO}, s{sT0}")
    A(f"s_add_u32 s{sAO}, s{sAO}, {WS_OA}")
    A("v_lshrrev_b32 v4, 4, v2")
    A("v_and_b32 v5, 15, v2")
    A("v_lshlrev_b32 v8, 2, v4")
    A("v_xor_b32 v5, v5, v8")
    A("v_lshlrev_b32 v4, 11, v4")
    A(f"v_lshl_add_u32 v{VW}, v5, 4, v4")
    A(f"s_lshl_b32 s{sT0}, s{sCB}, 8")
    A(f"v_add_u32 v{VW}, s{sT0}, v{VW}")
    for n in range(4):
        A(f"s_lshl_b32 s{sT0}, s{sW4}, 2")
        A(f"s_add_u32 s{sT0}, s{sT0}, {16*n}")
        A(f"s_lshl_b32 s{sWO+n}, s{sT0}, 11")
    A(f"s_mov_b32 s{sBASE}, 0")
    A(f"s_lshl_b32 s{sT0}, s{sW4}, 12")
    A(f"s_lshl_b32 s{sT1}, s{sW4}, 10")
    A(f"s_add_u32 s{sT1}, s{sT1}, {K3_WOFF}")
    def issue():
        A(f"s_add_u32 m0, s{sBASE}, s{sT0}")
        A("s_nop 0")
        for n in range(4):
            A(f"buffer_load_dwordx4 v{VA}, s[{SO}:{SO+3}], s{sAO} offen offset:{n*1024} lds")
        A(f"s_add_u32 s{sDELTA}, s{sBASE}, s{sT1}")
        for n in range(4):
            A(f"s_add_u32 m0, s{sDELTA}, {n*4096}")
            A("s_nop 0")
            A(f"buffer_load_dwordx4 v{VW}, s[{SW}:{SW+3}], s{sWO+n} offen lds")
        A(f"s_add_u32 s{sAO}, s{sAO}, 4096")
        A(f"v_add_u32 v{VW}, {64*2048}, v{VW}")
        A(f"s_add_u32 s{sBASE}, s{sBASE}, {K3_STAGE}")
        A(f"s_cmp_ge_u32 s{sBASE}, {K3_LDS}")
        A(f"s_cselect_b32 s{sBASE}, 0, s{sBASE}")
    n = 8
    A(f"s_mov_b32 s{sCNT}, {K3_NB}")
    A.label("K3_LPRE")
    issue()
    A(f"s_sub_u32 s{sCNT}, s{sCNT}, 1")
    A(f"s_cmp_lg_u32 s{sCNT}, 0")
    A("s_cbranch_scc1 K3_LPRE")
    A(f"s_waitcnt vmcnt({(K3_NB-1)*n})")
    A("s_barrier")
    A(f"s_mov_b32 s{sCNT}, {16-K3_NB}")
    A.label("K3_LLOOP")
    A(f"s_waitcnt vmcnt({(K3_NB-2)*n})")
    A("s_barrier")
    issue()
    A(f"s_sub_u32 s{sCNT}, s{sCNT}, 1")
    A(f"s_cmp_lg_u32 s{sCNT}, 0")
    A("s_cbranch_scc1 K3_LLOOP")
    for i in range(K3_NB - 2, -1, -1):
        A(f"s_waitcnt vmcnt({i*n})")
        A("s_barrier")
    A("s_endpgm")
    A.label("K3_COMPUTE")
    AA, WA = 16, 17
    FB = [32, 48]
    FA = lambda b, t: FB[b] + 4 * t
    FW = lambda b, u: FB[b] + 8 + 4 * u
    ACC = lambda t, u: 64 + 16 * (2 * t + u)
    sWM, sWN = 38, 39
    A(f"s_lshr_b32 s{sWM}, s{sWAVE}, 1")
    A(f"s_and_b32 s{sWN}, s{sWAVE}, 1")
    A(f"s_lshl_b32 s{sT0}, s{sWM}, 13")
    A(f"v_lshl_add_u32 v{AA}, v2, 4, s{sT0}")
    A("v_lshrrev_b32 v4, 5, v2")
    A("v_bfe_u32 v5, v2, 2, 2")
    A("v_lshl_add_u32 v6, v4, 2, v5")
    A("v_bfe_u32 v7, v2, 4, 1")
    A("v_bfe_u32 v8, v2, 1, 1")
    A("v_lshl_add_u32 v7, v7, 1, v8")
    A("v_and_b32 v8, 1, v2")
    A("v_lshlrev_b32 v8, 3, v8")
    A("v_lshl_add_u32 v8, v6, 8, v8")
    for u in range(2):
        A(f"s_lshl_b32 s{sT0}, s{sWN}, 1")
        A(f"s_add_u32 s{sT0}, s{sT0}, {u}")
        A(f"v_xor_b32 v9, s{sT0}, v5")
        A("v_lshl_add_u32 v9, v9, 2, v7")
        A(f"v_lshl_add_u32 v{WA+u}, v9, 4, v8")
    for r in range(64):
        A(f"v_mov_b32 v{64+r}, 0")
    A(f"s_mov_b32 s72, {K3_STAGE}")
    A(f"s_mov_b32 s{sBASE}, 0")
    A(f"s_mov_b32 s{sCNT}, 16")
    def reads(b, ks):
        R = [f"ds_read_b128 {vr(FA(b,0),4)}, v{AA} offset:{ks*1024}"]
        for u in range(2):
            R.append(f"ds_read_b64_tr_b16 {vr(FW(b,u),2)}, v{WA+u} offset:{K3_WOFF+ks*4096}")
            R.append(f"ds_read_b64_tr_b16 {vr(FW(b,u)+2,2)}, v{WA+u} offset:{K3_WOFF+ks*4096+2048}")
        R.append(f"ds_read_b128 {vr(FA(b,1),4)}, v{AA} offset:{4096+ks*1024}")
        return R
    A("s_barrier")
    for r in reads(0, 0): A(r)
    A.label("K3_LOOP")
    start = len(A.lines)
    for s in range(4):
        b = s & 1
        mf = [mfma32(ACC(t,u), FW(b,u), FA(b,t)) for t in range(2) for u in range(2)]
        fill = reads(b ^ 1, (s + 1) & 3)
        post = []
        if s == 1:
            post = [f"s_add_u32 s{sBASE}, s{sBASE}, 1",
                    f"s_cmp_eq_u32 s{sBASE}, {K3_NB}",
                    f"s_cselect_b32 s{sDELTA}, {-(K3_NB-1)*K3_STAGE & 0xffffffff}, s72",
                    f"s_cselect_b32 s{sBASE}, 0, s{sBASE}"]
        if s == 2:
            post = [f"v_add_u32 v{AA+i}, s{sDELTA}, v{AA+i}" for i in range(3)]
        if s == 3:
            post = [f"s_sub_u32 s{sCNT}, s{sCNT}, 1", f"s_cmp_lg_u32 s{sCNT}, 0"]
        A("s_waitcnt lgkmcnt(0)")
        for k, m in enumerate(mf):
            A(m)
            if s == 3 and k == 0: A("s_barrier")
            n = 3
            while n and fill:
                A(fill.pop(0)); n -= 1
            if n == 3:
                while post: A(post.pop(0))
    A("s_cbranch_scc1 K3_LOOP")
    body = A.lines[start:]
    chk(body + body, "k3 loop")
    A("s_waitcnt lgkmcnt(0)")
    A("v_and_b32 v3, 31, v2")
    A("v_lshlrev_b32 v3, 12, v3")
    A("v_lshl_add_u32 v3, v4, 4, v3")
    A(f"s_lshl_b32 s{sT0}, s{sRB}, 1")
    A(f"s_add_u32 s{sT0}, s{sT0}, s{sWM}")
    A(f"s_lshl_b32 s{sT0}, s{sT0}, 18")
    A(f"s_lshl_b32 s{sT1}, s{sBR}, 3")
    A(f"s_add_u32 s{sT1}, s{sT1}, s{sCB}")
    A(f"s_lshl_b32 s{sT1}, s{sT1}, 1")
    A(f"s_add_u32 s{sT1}, s{sT1}, s{sWN}")
    A(f"s_lshl_b32 s{sT1}, s{sT1}, 7")
    A(f"s_add_u32 s{sWO}, s{sT0}, s{sT1}")
    A(f"s_add_u32 s{sWO+1}, s{sWO}, {32*4096}")
    A("s_nop 7")
    for t in range(2):
        for u in range(2):
            b = ACC(t,u)
            for i in range(8):
                A(f"v_cvt_pk_bf16_f32 v{b+i}, v{b+2*i}, v{b+2*i+1}")
            A("s_nop 1")
            for gp in range(2):
                A(f"v_permlane32_swap_b32 v{b+4*gp}, v{b+4*gp+2}")
                A(f"v_permlane32_swap_b32 v{b+4*gp+1}, v{b+4*gp+3}")
            for gp in range(2):
                A(f"buffer_store_dwordx4 {vr(b+4*gp,4)}, v3, s[{SOUT}:{SOUT+3}], s{sWO+t} offen offset:{u*64+gp*32}")
    A.label("K3_END")
    A("s_endpgm")
    chk(A.lines, "k3")
    return header("out_kernel") + A.text() + descriptor("out_kernel", 128, 96)

def main():
    out = sys.argv[1] if len(sys.argv) > 1 else f"cdna_kernels/{KNAME}.s"
    ref = open(f"cdna_kernels/{KNAME}.s.ref").read().split("\n")
    head = [l for l in ref if l.startswith(";") and "@launch" not in l and "Override" not in l and "grid=ceil" not in l]
    head.append(f"; @launch kernel=proj_kernel grid=(256,1,1) block=(512,1,1) lds={K1_LDS}")
    head.append(f"; @launch kernel=attn_kernel grid=(256,1,1) block=(512,1,1) lds={K2_LDS}")
    head.append(f"; @launch kernel=out_kernel grid=(256,1,1) block=(512,1,1) lds={K3_LDS}")
    txt = "\n".join(head) + '\n.amdgcn_target "amdgcn-amd-amdhsa--gfx950"\n' + gen_k1() + gen_k2() + gen_k3()
    open(out, "w").write(txt)
    seen = set()
    for p in PROBS:
        if p not in seen:
            print("HAZARD", p); seen.add(p)
    print("written", out, len(txt))
main()
```

```python
import sys, math, os
from asmlib import *

KNAME = "concat_heads__linear_attn_block__grouped_kv_mqa__prompt"
OPT = dict(st1="sc1", st2="sc1", st3="sc1", pf1=2, pf2=1, pf3=0, ld1="", pfm1="", pfm2="", k2nobar=0, k2prio=2, k2sched=2)
for a in sys.argv[1:]:
    if "=" in a:
        k, v = a.lstrip("-").split("=", 1)
        OPT[k] = int(v) if v.lstrip("-").isdigit() else v.replace("+", " ")
DIAG = "--diag" in sys.argv

WS_QA = 0
WS_QB = 4 << 20
WS_OA = 8 << 20
WS_OB = 12 << 20
WS_KV = 16 << 20
WS_KVP = WS_KV + (256 << 10)
WS_ZP = WS_KVP + (1 << 20)
WS_USED = WS_ZP + (32 << 10)
WS_DIAG = 24 << 20
if DIAG: WS_USED = WS_DIAG + (2 << 20)

LOG2E = 1.4426950408889634
KSCALE = (32 ** -0.5) * LOG2E
EPS = 1e-6

def stamp(A, i):
    if not DIAG: return
    A(f"s_memtime s[{76+2*i}:{77+2*i}]")
    if i == 0: A("s_memrealtime s[92:93]")
def stamp_out(A, kidx, srdreg, swave, nst, vb=250):
    if not DIAG: return
    A("s_memrealtime s[94:95]")
    A("s_getreg_b32 s96, hwreg(HW_REG_XCC_ID)")
    A("s_waitcnt lgkmcnt(0)")
    A(f"v_mov_b32 v{vb+1}, 0")
    for i in range(nst):
        A(f"v_writelane_b32 v{vb+1}, s{76+2*i}, {i}")
    for i, r in ((8, 92), (9, 94), (10, 96)):
        A(f"v_writelane_b32 v{vb+1}, s{r}, {i}")
    A(f"v_and_b32 v{vb}, 63, v0")
    A("s_lshl_b32 s97, s2, 4")
    A(f"s_add_u32 s97, s97, s{swave}")
    A("s_lshl_b32 s97, s97, 6")
    A(f"s_add_u32 s97, s97, {WS_DIAG + kidx * 256 * 16 * 64}")
    A(f"v_lshlrev_b32 v{vb}, 2, v{vb}")
    A(f"v_cmp_gt_u32 vcc, 64, v{vb}")
    A("s_and_saveexec_b64 s[98:99], vcc")
    A(f"buffer_store_dword v{vb+1}, v{vb}, s[{srdreg}:{srdreg+3}], s97 offen")
    A("s_mov_b64 exec, s[98:99]")
def tl_init(A):
    if not DIAG: return
    A("v_mov_b32 v30, 0")
    A("v_mov_b32 v31, 0")
    A("s_mov_b32 s100, 0")
def tl_pre(A):
    if not DIAG: return
    A("s_memtime s[90:91]")
    A("s_waitcnt lgkmcnt(0)")
    A("s_sub_u32 s90, s90, s76")
    A("s_mov_b32 m0, s100")
    A("s_nop 0")
    A("v_writelane_b32 v31, s90, m0")
def tl_mid(A):
    if not DIAG: return
    A("s_memtime s[90:91]")
    A("s_waitcnt lgkmcnt(0)")
    A("s_sub_u32 s90, s90, s76")
    A("s_add_u32 m0, s100, 32")
    A("s_nop 0")
    A("v_writelane_b32 v31, s90, m0")
def tl_post(A):
    if not DIAG: return
    A("s_memtime s[90:91]")
    A("s_waitcnt lgkmcnt(0)")
    A("s_sub_u32 s90, s90, s76")
    A("s_mov_b32 m0, s100")
    A("s_nop 0")
    A("v_writelane_b32 v30, s90, m0")
    A("s_add_u32 s100, s100, 1")
def tl_out(A, kidx, srdreg, swave):
    if not DIAG: return
    A("v_and_b32 v250, 63, v0")
    A("v_lshlrev_b32 v250, 3, v250")
    A("s_lshl_b32 s97, s2, 9")
    A(f"s_add_u32 s97, s97, {WS_DIAG + (1024 << 10) + kidx * 256 * 512}")
    A(f"s_cmp_eq_u32 s{swave}, 4")
    A(f"s_cselect_b32 s97, s97, 0x40000000")
    A(f"buffer_store_dwordx2 v[30:31], v250, s[{srdreg}:{srdreg+3}], s97 offen")
PROBS = []
def chk(lines, name):
    PROBS.extend(check_hazards(lines, name))

def mfma32(d, a, b, c=None):
    cs = vr(d, 16) if c is None else (vr(c, 16) if isinstance(c, int) else c)
    return f"v_mfma_f32_32x32x16_bf16 {vr(d,16)}, {vr(a,4)}, {vr(b,4)}, {cs}"
def mfma16(d, a, b, c=None):
    cs = vr(d, 4) if c is None else (vr(c, 4) if isinstance(c, int) else c)
    return f"v_mfma_f32_16x16x32_bf16 {vr(d,4)}, {vr(a,4)}, {vr(b,4)}, {cs}"

def srd(A, dst, lo, nbytes):
    A(f"s_mov_b32 s{dst}, s{lo}")
    A(f"s_and_b32 s{dst+1}, s{lo+1}, 0xffff")
    A(f"s_mov_b32 s{dst+2}, {nbytes}")
    A(f"s_mov_b32 s{dst+3}, 0x20000")

def descriptor(name, nv, ns, dnv=256):
    if DIAG: nv, ns = dnv, 102
    return f"""
.section .rodata,"a"
.p2align 6
.amdhsa_kernel {name}
  .amdhsa_next_free_vgpr {nv}
  .amdhsa_next_free_sgpr {ns}
  .amdhsa_accum_offset {(nv+3)//4*4}
  .amdhsa_group_segment_fixed_size 0
  .amdhsa_kernarg_size 88
  .amdhsa_user_sgpr_count 2
  .amdhsa_user_sgpr_kernarg_segment_ptr 1
  .amdhsa_system_sgpr_workgroup_id_x 1
.end_amdhsa_kernel
"""

def header(name):
    return f""".text
.globl {name}
.p2align 8
.type {name},@function
{name}:
"""

K1_STAGE = 53248
K1_WOFF = 32768
K1_EOFF = 49152
K1_LDS = 3 * K1_STAGE

def gen_k1():
    A = Asm()
    ST = OPT["st1"]
    SX, SW, SE, SWS = 4, 8, 12, 16
    sXCD, sIDX, sWAVE, sRB, sCBG, sT0, sW4, sT1 = 20, 21, 22, 23, 24, 25, 26, 27
    sTYPE, sCOL, sS1, sS2, sWSTR, sROT, sBASE, sCNT, sDELTA, sWADV = 28, 29, 30, 31, 32, 33, 34, 35, 36, 37
    sXO, sWO, sSTG, sL1 = 60, 68, 72, 73
    A("s_cmp_ge_u32 s2, 256")
    A("s_cbranch_scc1 K1_END")
    stamp(A, 0)
    A("s_load_dwordx4 s[40:43], s[0:1], 0")
    A("s_load_dwordx4 s[44:47], s[0:1], 24")
    A("s_load_dwordx4 s[48:51], s[0:1], 40")
    A("s_load_dwordx2 s[52:53], s[0:1], 80")
    A("v_lshrrev_b32 v1, 6, v0")
    A("v_and_b32 v2, 63, v0")
    A(f"s_and_b32 s{sXCD}, s2, 7")
    A(f"s_lshr_b32 s{sIDX}, s2, 3")
    A(f"v_readfirstlane_b32 s{sWAVE}, v1")
    A(f"s_and_b32 s{sRB}, s{sXCD}, 1")
    A(f"s_lshl_b32 s{sRB}, s{sRB}, 2")
    A(f"s_and_b32 s{sT0}, s{sIDX}, 3")
    A(f"s_add_u32 s{sRB}, s{sRB}, s{sT0}")
    A(f"s_lshr_b32 s{sCBG}, s{sXCD}, 1")
    A(f"s_lshl_b32 s{sCBG}, s{sCBG}, 3")
    A(f"s_lshr_b32 s{sT0}, s{sIDX}, 2")
    A(f"s_add_u32 s{sCBG}, s{sCBG}, s{sT0}")
    A(f"s_mov_b32 s{sTYPE}, 0")
    A(f"s_lshl_b32 s{sCOL}, s{sCBG}, 7")
    A(f"s_mov_b32 s{sS1}, 32")
    A(f"s_mov_b32 s{sS2}, 64")
    A(f"s_mov_b32 s{sL1}, 128")
    A(f"s_mov_b32 s{sWSTR}, 6144")
    A(f"s_mov_b32 s{sROT}, 0")
    A(f"s_cmp_lt_u32 s{sCBG}, 8")
    A("s_cbranch_scc1 K1_TYPED")
    A(f"s_cmp_lt_u32 s{sCBG}, 24")
    A("s_cbranch_scc0 K1_TYPEB")
    A(f"s_mov_b32 s{sTYPE}, 1")
    A(f"s_lshl_b32 s{sCOL}, s{sCBG}, 6")
    A(f"s_add_u32 s{sCOL}, s{sCOL}, {1024 - 8*64}")
    A(f"s_mov_b32 s{sS1}, 1024")
    A(f"s_mov_b32 s{sS2}, 32")
    A(f"s_mov_b32 s{sL1}, 2048")
    A("s_branch K1_TYPED")
    A.label("K1_TYPEB")
    A(f"s_mov_b32 s{sTYPE}, 2")
    A(f"s_sub_u32 s{sCOL}, s{sCOL}, {24*128}")
    A(f"s_mov_b32 s{sWSTR}, 2048")
    A(f"s_lshr_b32 s{sROT}, s{sCBG}, 1")
    A(f"s_and_b32 s{sROT}, s{sROT}, 3")
    A.label("K1_TYPED")
    def build_srds():
        A("s_waitcnt lgkmcnt(0)")
        A(f"s_cmp_eq_u32 s{sTYPE}, 2")
        A("s_cselect_b64 s[54:55], s[44:45], s[40:41]")
        A("s_cselect_b64 s[56:57], s[46:47], s[42:43]")
        A(f"s_bitcmp1_b32 s{sCBG}, 0")
        A("s_cselect_b64 s[58:59], s[50:51], s[48:49]")
        srd(A, SX, 54, 4 << 20)
        A(f"s_mov_b32 s{SW}, s56")
        A(f"s_and_b32 s{SW+1}, s57, 0xffff")
        A(f"s_lshl_b32 s{SW+2}, s{sWSTR}, 10")
        A(f"s_mov_b32 s{SW+3}, 0x20000")
        srd(A, SE, 58, 65536)
        srd(A, SWS, 52, WS_USED)
    A(f"s_cmp_lt_u32 s{sWAVE}, 4")
    A("s_cbranch_scc1 K1_COMPUTE")

    VX, VW, VE = 3, 6, 7
    A(f"s_sub_u32 s{sW4}, s{sWAVE}, 4")
    A("v_lshrrev_b32 v4, 4, v2")
    A(f"s_lshl_b32 s{sT0}, s{sW4}, 2")
    A(f"v_add_u32 v4, s{sT0}, v4")
    A("v_and_b32 v4, 7, v4")
    A("v_and_b32 v5, 7, v2")
    A("v_xor_b32 v4, v4, v5")
    A("v_lshlrev_b32 v4, 4, v4")
    A("v_lshrrev_b32 v5, 3, v2")
    A("v_lshlrev_b32 v5, 11, v5")
    A(f"v_add_u32 v{VX}, v4, v5")
    A(f"s_lshl_b32 s{sT1}, s{sRB}, 5")
    A(f"s_add_u32 s{sT1}, s{sT1}, s{sW4}")
    A(f"s_lshl_b32 s{sT1}, s{sT1}, 14")
    for n in range(4):
        A(f"s_add_u32 s{sT0}, s{sROT}, {n}")
        A(f"s_and_b32 s{sT0}, s{sT0}, 3")
        A(f"s_lshl_b32 s{sT0}, s{sT0}, 16")
        A(f"s_add_u32 s{sXO+n}, s{sT0}, s{sT1}")
        A(f"s_add_u32 s{sXO+n+4}, s{sXO+n}, {4<<16}")
    A("v_lshrrev_b32 v4, 4, v2")
    A("v_and_b32 v5, 15, v2")
    A("v_lshlrev_b32 v8, 2, v4")
    A("v_xor_b32 v5, v5, v8")
    A(f"v_mul_lo_u32 v{VW}, v4, s{sWSTR}")
    A("v_and_b32 v8, 3, v5")
    A("v_lshlrev_b32 v8, 4, v8")
    A(f"v_add_u32 v{VW}, v{VW}, v8")
    A("v_bfe_u32 v8, v5, 2, 1")
    A(f"v_mul_lo_u32 v8, v8, s{sS1}")
    A("v_bfe_u32 v9, v5, 3, 1")
    A(f"v_mul_lo_u32 v9, v9, s{sS2}")
    A(f"v_add3_u32 v8, v8, v9, s{sCOL}")
    A(f"v_lshl_add_u32 v{VW}, v8, 1, v{VW}")
    A(f"s_lshl_b32 s{sT0}, s{sW4}, 2")
    A(f"s_mul_i32 s{sWO}, s{sT0}, s{sWSTR}")
    A(f"s_lshl_b32 s{sT0}, s{sWSTR}, 4")
    for n in range(1, 4):
        A(f"s_add_u32 s{sWO+n}, s{sWO+n-1}, s{sT0}")
    A(f"s_lshl_b32 s{sWADV}, s{sWSTR}, 6")
    A(f"s_lshl_b32 s{sT0}, s{sW4}, 10")
    A(f"v_lshl_add_u32 v{VE}, v2, 4, s{sT0}")
    A(f"s_mov_b32 s{sBASE}, s{sT0}")
    A(f"s_add_u32 s{sT1}, s{sT0}, {3*K1_STAGE}")
    PF = OPT["pf1"] == 2
    SPF, VPFA, VPFD, sPFO, sPFA, sT2, sT3 = 44, 10, 11, 74, 75, 38, 39
    if PF:
        A(f"s_cmp_lt_u32 s{sW4}, 2")
        A(f"s_cselect_b32 s{sT2}, 2048, s{sWSTR}")
        A(f"s_cselect_b32 s{sT3}, 128, s{sL1}")
        A("v_lshrrev_b32 v4, 2, v2")
        A(f"s_and_b32 s{sPFO}, s{sW4}, 1")
        A(f"s_lshl_b32 s{sPFO}, s{sPFO}, 4")
        A(f"v_add_u32 v4, s{sPFO}, v4")
        A(f"v_mul_lo_u32 v{VPFA}, v4, s{sT2}")
        A("v_bfe_u32 v4, v2, 1, 1")
        A(f"v_mul_lo_u32 v4, v4, s{sT3}")
        A(f"v_add_u32 v{VPFA}, v{VPFA}, v4")
        A(f"s_lshl_b32 s{sT2}, s{sRB}, 3")
        A(f"s_lshr_b32 s{sT3}, s{sIDX}, 2")
        A(f"s_add_u32 s{sT2}, s{sT2}, s{sT3}")
        A(f"s_lshl_b32 s{sT2}, s{sT2}, 16")
        A(f"s_add_u32 s{sT2}, s{sT2}, 256")
        A(f"s_and_b32 s{sT3}, s{sIDX}, 3")
        A(f"s_add_u32 s{sT3}, s{sT3}, 4")
        A(f"s_lshl_b32 s{sT3}, s{sT3}, 5")
        A(f"s_mul_i32 s{sT3}, s{sT3}, s{sWSTR}")
        A(f"s_lshl_b32 s{sPFO}, s{sCOL}, 1")
        A(f"s_add_u32 s{sT3}, s{sT3}, s{sPFO}")
        A(f"s_lshl_b32 s{sPFA}, s{sWSTR}, 7")
        A(f"s_cmp_lt_u32 s{sW4}, 2")
        A(f"s_cselect_b32 s{sPFO}, s{sT2}, s{sT3}")
        A(f"s_cselect_b32 s{sPFA}, 256, s{sPFA}")
    build_srds()
    if PF:
        A(f"s_cmp_lt_u32 s{sW4}, 2")
        A(f"s_cselect_b32 s{SPF}, s{SX}, s{SW}")
        A(f"s_cselect_b32 s{SPF+1}, s{SX+1}, s{SW+1}")
        A(f"s_cselect_b32 s{SPF+2}, s{SX+2}, s{SW+2}")
        A(f"s_mov_b32 s{SPF+3}, 0x20000")
    def issue(isB):
        seq = []
        for n in range(8):
            seq.append((n * 4096, f"buffer_load_dwordx4 v{VX}, s[{SX}:{SX+3}], s{sXO+n} offen {OPT['ld1']} lds"))
        for n in range(4):
            seq.append((K1_WOFF + n * 4096, f"buffer_load_dwordx4 v{VW}, s[{SW}:{SW+3}], s{sWO+n} offen {OPT['ld1']} lds"))
        order = [0, 8, 1, 2, 9, 3, 4, 10, 5, 6, 11, 7]
        seq = [seq[i] for i in order]
        if isB:
            seq.insert(2, (K1_EOFF, f"buffer_load_dwordx4 v{VE}, s[{SE}:{SE+3}], 0 offen lds"))
        for off, ins in seq:
            A(f"s_add_u32 m0, s{sBASE}, {off}")
            A("s_nop 0")
            A(ins)
        if PF:
            A(f"buffer_load_dword v{VPFD}, v{VPFA}, s[{SPF}:{SPF+3}], s{sPFO} offen {OPT['pfm1']}")
            A(f"s_add_u32 s{sPFO}, s{sPFO}, s{sPFA}")
            A(f"s_cmp_ge_u32 s{sCNT}, 6")
            A(f"s_cselect_b32 s{sPFO}, 0x40000000, s{sPFO}")
        A(f"v_add_u32 v{VX}, 128, v{VX}")
        A(f"v_add_u32 v{VW}, s{sWADV}, v{VW}")
        if isB:
            A(f"v_add_u32 v{VE}, 4096, v{VE}")
        A(f"s_add_u32 s{sBASE}, s{sBASE}, {K1_STAGE}")
        A(f"s_cmp_ge_u32 s{sBASE}, s{sT1}")
        A(f"s_cselect_b32 s{sBASE}, s{sT0}, s{sBASE}")
    A(f"s_cmp_eq_u32 s{sTYPE}, 2")
    A("s_cbranch_scc1 K1_LOADB")
    for isB in (False, True):
        n = 13 if isB else 12
        tag = "B" if isB else "A"
        if isB: A.label("K1_LOADB")
        A(f"s_mov_b32 s{sCNT}, 0")
        tl_init(A)
        A(f"s_branch K1_LIN{tag}")
        A.label(f"K1_LLOOP{tag}")
        A(f"s_cmp_lt_u32 s{sCNT}, 2")
        A(f"s_cbranch_scc1 K1_LIN{tag}")
        tl_pre(A)
        A(f"s_waitcnt vmcnt({n+2 if PF else n})")
        tl_mid(A)
        A("s_barrier")
        tl_post(A)
        A.label(f"K1_LIN{tag}")
        issue(isB)
        A(f"s_add_u32 s{sCNT}, s{sCNT}, 1")
        A(f"s_cmp_lt_u32 s{sCNT}, 16")
        A(f"s_cbranch_scc1 K1_LLOOP{tag}")
        tl_pre(A)
        A(f"s_waitcnt vmcnt({n+2 if PF else n})")
        tl_mid(A)
        A("s_barrier")
        tl_post(A)
        tl_pre(A)
        A("s_waitcnt vmcnt(0)")
        tl_mid(A)
        A("s_barrier")
        tl_post(A)
        tl_out(A, 0, SWS, sWAVE)
        stamp(A, 1)
        stamp_out(A, 0, SWS, sWAVE, 2)
        A("s_endpgm")

    A.label("K1_COMPUTE")
    XA, WA, EA = 16, 20, 22
    VPF = 24
    FB = [32, 60]
    FX = lambda b, t: FB[b] + 4 * t
    FW = lambda b, u: FB[b] + 16 + 4 * u
    FE = lambda b: FB[b] + 24
    XACC = 96
    ACC = lambda t, u: 112 + 16 * (2 * t + u)
    sWM, sWN = 38, 39
    A(f"s_lshr_b32 s{sWM}, s{sWAVE}, 1")
    A(f"s_and_b32 s{sWN}, s{sWAVE}, 1")
    A("v_and_b32 v3, 31, v2")
    A("v_lshrrev_b32 v4, 5, v2")
    if OPT["pf1"] == 1:
        A("v_lshlrev_b32 v10, 11, v3")
        A("v_lshl_add_u32 v10, v4, 7, v10")
        A(f"s_lshl_b32 s{sT0}, s{sRB}, 3")
        A(f"s_lshr_b32 s{sT1}, s{sIDX}, 2")
        A(f"s_add_u32 s{sT0}, s{sT0}, s{sT1}")
        A(f"s_lshl_b32 s{sT0}, s{sT0}, 16")
        A(f"s_lshl_b32 s{sT1}, s{sWAVE}, 8")
        A(f"s_add_u32 s{sXO}, s{sT0}, s{sT1}")
        A("v_lshrrev_b32 v11, 1, v2")
        A(f"v_mul_lo_u32 v11, v11, s{sWSTR}")
        A("v_and_b32 v12, 1, v2")
        A(f"v_mul_lo_u32 v12, v12, s{sL1}")
        A("v_add_u32 v11, v11, v12")
        A(f"s_lshl_b32 s{sT0}, s{sWAVE}, 2")
        A(f"s_and_b32 s{sT1}, s{sIDX}, 3")
        A(f"s_add_u32 s{sT0}, s{sT0}, s{sT1}")
        A(f"s_lshl_b32 s{sT0}, s{sT0}, 5")
        A(f"s_mul_i32 s{sT0}, s{sT0}, s{sWSTR}")
        A(f"s_lshl_b32 s{sT1}, s{sCOL}, 1")
        A(f"s_add_u32 s{sXO+1}, s{sT0}, s{sT1}")
        A(f"s_lshl_b32 s{sT0}, s{sWSTR}, 9")
        A(f"s_add_u32 s{sXO+2}, s{sXO+1}, s{sT0}")
    build_srds()
    if OPT["pf1"] == 1:
        A(f"buffer_load_dword v{VPF}, v10, s[{SX}:{SX+3}], s{sXO} offen {OPT['pfm1']}")
        A(f"buffer_load_dword v{VPF+1}, v11, s[{SW}:{SW+3}], s{sXO+1} offen {OPT['pfm1']}")
        A(f"buffer_load_dword v{VPF+2}, v10, s[{SX}:{SX+3}], s{sXO} offen offset:1024 {OPT['pfm1']}")
        A(f"buffer_load_dword v{VPF+3}, v11, s[{SW}:{SW+3}], s{sXO+2} offen {OPT['pfm1']}")
    A("v_bfe_u32 v5, v2, 1, 3")
    A(f"s_lshl_b32 s{sT0}, s{sWM}, 14")
    A(f"v_lshl_add_u32 v6, v3, 7, s{sT0}")
    for ks in range(4):
        A(f"v_add_u32 v7, {2*ks}, v4")
        A("v_xor_b32 v7, v7, v5")
        A(f"v_lshl_add_u32 v{XA+ks}, v7, 4, v6")
    A("v_bfe_u32 v5, v2, 2, 2")
    A("v_lshl_add_u32 v6, v4, 3, v5")
    A("v_bfe_u32 v7, v2, 4, 1")
    A("v_bfe_u32 v8, v2, 1, 1")
    A("v_lshl_add_u32 v7, v7, 1, v8")
    A("v_and_b32 v8, 1, v2")
    A("v_lshlrev_b32 v8, 3, v8")
    A("v_lshl_add_u32 v8, v6, 8, v8")
    for u in range(2):
        A(f"s_lshl_b32 s{sT0}, s{sWN}, 1")
        A(f"s_add_u32 s{sT0}, s{sT0}, {u}")
        A(f"v_xor_b32 v9, s{sT0}, v5")
        A("v_lshl_add_u32 v9, v9, 2, v7")
        A(f"v_lshl_add_u32 v{WA+u}, v9, 4, v8")
    A("v_bfe_u32 v7, v2, 4, 1")
    A("v_lshlrev_b32 v7, 5, v7")
    A("v_and_b32 v8, 3, v2")
    A("v_lshl_add_u32 v7, v8, 3, v7")
    A(f"v_lshl_add_u32 v{EA}, v6, 6, v7")
    A(f"s_cmp_eq_u32 s{sTYPE}, 2")
    A(f"s_cselect_b32 s{sT0}, 0, {hexf(EPS)}")
    A(f"s_cmp_eq_u32 s{sTYPE}, 0")
    A(f"s_cselect_b32 s{sT1}, {hexf(EPS)}, 0")
    for t in range(4):
        for r in range(16):
            A(f"v_mov_b32 v{ACC(t,0)+r}, s{sT0}")
            A(f"v_mov_b32 v{ACC(t,1)+r}, s{sT1}")
    for r in range(16):
        A(f"v_mov_b32 v{XACC+r}, 0")
    A(f"s_mov_b32 s{sSTG}, {K1_STAGE}")
    A(f"s_mov_b32 s{sBASE}, 0")
    A(f"s_mov_b32 s{sCNT}, 16")

    def reads(b, ks, extra):
        R = []
        R.append(f"ds_read_b128 {vr(FX(b,0),4)}, v{XA+ks} offset:0")
        for u in range(2):
            R.append(f"ds_read_b64_tr_b16 {vr(FW(b,u),2)}, v{WA+u} offset:{K1_WOFF+ks*4096}")
            R.append(f"ds_read_b64_tr_b16 {vr(FW(b,u)+2,2)}, v{WA+u} offset:{K1_WOFF+ks*4096+1024}")
        for t in range(1, 4):
            R.append(f"ds_read_b128 {vr(FX(b,t),4)}, v{XA+ks} offset:{t*4096}")
        if extra:
            R.append(f"ds_read_b64_tr_b16 {vr(FE(b),2)}, v{EA} offset:{K1_EOFF+ks*1024}")
            R.append(f"ds_read_b64_tr_b16 {vr(FE(b)+2,2)}, v{EA} offset:{K1_EOFF+ks*1024+256}")
        return R

    def mainloop(tag, transposed, extra):
        A.label(f"K1_ML{tag}")
        stamp(A, 1)
        A("s_barrier")
        stamp(A, 2)
        for r in reads(0, 0, extra): A(r)
        A.label(f"K1_LOOP{tag}")
        start = len(A.lines)
        for s in range(4):
            b = s & 1
            mf = []
            for t in range(4):
                for u in range(2):
                    mf.append(mfma32(ACC(t,u), FW(b,u), FX(b,t)) if transposed else mfma32(ACC(t,u), FX(b,t), FW(b,u)))
            if extra == "K": mf.append(mfma32(XACC, FE(b), FX(b,0)))
            if extra == "V": mf.append(mfma32(XACC, FX(b,0), FE(b)))
            fill = reads(b ^ 1, (s + 1) & 3, extra)
            post = []
            if s == 2:
                post = [f"s_add_u32 s{sBASE}, s{sBASE}, 1",
                        f"s_cmp_eq_u32 s{sBASE}, 3",
                        f"s_cselect_b32 s{sDELTA}, {-2*K1_STAGE & 0xffffffff}, s{sSTG}",
                        f"s_cselect_b32 s{sBASE}, 0, s{sBASE}"]
                post += [f"v_add_u32 v{XA+i}, s{sDELTA}, v{XA+i}" for i in range(7 if extra else 6)]
            if s == 3:
                post = [f"s_sub_u32 s{sCNT}, s{sCNT}, 1", f"s_cmp_lg_u32 s{sCNT}, 0"]
            A("s_waitcnt lgkmcnt(0)")
            for k, m in enumerate(mf):
                A(m)
                if s == 3 and k == 0: A("s_barrier")
                n = 2
                while n and fill:
                    A(fill.pop(0)); n -= 1
                if n == 2:
                    n = 4
                    while n and post:
                        A(post.pop(0)); n -= 1
            for p in post: A(p)
        A(f"s_cbranch_scc1 K1_LOOP{tag}")
        body = A.lines[start:]
        chk(body + body, f"k1 loop {tag}")
        stamp(A, 3)
        A("s_waitcnt lgkmcnt(0)")
        A("s_nop 15")

    VC1, VC2, VEPS = 4, 6, 8
    def consts():
        A(f"v_mov_b32 v{VC1}, {hexf(LOG2E)}")
        A(f"v_mov_b32 v{VC1+1}, {hexf(LOG2E)}")
        A(f"v_mov_b32 v{VC2}, {hexf(-EPS*LOG2E)}")
        A(f"v_mov_b32 v{VC2+1}, {hexf(-EPS*LOG2E)}")
        A(f"v_mov_b32 v{VEPS}, {hexf(EPS)}")
    TMP = 32
    def phi_tile(base):
        for i in range(8):
            A(f"v_pk_fma_f32 {vr(TMP+2*i,2)}, {vr(base+2*i,2)}, {vr(VC1,2)}, {vr(VC2,2)}")
        for i in range(16):
            A(f"v_exp_f32 v{TMP+i}, v{TMP+i} clamp")
            A(f"v_max_f32 v{base+i}, v{base+i}, v{VEPS}")
        for i in range(8):
            A(f"v_pk_add_f32 {vr(base+2*i,2)}, {vr(base+2*i,2)}, {vr(TMP+2*i,2)}")
        pack_tile(base)
    def pack_tile(base):
        for i in range(8):
            A(f"v_cvt_pk_bf16_f32 v{base+i}, v{base+2*i}, v{base+2*i+1}")

    def q_store_setup(wsoff, cbsub):
        A("v_lshlrev_b32 v3, 4, v2")
        A(f"s_sub_u32 s{sT1}, s{sCBG}, {cbsub}")
        A(f"s_lshl_b32 s{sT1}, s{sT1}, 1")
        A(f"s_add_u32 s{sT1}, s{sT1}, s{sWN}")
        A(f"s_lshl_b32 s{sT1}, s{sT1}, 12")
        A(f"s_add_u32 s{sT1}, s{sT1}, {wsoff}")
        A(f"s_lshl_b32 s{sXO+4}, s{sRB}, 1")
        A(f"s_add_u32 s{sXO+4}, s{sXO+4}, s{sWM}")
        A(f"s_lshl_b32 s{sXO+4}, s{sXO+4}, 2")
        for t in range(4):
            A(f"s_add_u32 s{sT0}, s{sROT}, {t}")
            A(f"s_and_b32 s{sT0}, s{sT0}, 3")
            A(f"s_add_u32 s{sT0}, s{sT0}, s{sXO+4}")
            if t == 0: A(f"s_mov_b32 s{sXO+5}, s{sT0}")
            A(f"s_lshl_b32 s{sT0}, s{sT0}, 16")
            A(f"s_add_u32 s{sXO+t}, s{sT0}, s{sT1}")
    def q_store(t, u):
        for half in range(2):
            A(f"buffer_store_dwordx4 {vr(ACC(t,u)+4*half,4)}, v3, s[{SWS}:{SWS+3}], s{sXO+t} offen offset:{u*2048+half*1024} {ST}")
    def fin():
        stamp(A, 4)
        if DIAG: A("s_waitcnt vmcnt(0)")
        stamp(A, 5)
        stamp_out(A, 0, SWS, sWAVE, 6)

    A(f"s_cmp_eq_u32 s{sTYPE}, 1")
    A("s_cbranch_scc1 K1_MLN")
    A(f"s_cmp_eq_u32 s{sTYPE}, 0")
    A("s_cbranch_scc1 K1_MLT")
    A(f"s_cmp_eq_u32 s{sWN}, 1")
    A("s_cbranch_scc1 K1_MLT")
    A(f"s_bitcmp1_b32 s{sCBG}, 0")
    A("s_cbranch_scc1 K1_MLTV")
    mainloop("TK", True, "K")
    A(f"v_mov_b32 v{VC1}, {hexf(KSCALE)}")
    A(f"v_mov_b32 v{VC1+1}, {hexf(KSCALE)}")
    for i in range(8):
        A(f"v_pk_mul_f32 {vr(XACC+2*i,2)}, {vr(XACC+2*i,2)}, {vr(VC1,2)}")
    A(f"s_mov_b32 s{sDELTA}, {WS_KV}")
    A("s_branch K1_EPX")
    mainloop("TV", True, "V")
    A(f"s_mov_b32 s{sDELTA}, {WS_KV + 2048}")
    A.label("K1_EPX")
    pack_tile(XACC)
    q_store_setup(WS_QB, 24)
    A(f"s_lshl_b32 s{sT0}, s{sXO+5}, 12")
    A(f"s_add_u32 s{sT0}, s{sT0}, s{sDELTA}")
    for half in range(2):
        A(f"buffer_store_dwordx4 {vr(XACC+4*half,4)}, v3, s[{SWS}:{SWS+3}], s{sT0} offen offset:{half*1024} {ST}")
    A("s_branch K1_EPQB2")
    mainloop("T", True, None)
    A(f"s_cmp_eq_u32 s{sTYPE}, 0")
    A("s_cbranch_scc1 K1_EPQA")
    q_store_setup(WS_QB, 24)
    A.label("K1_EPQB2")
    for t in range(4):
        for u in range(2):
            pack_tile(ACC(t,u))
            q_store(t, u)
    fin()
    A("s_endpgm")
    A.label("K1_EPQA")
    consts()
    q_store_setup(WS_QA, 0)
    for t in range(4):
        for u in range(2):
            phi_tile(ACC(t,u))
            q_store(t, u)
    fin()
    A("s_endpgm")
    mainloop("N", False, None)
    consts()
    ONES = 12
    KVD, ZD = 64, 80
    for i in range(4):
        A(f"v_mov_b32 v{ONES+i}, 0x3f803f80")
    for t in range(4):
        phi_tile(ACC(t,0))
        pack_tile(ACC(t,1))
        A("s_nop 1")
        for half in range(2):
            first = (t == 0 and half == 0)
            A(mfma32(KVD, ACC(t,0)+4*half, ACC(t,1)+4*half, "0" if first else None))
            A(mfma32(ZD, ONES, ACC(t,0)+4*half, "0" if first else None))
    A("v_lshlrev_b32 v3, 4, v2")
    A(f"s_lshl_b32 s{sT0}, s{sWN}, 13")
    A(f"v_add_u32 v5, s{sT0}, v3")
    A(f"s_sub_u32 s{sT0}, s{sCBG}, 8")
    A(f"s_lshl_b32 s{sT0}, s{sT0}, 1")
    A(f"s_add_u32 s{sT0}, s{sT0}, s{sWN}")
    A(f"s_lshl_b32 s{sXO}, s{sT0}, 3")
    A(f"s_add_u32 s{sXO}, s{sXO}, s{sRB}")
    A(f"s_lshl_b32 s{sXO}, s{sXO}, 12")
    A(f"s_add_u32 s{sXO}, s{sXO}, {WS_KVP}")
    A(f"s_lshl_b32 s{sXO+1}, s{sT0}, 10")
    A(f"s_lshl_b32 s{sT1}, s{sRB}, 2")
    A(f"s_add_u32 s{sXO+1}, s{sXO+1}, s{sT1}")
    A(f"s_add_u32 s{sXO+1}, s{sXO+1}, {WS_ZP}")
    A("v_and_b32 v4, 31, v2")
    A("v_lshlrev_b32 v4, 5, v4")
    A("s_nop 7")
    A(f"s_cmp_eq_u32 s{sWM}, 0")
    A("s_cbranch_scc1 K1_KVR")
    for q in range(4):
        A(f"ds_write_b128 v5, {vr(KVD+4*q,4)} offset:{q*1024}")
    A(f"ds_write_b32 v5, v{ZD} offset:4096")
    A("s_waitcnt lgkmcnt(0)")
    A("s_barrier")
    fin()
    A("s_endpgm")
    A.label("K1_KVR")
    A("s_barrier")
    for q in range(4):
        A(f"ds_read_b128 {vr(TMP+4*q,4)}, v5 offset:{q*1024}")
    A(f"ds_read_b32 v{TMP+16}, v5 offset:4096")
    A("s_waitcnt lgkmcnt(0)")
    for i in range(8):
        A(f"v_pk_add_f32 {vr(KVD+2*i,2)}, {vr(KVD+2*i,2)}, {vr(TMP+2*i,2)}")
    A(f"v_add_f32 v{ZD}, v{ZD}, v{TMP+16}")
    for q in range(4):
        A(f"buffer_store_dwordx4 {vr(KVD+4*q,4)}, v3, s[{SWS}:{SWS+3}], s{sXO} offen offset:{q*1024} {ST}")
    A(f"buffer_store_dword v{ZD}, v4, s[{SWS}:{SWS+3}], s{sXO+1} offen {ST}")
    fin()
    A.label("K1_END")
    A("s_endpgm")
    chk(A.lines, "k1")
    return header("proj_kernel") + A.text() + descriptor("proj_kernel", 240, 96)

K2_KVX = 131072
K2_ZX = K2_KVX + 2048
K2_LDS = K2_ZX + 64

def gen_k2():
    A = Asm()
    ST = OPT["st2"]
    SWS, SWO = 4, 8
    sWAVE, sH, sRB, sRT, sT0, sT1, sCNT, sM0, sGO, sQO, sHW = 20, 21, 22, 23, 24, 25, 26, 27, 28, 29, 32
    VL16, VCUR, VNXT = 1, 3, 4
    Q, ONES, KF, VF, P, K0 = [16, 128], 24, 28, 36, 44, 56
    L = [52, 136]
    S = [64, 80]
    O, NEGM = [96, 140], 112
    A("s_cmp_ge_u32 s2, 256")
    A("s_cbranch_scc1 K2_END")
    stamp(A, 0)
    A("s_load_dwordx2 s[52:53], s[0:1], 80")
    A("s_load_dwordx2 s[40:41], s[0:1], 16")
    A("s_load_dwordx2 s[44:45], s[0:1], 56")
    A("v_lshrrev_b32 v5, 6, v0")
    A("v_and_b32 v2, 63, v0")
    A(f"s_and_b32 s{sH}, s2, 31")
    A(f"s_lshr_b32 s{sRB}, s2, 5")
    A(f"v_readfirstlane_b32 s{sWAVE}, v5")
    A(f"v_lshlrev_b32 v{VL16}, 4, v2")
    A("v_lshrrev_b32 v7, 5, v2")
    A(f"s_lshl_b32 s{sRT}, s{sRB}, 3")
    A(f"s_cmp_ge_u32 s{sWAVE}, 8")
    A("s_cbranch_scc1 K2_HELP")
    sG = 33
    A(f"s_lshr_b32 s{sG}, s{sWAVE}, 2")
    A(f"s_and_b32 s{sT0}, s{sWAVE}, 3")
    A(f"s_lshl_b32 s{sT0}, s{sT0}, 1")
    A(f"s_add_u32 s{sRT}, s{sRT}, s{sT0}")
    A(f"s_add_u32 s{sRT}, s{sRT}, s{sG}")
    A(f"s_lshl_b32 s{sQO}, s{sRT}, 16")
    A(f"s_lshl_b32 s{sT0}, s{sH}, 11")
    A(f"s_add_u32 s{sQO}, s{sQO}, s{sT0}")
    A(f"s_add_u32 s{sT0}, s{sQO}, {WS_QB}")
    A(f"s_xor_b32 s{sGO}, s{sT0}, 65536")
    A(f"s_mov_b32 s{sT1}, {WS_KV}")
    A("s_waitcnt lgkmcnt(0)")
    srd(A, SWS, 52, WS_USED)
    for half in range(2):
        A(f"buffer_load_dwordx4 {vr(K0+4*half,4)}, v{VL16}, s[{SWS}:{SWS+3}], s{sT1} offen offset:{half*1024}")
        A(f"buffer_load_dwordx4 {vr(Q[0]+4*half,4)}, v{VL16}, s[{SWS}:{SWS+3}], s{sT0} offen offset:{half*1024}")
        A(f"buffer_load_dwordx4 {vr(Q[1]+4*half,4)}, v{VL16}, s[{SWS}:{SWS+3}], s{sGO} offen offset:{half*1024}")
    A("v_bfe_u32 v8, v2, 2, 1")
    A("v_bfe_u32 v9, v2, 4, 1")
    A("v_cmp_eq_u32 vcc, v8, v9")
    A("v_mov_b32 v8, 0x3f803f80")
    A(f"s_lshl_b32 s{sT0}, s{sG}, 14")
    A(f"v_add_u32 v{VCUR}, s{sT0}, v{VL16}")
    A(f"v_cndmask_b32 v{ONES}, 0, v8, vcc")
    for i in range(1, 4):
        A(f"v_mov_b32 v{ONES+i}, v{ONES}")
    for x in range(2):
        for i in range(16):
            A(f"v_mov_b32 v{O[x]+i}, 0")
        for i in range(4):
            A(f"v_mov_b32 v{L[x]+i}, 0")
    for i in range(4):
        A(f"v_mov_b32 v{VF+4+i}, 0")
        A(f"v_mov_b32 v{P+4+i}, 0")
    A(f"v_add_u32 v{VNXT}, 32768, v{VCUR}")
    A(f"s_mov_b32 s{sCNT}, 0")
    stamp(A, 1)
    A("s_waitcnt vmcnt(3)")
    A(mfma32(S[0], K0, Q[0], "0"))
    A(mfma32(S[1], K0, Q[1], "0"))
    A("s_waitcnt vmcnt(0)")
    A(mfma32(S[0], K0+4, Q[0]+4))
    A(mfma32(S[1], K0+4, Q[1]+4))
    stamp(A, 2)
    A("s_nop 10")
    A(f"v_max3_f32 v8, v{S[0]}, v{S[0]+1}, v{S[0]+2}")
    A(f"v_max3_f32 v9, v{S[0]+3}, v{S[0]+4}, v{S[0]+5}")
    for i in range(6, 30, 4):
        A(f"v_max3_f32 v8, v8, v{S[0]+i}, v{S[0]+i+1}")
        A(f"v_max3_f32 v9, v9, v{S[0]+i+2}, v{S[0]+i+3}")
    A(f"v_max3_f32 v8, v8, v{S[0]+30}, v{S[0]+31}")
    A("v_max_f32 v8, v8, v9")
    A("v_mov_b32 v9, v8")
    A("s_nop 1")
    A("v_permlane32_swap_b32 v8, v9")
    A("v_max_f32 v8, v8, v9")
    A("v_sub_f32 v8, 0, v8")
    for i in range(16):
        A(f"v_mov_b32 v{NEGM+i}, v8")
    A("s_barrier")
    A(f"ds_read_b128 {vr(KF,4)}, v{VCUR}")
    A(f"ds_read_b128 {vr(KF+4,4)}, v{VCUR} offset:1024")
    A(f"ds_read_b128 {vr(VF,4)}, v{VCUR} offset:2048")
    stamp(A, 3)
    A("s_waitcnt lgkmcnt(0)")
    A(mfma32(S[0], KF, Q[0], NEGM))
    A(mfma32(S[0], KF+4, Q[0]+4))
    for i in range(4):
        A(f"v_mov_b32 v{K0+i}, 0")
    A("s_nop 6")
    A(".p2align 3")
    A.label("K2_LOOP")
    start = len(A.lines)
    for st in range(8):
        jj, x = st >> 1, st & 1
        Sc, Sn = S[x], S[x ^ 1]
        E = lambda i: f"v_exp_f32 v{Sc+i}, v{Sc+i}"
        C = lambda i: f"v_cvt_pk_bf16_f32 v{P+i}, v{Sc+2*i}, v{Sc+2*i+1}"
        def addr(tile, part):
            if tile < 4: return f"v{VCUR} offset:{tile*4096+part*1024}"
            return f"v{VNXT} offset:{(tile-4)*4096+part*1024}"
        if OPT["k2sched"] == 0:
            if x == 1: A("s_waitcnt lgkmcnt(1)")
            A(mfma32(Sn, KF, Q[x^1], NEGM))
            A(E(0)); A(E(1)); A(E(2)); A(E(3))
            A(mfma32(Sn, KF+4, Q[x^1]+4))
            if st == 6 and not OPT["k2nobar"]:
                A("s_barrier")
            if x == 0:
                A(f"ds_read_b128 {vr(KF,4)}, {addr(jj+1,0)}")
                A(f"ds_read_b128 {vr(KF+4,4)}, {addr(jj+1,1)}")
            A(C(0)); A(C(1)); A(E(4)); A(E(5)); A(E(6))
            if x == 1: A("s_waitcnt lgkmcnt(0)")
            A(mfma32(O[x^1], VF+4, P+4))
            if x == 0: A(f"ds_read_b128 {vr(VF+4,4)}, {addr(jj,3)}")
            A(E(7)); A(C(2)); A(C(3)); A(E(8))
            A(mfma16(L[x^1], ONES, P+4))
            A(E(9)); A(E(10))
            if x == 0: A("s_waitcnt lgkmcnt(3)")
            A(mfma32(O[x], VF, P))
            if x == 1: A(f"ds_read_b128 {vr(VF,4)}, {addr(jj+1,2)}")
            A(E(11)); A(C(4)); A(C(5)); A(E(12))
            A(mfma16(L[x], ONES, P))
            if st == 7:
                A(f"s_add_u32 s{sCNT}, s{sCNT}, 1")
                A(f"s_cmp_lt_u32 s{sCNT}, 8")
            A(E(13)); A(E(14)); A(E(15)); A(C(6)); A(C(7))
        else:
            T = K0
            ET = lambda i: f"v_exp_f32 v{T+i-12}, v{Sc+i}"
            CT = lambda i: f"v_cvt_pk_bf16_f32 v{P+i}, v{T+2*(i-6)}, v{T+2*(i-6)+1}"
            rdK = [f"ds_read_b128 {vr(KF,4)}, {addr(jj+1,0)}", f"ds_read_b128 {vr(KF+4,4)}, {addr(jj+1,1)}"] if x == 0 else [None, None]
            rdV1 = f"ds_read_b128 {vr(VF+4,4)}, {addr(jj,3)}" if x == 0 else None
            rdV0 = f"ds_read_b128 {vr(VF,4)}, {addr(jj+1,2)}" if x == 1 else None
            bar = "s_barrier" if (st == 6 and not OPT["k2nobar"]) else None
            cnt = [f"s_add_u32 s{sCNT}, s{sCNT}, 1", f"s_cmp_lt_u32 s{sCNT}, 8"] if st == 7 else [None, None]
            if OPT["k2sched"] == 1:
                seq = [mfma32(Sn, KF, Q[x^1], NEGM), E(0), CT(6), E(1), CT(7), E(2),
                       mfma32(Sn, KF+4, Q[x^1]+4), bar, E(3), rdK[0], E(4), rdK[1], C(0), E(5),
                       "s_waitcnt lgkmcnt(0)" if x == 1 else None,
                       mfma32(O[x^1], VF+4, P+4), C(1), E(6), rdV1, E(7), C(2),
                       mfma16(L[x^1], ONES, P+4), C(3), E(8), E(9),
                       "s_waitcnt lgkmcnt(3)" if x == 0 else None,
                       mfma32(O[x], VF, P), E(10), rdV0, E(11), C(4), ET(12),
                       mfma16(L[x], ONES, P), ET(13), cnt[0], C(5), ET(14), cnt[1], ET(15),
                       "s_waitcnt lgkmcnt(1)" if x == 0 else None]
            else:
                seq = [mfma32(Sn, KF, Q[x^1], NEGM), bar, rdK[0], E(0), E(1), E(2), E(3),
                       mfma32(Sn, KF+4, Q[x^1]+4), rdK[1], "s_waitcnt lgkmcnt(0)" if x == 1 else None,
                       C(0), C(1), E(4), E(5), E(6),
                       mfma32(O[x^1], VF+4, P+4), rdV1, cnt[0], E(7), C(2), C(3), E(8),
                       mfma16(L[x^1], ONES, P+4), "s_waitcnt lgkmcnt(3)" if x == 0 else None, cnt[1], E(9), E(10),
                       mfma32(O[x], VF, P), rdV0, E(11), C(4), C(5), E(12),
                       mfma16(L[x], ONES, P), "s_waitcnt lgkmcnt(1)" if x == 0 else None,
                       E(13), E(14), E(15), C(6), C(7)]
            for ins in seq:
                if ins: A(ins)
    A(f"v_mov_b32 v{VCUR}, v{VNXT}")
    A(f"v_add_u32 v{VNXT}, 32768, v{VNXT}")
    A(f"v_and_b32 v{VNXT}, 0x1ffff, v{VNXT}")
    A("s_cbranch_scc1 K2_LOOP")
    body = A.lines[start:]
    chk(body + body, "k2 loop")
    stamp(A, 4)
    if OPT["k2sched"] == 1:
        A(f"v_cvt_pk_bf16_f32 v{P+6}, v{K0}, v{K0+1}")
        A(f"v_cvt_pk_bf16_f32 v{P+7}, v{K0+2}, v{K0+3}")
        A("s_nop 1")
    A(mfma32(O[1], VF+4, P+4))
    A(mfma16(L[1], ONES, P+4))
    XB = 32768
    A(f"s_mul_i32 s{sT0}, s{sWAVE}, 5120")
    A(f"s_xor_b32 s{sT1}, s{sWAVE}, 4")
    A(f"s_mul_i32 s{sT1}, s{sT1}, 5120")
    A(f"v_add_u32 v8, s{sT0}, v{VL16}")
    A(f"v_add_u32 v9, s{sT1}, v{VL16}")
    A(f"s_add_u32 s{sT0}, s{sQO}, {WS_OB}")
    A(f"v_mov_b32 v10, {hexf(2.0**120)}")
    A(f"v_mov_b32 v11, {hexf(2.0**60)}")
    A(f"v_mov_b32 v12, {hexf(2.0**-60)}")
    A("s_nop 3")
    for q in range(4):
        A(f"ds_write_b128 v8, {vr(O[1]+4*q,4)} offset:{XB+q*1024}")
    A(f"ds_write_b32 v8, v{L[1]} offset:{XB+4096}")
    A("s_waitcnt lgkmcnt(0)")
    A("s_barrier")
    for q in range(4):
        A(f"ds_read_b128 {vr(S[0]+4*q,4)}, v9 offset:{XB+q*1024}")
    A(f"ds_read_b32 v{S[1]}, v9 offset:{XB+4096}")
    A("s_waitcnt lgkmcnt(0)")
    O, L, Q = O[0], L[0], Q[0]
    A(f"v_add_f32 v{L}, v{L}, v{S[1]}")
    for i in range(8):
        A(f"v_pk_add_f32 {vr(O+2*i,2)}, {vr(O+2*i,2)}, {vr(S[0]+2*i,2)}")
    A(f"v_cmp_nlt_f32 vcc, v{L}, v11")
    A(f"v_cmp_nge_f32 s[34:35], v{L}, v12")
    A(f"v_add_f32 v8, |v{O}|, |v{O+1}|")
    A(f"v_add_f32 v9, |v{O+2}|, |v{O+3}|")
    for i in range(4, 16, 2):
        A(f"v_add_f32 v8, v8, |v{O+i}|")
        A(f"v_add_f32 v9, v9, |v{O+i+1}|")
    A("v_add_f32 v8, v8, v9")
    A("v_cmp_nlt_f32 s[30:31], v8, v10")
    A("s_or_b64 vcc, vcc, s[34:35]")
    A("s_nop 1")
    A("s_or_b64 vcc, vcc, s[30:31]")
    A("s_cbranch_vccnz K2_SLOW")
    A.label("K2_FIN")
    A(f"v_rcp_f32 v8, v{L}")
    A("s_nop 0")
    A("v_mov_b32 v9, v8")
    for i in range(8):
        A(f"v_pk_mul_f32 {vr(O+2*i,2)}, {vr(O+2*i,2)}, v[8:9]")
    for i in range(8):
        A(f"v_cvt_pk_bf16_f32 v{O+i}, v{O+2*i}, v{O+2*i+1}")
    for half in range(2):
        A(f"buffer_store_dwordx4 {vr(O+4*half,4)}, v{VL16}, s[{SWS}:{SWS+3}], s{sT0} offen offset:{half*1024} {ST}")
    if DIAG: A("s_waitcnt vmcnt(0)")
    stamp(A, 5)
    stamp_out(A, 1, SWS, sWAVE, 6, 160)
    A.label("K2_END")
    A("s_endpgm")

    A.label("K2_HELP")
    KVP, ZP, PQ, KVA, ZA, NUM, DEN, VPF = 16, 48, 52, 68, 76, 84, 100, 116
    BAR = (lambda: None) if OPT["k2nobar"] else (lambda: A("s_barrier"))
    A(f"s_setprio {OPT['k2prio']}")
    A(f"s_sub_u32 s{sHW}, s{sWAVE}, 8")
    A(f"s_lshl_b32 s{sM0}, s{sHW}, 13")
    A(f"s_add_u32 s{sGO}, s{sM0}, {WS_KV}")
    A(f"s_lshl_b32 s{sT0}, s{sHW}, 1")
    A(f"s_add_u32 s{sRT}, s{sRT}, s{sT0}")
    A(f"s_lshl_b32 s{sQO}, s{sRT}, 16")
    A(f"s_lshl_b32 s{sT0}, s{sH}, 11")
    A(f"s_add_u32 s{sQO}, s{sQO}, s{sT0}")
    A("s_waitcnt lgkmcnt(0)")
    srd(A, SWS, 52, WS_USED)
    def dma_chunk():
        for g in range(2):
            A(f"s_add_u32 m0, s{sM0}, {g*4096}")
            if g: A(f"s_add_u32 s{sGO}, s{sGO}, 4096")
            else: A("s_nop 0")
            for n in range(4):
                A(f"buffer_load_dwordx4 v{VL16}, s[{SWS}:{SWS+3}], s{sGO} offen offset:{n*1024} lds")
        A(f"s_add_u32 s{sGO}, s{sGO}, {32768-4096}")
        A(f"s_add_u32 s{sM0}, s{sM0}, 32768")
        A(f"s_and_b32 s{sM0}, s{sM0}, 0x1ffff")
    dma_chunk()
    A("s_cmp_ge_u32 s2, 128")
    A("s_cselect_b64 s[54:55], s[44:45], s[40:41]")
    srd(A, SWO, 54, 2 << 20)
    stamp(A, 1)
    A("s_waitcnt vmcnt(0)")
    stamp(A, 2)
    A("s_barrier")
    dma_chunk()
    A(f"s_lshl_b32 s{sT0}, s{sH}, 15")
    A(f"s_lshl_b32 s{sT1}, s{sHW}, 10")
    A(f"s_add_u32 s{sT0}, s{sT0}, s{sT1}")
    A(f"s_add_u32 s{sT0}, s{sT0}, {WS_KVP}")
    for p in range(8):
        A(f"buffer_load_dwordx4 {vr(KVP+4*p,4)}, v{VL16}, s[{SWS}:{SWS+3}], s{sT0} offen")
        if p < 7: A(f"s_add_u32 s{sT0}, s{sT0}, 4096")
    A("v_and_b32 v6, 31, v2")
    A("v_lshlrev_b32 v6, 5, v6")
    A("v_lshl_add_u32 v6, v7, 4, v6")
    A(f"s_lshl_b32 s{sT0}, s{sH}, 10")
    A(f"s_add_u32 s{sT0}, s{sT0}, {WS_ZP}")
    A(f"buffer_load_dwordx4 {vr(ZP,4)}, v6, s[{SWS}:{SWS+3}], s{sT0} offen")
    A(f"s_add_u32 s{sT0}, s{sQO}, {WS_QA}")
    A(f"s_add_u32 s{sT1}, s{sT0}, 65536")
    for r in range(2):
        for half in range(2):
            A(f"buffer_load_dwordx4 {vr(PQ+8*r+4*half,4)}, v{VL16}, s[{SWS}:{SWS+3}], s{sT0+r} offen offset:{half*1024}")
    A("s_waitcnt vmcnt(13)")
    BAR()
    dma_chunk()
    A("s_waitcnt vmcnt(8)")
    n = 8
    while n > 1:
        n //= 2
        for i in range(n):
            for hf in range(2):
                A(f"v_pk_add_f32 {vr(KVP+4*i+2*hf,2)}, {vr(KVP+4*i+2*hf,2)}, {vr(KVP+4*(i+n)+2*hf,2)}")
    A(f"s_lshr_b32 s{sT0}, s{sHW}, 1")
    A(f"s_lshl_b32 s{sT0}, s{sT0}, 10")
    A(f"s_and_b32 s{sT1}, s{sHW}, 1")
    A(f"s_lshl_b32 s{sT1}, s{sT1}, 3")
    A(f"s_add_u32 s{sT0}, s{sT0}, s{sT1}")
    A(f"s_add_u32 s{sT0}, s{sT0}, {K2_KVX}")
    A(f"v_add_u32 v8, s{sT0}, v{VL16}")
    A(f"v_cvt_pk_bf16_f32 v{KVP}, v{KVP}, v{KVP+1}")
    A(f"v_cvt_pk_bf16_f32 v{KVP+1}, v{KVP+2}, v{KVP+3}")
    A(f"ds_write_b64 v8, {vr(KVP,2)}")
    A(f"s_cmp_eq_u32 s{sHW}, 0")
    A("s_cbranch_scc0 K2_NOZ")
    A(f"v_pk_add_f32 {vr(ZP,2)}, {vr(ZP,2)}, {vr(ZP+2,2)}")
    A("v_and_b32 v9, 31, v2")
    A(f"v_add_f32 v{ZP}, v{ZP}, v{ZP+1}")
    A("v_lshlrev_b32 v9, 1, v9")
    A(f"v_mov_b32 v{ZP+1}, v{ZP}")
    A(f"v_add_u32 v9, {K2_ZX}, v9")
    A("s_nop 0")
    A(f"v_permlane32_swap_b32 v{ZP}, v{ZP+1}")
    A(f"v_add_f32 v{ZP}, v{ZP}, v{ZP+1}")
    A(f"v_cvt_pk_bf16_f32 v{ZP}, v{ZP}, v{ZP}")
    A(f"ds_write_b16 v9, v{ZP}")
    A.label("K2_NOZ")
    dma_chunk()
    A("s_waitcnt vmcnt(8) lgkmcnt(0)")
    BAR()
    dma_chunk()
    A("v_lshlrev_b32 v10, 3, v7")
    A(f"v_add_u32 v10, {K2_ZX}, v10")
    A(f"v_add_u32 v11, {K2_KVX}, v{VL16}")
    A(f"ds_read2_b64 {vr(ZA,4)}, v10 offset0:0 offset1:2")
    A(f"ds_read2_b64 {vr(ZA+4,4)}, v10 offset0:4 offset1:6")
    A(f"ds_read_b128 {vr(KVA,4)}, v11")
    A(f"ds_read_b128 {vr(KVA+4,4)}, v11 offset:1024")
    A(f"s_add_u32 s{sT0}, s{sQO}, {WS_OA}")
    A(f"s_add_u32 s{sT1}, s{sT0}, 65536")
    A("s_waitcnt lgkmcnt(0)")
    NUMS, DENS = [NUM, 16], [DEN, 32]
    for r in range(2):
        A(mfma32(DENS[r], ZA, PQ+8*r, "0"))
        A(mfma32(DENS[r], ZA+4, PQ+8*r+4))
        A(mfma32(NUMS[r], KVA, PQ+8*r, "0"))
        A(mfma32(NUMS[r], KVA+4, PQ+8*r+4))
    A("s_nop 7")
    for r in range(2):
        N_ = NUMS[r]
        A(f"v_add_f32 v8, {hexf(EPS)}, v{DENS[r]}")
        A("v_rcp_f32 v8, v8")
        A("s_nop 0")
        A("v_mov_b32 v9, v8")
        for i in range(8):
            A(f"v_pk_mul_f32 {vr(N_+2*i,2)}, {vr(N_+2*i,2)}, v[8:9]")
        for i in range(8):
            A(f"v_cvt_pk_bf16_f32 v{N_+i}, v{N_+2*i}, v{N_+2*i+1}")
        for half in range(2):
            A(f"buffer_store_dwordx4 {vr(N_+4*half,4)}, v{VL16}, s[{SWS}:{SWS+3}], s{sT0+r} offen offset:{half*1024} {ST}")
    A("s_waitcnt vmcnt(12)")
    BAR()
    dma_chunk()
    A("v_lshlrev_b32 v8, 7, v2")
    A(f"s_and_b32 s{sT0}, s2, 127")
    A(f"s_lshl_b32 s{sT0}, s{sT0}, 1")
    A(f"s_add_u32 s{sT0}, s{sT0}, s{sHW}")
    A(f"s_lshl_b32 s{sT0}, s{sT0}, 13")
    A(f"s_cmp_lt_u32 s{sHW}, {2 if OPT['pf2'] else 0}")
    A(f"s_cselect_b32 s{sT0}, s{sT0}, 0x40000000")
    A(f"buffer_load_dword v{VPF}, v8, s[{SWO}:{SWO+3}], s{sT0} offen {OPT['pfm2']}")
    A("s_waitcnt vmcnt(9)")
    BAR()
    dma_chunk()
    A("s_waitcnt vmcnt(9)")
    BAR()
    dma_chunk()
    A("s_waitcnt vmcnt(8)")
    BAR()
    A("s_waitcnt vmcnt(0)")
    BAR()
    stamp(A, 3)
    stamp_out(A, 1, SWS, sWAVE, 4, 160)
    A("s_endpgm")
    A.label("K2_SLOW")
    A(f"v_mov_b32 v8, 0xff800000")
    A(f"s_mov_b32 s{sT1}, {WS_KV}")
    A(f"s_mov_b32 s{sCNT}, 0")
    A.label("K2_SLOW1")
    A(f"buffer_load_dwordx4 {vr(KF,4)}, v{VL16}, s[{SWS}:{SWS+3}], s{sT1} offen")
    A(f"buffer_load_dwordx4 {vr(KF+4,4)}, v{VL16}, s[{SWS}:{SWS+3}], s{sT1} offen offset:1024")
    A("s_waitcnt vmcnt(0)")
    A(mfma32(S[0], KF, Q, "0"))
    A(mfma32(S[0], KF+4, Q+4))
    A("s_nop 15")
    for i in range(0, 16, 2):
        A(f"v_max3_f32 v8, v8, v{S[0]+i}, v{S[0]+i+1}")
    A(f"s_add_u32 s{sT1}, s{sT1}, 4096")
    A(f"s_add_u32 s{sCNT}, s{sCNT}, 1")
    A(f"s_cmp_lt_u32 s{sCNT}, 64")
    A("s_cbranch_scc1 K2_SLOW1")
    A("v_mov_b32 v9, v8")
    A("s_nop 1")
    A("v_permlane32_swap_b32 v8, v9")
    A("v_max_f32 v8, v8, v9")
    A("v_sub_f32 v8, 0, v8")
    for i in range(16):
        A(f"v_mov_b32 v{NEGM+i}, v8")
        A(f"v_mov_b32 v{O+i}, 0")
    for i in range(4):
        A(f"v_mov_b32 v{L+i}, 0")
    A(f"s_mov_b32 s{sT1}, {WS_KV}")
    A(f"s_mov_b32 s{sCNT}, 0")
    A.label("K2_SLOW2")
    for i in range(2):
        A(f"buffer_load_dwordx4 {vr(KF+4*i,4)}, v{VL16}, s[{SWS}:{SWS+3}], s{sT1} offen offset:{1024*i}")
        A(f"buffer_load_dwordx4 {vr(VF+4*i,4)}, v{VL16}, s[{SWS}:{SWS+3}], s{sT1} offen offset:{2048+1024*i}")
    A("s_waitcnt vmcnt(0)")
    A(mfma32(S[0], KF, Q, NEGM))
    A(mfma32(S[0], KF+4, Q+4))
    A("s_nop 15")
    for i in range(16):
        A(f"v_exp_f32 v{S[0]+i}, v{S[0]+i}")
    A("s_nop 0")
    for i in range(8):
        A(f"v_cvt_pk_bf16_f32 v{P+i}, v{S[0]+2*i}, v{S[0]+2*i+1}")
    A("s_nop 1")
    A(mfma32(O, VF, P))
    A(mfma16(L, ONES, P))
    A(mfma32(O, VF+4, P+4))
    A(mfma16(L, ONES, P+4))
    A("s_nop 15")
    A(f"s_add_u32 s{sT1}, s{sT1}, 4096")
    A(f"s_add_u32 s{sCNT}, s{sCNT}, 1")
    A(f"s_cmp_lt_u32 s{sCNT}, 64")
    A("s_cbranch_scc1 K2_SLOW2")
    A("s_branch K2_FIN")
    chk(A.lines, "k2")
    return header("attn_kernel") + A.text() + descriptor("attn_kernel", 156, 64, 168)

K3_STAGE = 32768
K3_NB = 5
K3_WOFF = 16384
K3_LDS = K3_NB * K3_STAGE

def gen_k3():
    A = Asm()
    ST = OPT["st3"]
    SO, SW, SOUT = 4, 8, 12
    sXCD, sIDX, sWAVE, sRB, sCB, sT0, sW4, sT1, sBR = 20, 21, 22, 23, 24, 25, 26, 27, 28
    sBASE, sCNT, sDELTA, sAO = 34, 35, 36, 37
    sWO, sSTG = 60, 72
    A("s_cmp_ge_u32 s2, 256")
    A("s_cbranch_scc1 K3_END")
    stamp(A, 0)
    A("s_load_dwordx2 s[40:41], s[0:1], 16")
    A("s_load_dwordx4 s[44:47], s[0:1], 56")
    A("s_load_dwordx2 s[52:53], s[0:1], 80")
    A("v_lshrrev_b32 v1, 6, v0")
    A("v_and_b32 v2, 63, v0")
    A(f"s_and_b32 s{sXCD}, s2, 7")
    A(f"s_lshr_b32 s{sIDX}, s2, 3")
    A(f"v_readfirstlane_b32 s{sWAVE}, v1")
    A(f"s_lshr_b32 s{sBR}, s{sXCD}, 2")
    A(f"s_and_b32 s{sRB}, s{sXCD}, 1")
    A(f"s_lshl_b32 s{sRB}, s{sRB}, 3")
    A(f"s_and_b32 s{sT0}, s{sIDX}, 7")
    A(f"s_add_u32 s{sRB}, s{sRB}, s{sT0}")
    A(f"s_bfe_u32 s{sCB}, s{sXCD}, 0x10001")
    A(f"s_lshl_b32 s{sCB}, s{sCB}, 2")
    A(f"s_lshr_b32 s{sT0}, s{sIDX}, 3")
    A(f"s_add_u32 s{sCB}, s{sCB}, s{sT0}")
    def build_srds():
        A("s_waitcnt lgkmcnt(0)")
        A(f"s_cmp_eq_u32 s{sBR}, 1")
        A("s_cselect_b64 s[54:55], s[44:45], s[40:41]")
        srd(A, SO, 52, WS_USED)
        srd(A, SW, 54, 2 << 20)
        srd(A, SOUT, 46, 8 << 20)
    A(f"s_cmp_lt_u32 s{sWAVE}, 4")
    A("s_cbranch_scc1 K3_COMPUTE")
    VA, VW = 3, 6
    A(f"s_sub_u32 s{sW4}, s{sWAVE}, 4")
    A(f"v_lshlrev_b32 v{VA}, 4, v2")
    A(f"s_lshl_b32 s{sAO}, s{sRB}, 2")
    A(f"s_add_u32 s{sAO}, s{sAO}, s{sW4}")
    A(f"s_lshl_b32 s{sAO}, s{sAO}, 16")
    A(f"s_lshl_b32 s{sT0}, s{sBR}, 22")
    A(f"s_add_u32 s{sAO}, s{sAO}, s{sT0}")
    A(f"s_add_u32 s{sAO}, s{sAO}, {WS_OA}")
    A("v_lshrrev_b32 v4, 4, v2")
    A("v_and_b32 v5, 15, v2")
    A("v_lshlrev_b32 v8, 2, v4")
    A("v_xor_b32 v5, v5, v8")
    A("v_lshlrev_b32 v4, 11, v4")
    A(f"v_lshl_add_u32 v{VW}, v5, 4, v4")
    A(f"s_lshl_b32 s{sT0}, s{sCB}, 8")
    A(f"v_add_u32 v{VW}, s{sT0}, v{VW}")
    A(f"s_lshl_b32 s{sWO}, s{sW4}, 13")
    for n in range(1, 4):
        A(f"s_add_u32 s{sWO+n}, s{sWO}, {n*16*2048}")
    A(f"s_mov_b32 s{sBASE}, 0")
    A(f"s_lshl_b32 s{sT0}, s{sW4}, 12")
    A(f"s_lshl_b32 s{sT1}, s{sW4}, 10")
    A(f"s_add_u32 s{sT1}, s{sT1}, {K3_WOFF}")
    build_srds()
    def issue():
        A(f"s_add_u32 m0, s{sBASE}, s{sT0}")
        A(f"s_add_u32 s{sDELTA}, s{sBASE}, s{sT1}")
        for n in range(4):
            A(f"buffer_load_dwordx4 v{VA}, s[{SO}:{SO+3}], s{sAO} offen offset:{n*1024} lds")
        for n in range(4):
            A(f"s_add_u32 m0, s{sDELTA}, {n*4096}")
            A("s_nop 0")
            A(f"buffer_load_dwordx4 v{VW}, s[{SW}:{SW+3}], s{sWO+n} offen lds")
        A(f"s_add_u32 s{sAO}, s{sAO}, 4096")
        A(f"v_add_u32 v{VW}, {64*2048}, v{VW}")
        A(f"s_add_u32 s{sBASE}, s{sBASE}, {K3_STAGE}")
        A(f"s_cmp_ge_u32 s{sBASE}, {K3_LDS}")
        A(f"s_cselect_b32 s{sBASE}, 0, s{sBASE}")
    n = 8
    A(f"s_mov_b32 s{sCNT}, 0")
    tl_init(A)
    A("s_branch K3_LIN")
    A.label("K3_LLOOP")
    tl_pre(A)
    A(f"s_cmp_ge_u32 s{sCNT}, 6")
    A("s_cbranch_scc1 K3_LW24")
    A(f"s_cmp_eq_u32 s{sCNT}, 4")
    A("s_cbranch_scc1 K3_LW16")
    A(f"s_cmp_eq_u32 s{sCNT}, 2")
    A("s_cbranch_scc0 K3_LIN")
    A("s_waitcnt vmcnt(8)")
    A.label("K3_LW16")
    A("s_waitcnt vmcnt(16)")
    A.label("K3_LW24")
    A("s_waitcnt vmcnt(24)")
    tl_mid(A)
    A("s_barrier")
    tl_post(A)
    A.label("K3_LIN")
    issue()
    A(f"s_add_u32 s{sCNT}, s{sCNT}, 1")
    A(f"s_cmp_lt_u32 s{sCNT}, 16")
    A("s_cbranch_scc1 K3_LLOOP")
    for i in (3, 2, 1, 0):
        tl_pre(A)
        A(f"s_waitcnt vmcnt({i*n})")
        tl_mid(A)
        A("s_barrier")
        tl_post(A)
    tl_out(A, 1, SO, sWAVE)
    stamp(A, 1)
    stamp_out(A, 2, SO, sWAVE, 2)
    A("s_endpgm")
    A.label("K3_COMPUTE")
    AA, WA, VPF = 16, 17, 20
    FB = [32, 48]
    FA = lambda b, t: FB[b] + 4 * t
    FW = lambda b, u: FB[b] + 8 + 4 * u
    ACC = lambda t, u: 64 + 16 * (2 * t + u)
    sWM, sWN = 38, 39
    A(f"s_lshr_b32 s{sWM}, s{sWAVE}, 1")
    A(f"s_and_b32 s{sWN}, s{sWAVE}, 1")
    if OPT["pf3"]:
        A("v_lshlrev_b32 v10, 7, v2")
        A(f"s_lshl_b32 s{sAO}, s{sRB}, 2")
        A(f"s_and_b32 s{sT0}, s{sCB}, 3")
        A(f"s_add_u32 s{sAO}, s{sAO}, s{sT0}")
        A(f"s_lshl_b32 s{sAO}, s{sAO}, 16")
        A(f"s_lshl_b32 s{sT0}, s{sBR}, 22")
        A(f"s_add_u32 s{sAO}, s{sAO}, s{sT0}")
        A(f"s_lshl_b32 s{sT0}, s{sWAVE}, 13")
        A(f"s_add_u32 s{sAO}, s{sAO}, s{sT0}")
        A(f"s_add_u32 s{sAO}, s{sAO}, {WS_OA}")
        A(f"s_add_u32 s{sT1}, s{sAO}, 32768")
    build_srds()
    if OPT["pf3"]:
        A(f"buffer_load_dword v{VPF}, v10, s[{SO}:{SO+3}], s{sAO} offen")
        A(f"buffer_load_dword v{VPF+1}, v10, s[{SO}:{SO+3}], s{sT1} offen")
    A(f"s_lshl_b32 s{sT0}, s{sWM}, 13")
    A(f"v_lshl_add_u32 v{AA}, v2, 4, s{sT0}")
    A("v_lshrrev_b32 v4, 5, v2")
    A("v_bfe_u32 v5, v2, 2, 2")
    A("v_lshl_add_u32 v6, v4, 2, v5")
    A("v_bfe_u32 v7, v2, 4, 1")
    A("v_bfe_u32 v8, v2, 1, 1")
    A("v_lshl_add_u32 v7, v7, 1, v8")
    A("v_and_b32 v8, 1, v2")
    A("v_lshlrev_b32 v8, 3, v8")
    A("v_lshl_add_u32 v8, v6, 8, v8")
    for u in range(2):
        A(f"s_lshl_b32 s{sT0}, s{sWN}, 1")
        A(f"s_add_u32 s{sT0}, s{sT0}, {u}")
        A(f"v_xor_b32 v9, s{sT0}, v5")
        A("v_lshl_add_u32 v9, v9, 2, v7")
        A(f"v_lshl_add_u32 v{WA+u}, v9, 4, v8")
    for r in range(64):
        A(f"v_mov_b32 v{64+r}, 0")
    A(f"s_mov_b32 s{sSTG}, {K3_STAGE}")
    A(f"s_mov_b32 s{sBASE}, 0")
    A(f"s_mov_b32 s{sCNT}, 16")
    RS = 144
    VEW, VER, VEG = 24, 25, 26
    A(f"s_mul_i32 s{sT0}, s{sWAVE}, {64*RS}")
    A("v_and_b32 v3, 31, v2")
    A(f"v_mul_u32_u24 v3, {RS}, v3")
    A("v_lshl_add_u32 v3, v4, 3, v3")
    A(f"v_add_u32 v{VEW}, s{sT0}, v3")
    A("v_lshrrev_b32 v3, 3, v2")
    A("v_and_b32 v5, 7, v2")
    A(f"v_mul_u32_u24 v6, {RS}, v3")
    A("v_lshl_add_u32 v6, v5, 4, v6")
    A(f"v_add_u32 v{VER}, s{sT0}, v6")
    A("v_lshlrev_b32 v3, 12, v3")
    A(f"v_lshl_add_u32 v{VEG}, v5, 4, v3")
    A(f"s_lshl_b32 s{sT0}, s{sRB}, 1")
    A(f"s_add_u32 s{sT0}, s{sT0}, s{sWM}")
    A(f"s_lshl_b32 s{sT0}, s{sT0}, 18")
    A(f"s_lshl_b32 s{sT1}, s{sBR}, 3")
    A(f"s_add_u32 s{sT1}, s{sT1}, s{sCB}")
    A(f"s_lshl_b32 s{sT1}, s{sT1}, 1")
    A(f"s_add_u32 s{sT1}, s{sT1}, s{sWN}")
    A(f"s_lshl_b32 s{sT1}, s{sT1}, 7")
    A(f"s_add_u32 s{sWO}, s{sT0}, s{sT1}")
    def reads(b, ks):
        R = [f"ds_read_b128 {vr(FA(b,0),4)}, v{AA} offset:{ks*1024}"]
        for u in range(2):
            R.append(f"ds_read_b64_tr_b16 {vr(FW(b,u),2)}, v{WA+u} offset:{K3_WOFF+ks*4096}")
            R.append(f"ds_read_b64_tr_b16 {vr(FW(b,u)+2,2)}, v{WA+u} offset:{K3_WOFF+ks*4096+2048}")
        R.append(f"ds_read_b128 {vr(FA(b,1),4)}, v{AA} offset:{4096+ks*1024}")
        return R
    stamp(A, 1)
    A("s_barrier")
    stamp(A, 2)
    for r in reads(0, 0): A(r)
    A.label("K3_LOOP")
    start = len(A.lines)
    for s in range(4):
        b = s & 1
        mf = [mfma32(ACC(t,u), FW(b,u), FA(b,t)) for t in range(2) for u in range(2)]
        fill = reads(b ^ 1, (s + 1) & 3)
        post = []
        if s == 1:
            post = [f"s_add_u32 s{sBASE}, s{sBASE}, 1",
                    f"s_cmp_eq_u32 s{sBASE}, {K3_NB}",
                    f"s_cselect_b32 s{sDELTA}, {-(K3_NB-1)*K3_STAGE & 0xffffffff}, s{sSTG}",
                    f"s_cselect_b32 s{sBASE}, 0, s{sBASE}"]
        if s == 2:
            post = [f"v_add_u32 v{AA+i}, s{sDELTA}, v{AA+i}" for i in range(3)]
        if s == 3:
            post = [f"s_sub_u32 s{sCNT}, s{sCNT}, 1", f"s_cmp_lg_u32 s{sCNT}, 0"]
        A("s_waitcnt lgkmcnt(0)")
        for k, m in enumerate(mf):
            A(m)
            if s == 3 and k == 0: A("s_barrier")
            n = 3
            while n and fill:
                A(fill.pop(0)); n -= 1
            if n == 3:
                while post: A(post.pop(0))
    A("s_cbranch_scc1 K3_LOOP")
    body = A.lines[start:]
    chk(body + body, "k3 loop")
    stamp(A, 3)
    A("s_waitcnt lgkmcnt(0)")
    A("s_nop 7")
    for t in range(2):
        for u in range(2):
            b = ACC(t,u)
            for g in range(4):
                A(f"v_cvt_pk_bf16_f32 v{b+4*g}, v{b+4*g}, v{b+4*g+1}")
                A(f"v_cvt_pk_bf16_f32 v{b+4*g+1}, v{b+4*g+2}, v{b+4*g+3}")
                A(f"ds_write_b64 v{VEW}, {vr(b+4*g,2)} offset:{t*32*RS + u*64 + g*16}")
    A("s_waitcnt lgkmcnt(0)")
    for i in range(8):
        A(f"ds_read_b128 {vr(32+4*i,4)}, v{VER} offset:{i*8*RS}")
    for i in range(8):
        A(f"s_waitcnt lgkmcnt({7-i})")
        A(f"buffer_store_dwordx4 {vr(32+4*i,4)}, v{VEG}, s[{SOUT}:{SOUT+3}], s{sWO} offen {ST}")
        if i < 7: A(f"s_add_u32 s{sWO}, s{sWO}, {8*4096}")
    stamp(A, 4)
    if DIAG: A("s_waitcnt vmcnt(0)")
    stamp(A, 5)
    stamp_out(A, 2, SO, sWAVE, 6)
    A.label("K3_END")
    A("s_endpgm")
    chk(A.lines, "k3")
    return header("out_kernel") + A.text() + descriptor("out_kernel", 128, 96)

def main():
    pos = [a for a in sys.argv[1:] if not a.startswith("--") and "=" not in a]
    out = pos[0] if pos else f"cdna_kernels/{KNAME}.s"
    ref = open(f"cdna_kernels/{KNAME}.s.ref").read().split("\n")
    head = [l for l in ref if l.startswith(";") and "@launch" not in l and "Override" not in l and "grid=ceil" not in l]
    head.append(f"; @launch kernel=proj_kernel grid=(256,1,1) block=(512,1,1) lds={K1_LDS}")
    head.append(f"; @launch kernel=attn_kernel grid=(256,1,1) block=(768,1,1) lds={K2_LDS}")
    head.append(f"; @launch kernel=out_kernel grid=(256,1,1) block=(512,1,1) lds={K3_LDS}")
    txt = "\n".join(head) + '\n.amdgcn_target "amdgcn-amd-amdhsa--gfx950"\n' + gen_k1() + gen_k2() + gen_k3()
    open(out, "w").write(txt)
    seen = set()
    for p in PROBS:
        if p not in seen:
            print("HAZARD", p); seen.add(p)
    print("written", out, len(txt))
main()
```

```python
import sys, math, os
from asmlib import *

KNAME = "concat_heads__linear_attn_block__grouped_kv_mqa__prompt"
OPT = dict(st1="sc1", st2="sc1", st3="sc1", pf1=3, remap=1, pf2=1, pf3=0, ld1="", pfm1="", pfm2="", k2nobar=0, k2prio=2, k2sched=2)
for a in sys.argv[1:]:
    if "=" in a:
        k, v = a.lstrip("-").split("=", 1)
        OPT[k] = int(v) if v.lstrip("-").isdigit() else v.replace("+", " ")
DIAG = "--diag" in sys.argv

WS_QA = 0
WS_QB = 4 << 20
WS_OA = 8 << 20
WS_OB = 12 << 20
WS_KV = 16 << 20
WS_KVP = WS_KV + (256 << 10)
WS_ZP = WS_KVP + (1 << 20)
WS_USED = WS_ZP + (32 << 10)
WS_DIAG = 24 << 20
if DIAG: WS_USED = WS_DIAG + (2 << 20)

LOG2E = 1.4426950408889634
KSCALE = (32 ** -0.5) * LOG2E
EPS = 1e-6

def stamp(A, i):
    if not DIAG: return
    A(f"s_memtime s[{76+2*i}:{77+2*i}]")
    if i == 0: A("s_memrealtime s[92:93]")
def stamp_out(A, kidx, srdreg, swave, nst, vb=250):
    if not DIAG: return
    A("s_memrealtime s[94:95]")
    A("s_getreg_b32 s96, hwreg(HW_REG_XCC_ID)")
    A("s_waitcnt lgkmcnt(0)")
    A(f"v_mov_b32 v{vb+1}, 0")
    for i in range(nst):
        A(f"v_writelane_b32 v{vb+1}, s{76+2*i}, {i}")
    A("s_and_b32 s96, s96, 15")
    for i, r in ((8, 92), (9, 94), (10, 96), (11, 28)):
        A(f"v_writelane_b32 v{vb+1}, s{r}, {i}")
    A(f"v_and_b32 v{vb}, 63, v0")
    A("s_lshl_b32 s97, s2, 4")
    A(f"s_add_u32 s97, s97, s{swave}")
    A("s_lshl_b32 s97, s97, 6")
    A(f"s_add_u32 s97, s97, {WS_DIAG + kidx * 256 * 16 * 64}")
    A(f"v_lshlrev_b32 v{vb}, 2, v{vb}")
    A(f"v_cmp_gt_u32 vcc, 64, v{vb}")
    A("s_and_saveexec_b64 s[98:99], vcc")
    A(f"buffer_store_dword v{vb+1}, v{vb}, s[{srdreg}:{srdreg+3}], s97 offen")
    A("s_mov_b64 exec, s[98:99]")
def tl_init(A):
    if not DIAG: return
    A("v_mov_b32 v30, 0")
    A("v_mov_b32 v31, 0")
    A("s_mov_b32 s100, 0")
def tl_pre(A):
    if not DIAG: return
    A("s_memtime s[90:91]")
    A("s_waitcnt lgkmcnt(0)")
    A("s_sub_u32 s90, s90, s76")
    A("s_mov_b32 m0, s100")
    A("s_nop 0")
    A("v_writelane_b32 v31, s90, m0")
def tl_mid(A):
    if not DIAG: return
    A("s_memtime s[90:91]")
    A("s_waitcnt lgkmcnt(0)")
    A("s_sub_u32 s90, s90, s76")
    A("s_add_u32 m0, s100, 32")
    A("s_nop 0")
    A("v_writelane_b32 v31, s90, m0")
def tl_post(A):
    if not DIAG: return
    A("s_memtime s[90:91]")
    A("s_waitcnt lgkmcnt(0)")
    A("s_sub_u32 s90, s90, s76")
    A("s_mov_b32 m0, s100")
    A("s_nop 0")
    A("v_writelane_b32 v30, s90, m0")
    A("s_add_u32 s100, s100, 1")
def tl_out(A, kidx, srdreg, swave):
    if not DIAG: return
    A("v_and_b32 v250, 63, v0")
    A("v_lshlrev_b32 v250, 3, v250")
    A("s_lshl_b32 s97, s2, 9")
    A(f"s_add_u32 s97, s97, {WS_DIAG + (1024 << 10) + kidx * 256 * 512}")
    A(f"s_cmp_eq_u32 s{swave}, 4")
    A(f"s_cselect_b32 s97, s97, 0x40000000")
    A(f"buffer_store_dwordx2 v[30:31], v250, s[{srdreg}:{srdreg+3}], s97 offen")
PROBS = []
def chk(lines, name):
    PROBS.extend(check_hazards(lines, name))

def mfma32(d, a, b, c=None):
    cs = vr(d, 16) if c is None else (vr(c, 16) if isinstance(c, int) else c)
    return f"v_mfma_f32_32x32x16_bf16 {vr(d,16)}, {vr(a,4)}, {vr(b,4)}, {cs}"
def mfma16(d, a, b, c=None):
    cs = vr(d, 4) if c is None else (vr(c, 4) if isinstance(c, int) else c)
    return f"v_mfma_f32_16x16x32_bf16 {vr(d,4)}, {vr(a,4)}, {vr(b,4)}, {cs}"

def srd(A, dst, lo, nbytes):
    A(f"s_mov_b32 s{dst}, s{lo}")
    A(f"s_and_b32 s{dst+1}, s{lo+1}, 0xffff")
    A(f"s_mov_b32 s{dst+2}, {nbytes}")
    A(f"s_mov_b32 s{dst+3}, 0x20000")

def descriptor(name, nv, ns, dnv=256):
    if DIAG: nv, ns = dnv, 102
    return f"""
.section .rodata,"a"
.p2align 6
.amdhsa_kernel {name}
  .amdhsa_next_free_vgpr {nv}
  .amdhsa_next_free_sgpr {ns}
  .amdhsa_accum_offset {(nv+3)//4*4}
  .amdhsa_group_segment_fixed_size 0
  .amdhsa_kernarg_size 88
  .amdhsa_user_sgpr_count 2
  .amdhsa_user_sgpr_kernarg_segment_ptr 1
  .amdhsa_system_sgpr_workgroup_id_x 1
.end_amdhsa_kernel
"""

def header(name):
    return f""".text
.globl {name}
.p2align 8
.type {name},@function
{name}:
"""

K1_STAGE = 53248
K1_WOFF = 32768
K1_EOFF = 49152
K1_LDS = 3 * K1_STAGE

def gen_k1():
    A = Asm()
    ST = OPT["st1"]
    SX, SW, SE, SWS = 4, 8, 12, 16
    sXCD, sIDX, sWAVE, sRB, sCBG, sT0, sW4, sT1 = 20, 21, 22, 23, 24, 25, 26, 27
    sTYPE, sCOL, sS1, sS2, sWSTR, sROT, sBASE, sCNT, sDELTA, sWADV = 28, 29, 30, 31, 32, 33, 34, 35, 36, 37
    sXO, sWO, sSTG, sL1 = 60, 68, 72, 73
    A("s_cmp_ge_u32 s2, 256")
    A("s_cbranch_scc1 K1_END")
    stamp(A, 0)
    A("s_load_dwordx4 s[40:43], s[0:1], 0")
    A("s_load_dwordx4 s[44:47], s[0:1], 24")
    A("s_load_dwordx4 s[48:51], s[0:1], 40")
    A("s_load_dwordx2 s[52:53], s[0:1], 80")
    A("v_lshrrev_b32 v1, 6, v0")
    A("v_and_b32 v2, 63, v0")
    A(f"s_and_b32 s{sXCD}, s2, 7")
    A(f"s_lshr_b32 s{sIDX}, s2, 3")
    A(f"v_readfirstlane_b32 s{sWAVE}, v1")
    A(f"s_and_b32 s{sRB}, s{sXCD}, 1")
    A(f"s_lshl_b32 s{sRB}, s{sRB}, 2")
    A(f"s_and_b32 s{sT0}, s{sIDX}, 3")
    A(f"s_add_u32 s{sRB}, s{sRB}, s{sT0}")
    A(f"s_lshr_b32 s{sCBG}, s{sXCD}, 1")
    if OPT["remap"]:
        A(f"s_add_u32 s{sCBG}, s{sCBG}, 3")
        A(f"s_and_b32 s{sCBG}, s{sCBG}, 3")
    A(f"s_lshl_b32 s{sCBG}, s{sCBG}, 3")
    A(f"s_lshr_b32 s{sT0}, s{sIDX}, 2")
    A(f"s_add_u32 s{sCBG}, s{sCBG}, s{sT0}")
    A(f"s_mov_b32 s{sTYPE}, 0")
    A(f"s_lshl_b32 s{sCOL}, s{sCBG}, 7")
    A(f"s_mov_b32 s{sS1}, 32")
    A(f"s_mov_b32 s{sS2}, 64")
    A(f"s_mov_b32 s{sL1}, 128")
    A(f"s_mov_b32 s{sWSTR}, 6144")
    A(f"s_mov_b32 s{sROT}, 0")
    A(f"s_cmp_lt_u32 s{sCBG}, 8")
    A("s_cbranch_scc1 K1_TYPED")
    A(f"s_cmp_lt_u32 s{sCBG}, 24")
    A("s_cbranch_scc0 K1_TYPEB")
    A(f"s_mov_b32 s{sTYPE}, 1")
    A(f"s_lshl_b32 s{sCOL}, s{sCBG}, 6")
    A(f"s_add_u32 s{sCOL}, s{sCOL}, {1024 - 8*64}")
    A(f"s_mov_b32 s{sS1}, 1024")
    A(f"s_mov_b32 s{sS2}, 32")
    A(f"s_mov_b32 s{sL1}, 2048")
    A("s_branch K1_TYPED")
    A.label("K1_TYPEB")
    A(f"s_mov_b32 s{sTYPE}, 2")
    A(f"s_sub_u32 s{sCOL}, s{sCOL}, {24*128}")
    A(f"s_mov_b32 s{sWSTR}, 2048")
    A(f"s_lshr_b32 s{sROT}, s{sCBG}, 1")
    A(f"s_and_b32 s{sROT}, s{sROT}, 3")
    A.label("K1_TYPED")
    def build_srds():
        A("s_waitcnt lgkmcnt(0)")
        A(f"s_cmp_eq_u32 s{sTYPE}, 2")
        A("s_cselect_b64 s[54:55], s[44:45], s[40:41]")
        A("s_cselect_b64 s[56:57], s[46:47], s[42:43]")
        A(f"s_bitcmp1_b32 s{sCBG}, 0")
        A("s_cselect_b64 s[58:59], s[50:51], s[48:49]")
        srd(A, SX, 54, 4 << 20)
        A(f"s_mov_b32 s{SW}, s56")
        A(f"s_and_b32 s{SW+1}, s57, 0xffff")
        A(f"s_lshl_b32 s{SW+2}, s{sWSTR}, 10")
        A(f"s_mov_b32 s{SW+3}, 0x20000")
        srd(A, SE, 58, 65536)
        srd(A, SWS, 52, WS_USED)
    A(f"s_cmp_lt_u32 s{sWAVE}, 4")
    A("s_cbranch_scc1 K1_COMPUTE")

    VX, VW, VE = 3, 6, 7
    A(f"s_sub_u32 s{sW4}, s{sWAVE}, 4")
    A("v_lshrrev_b32 v4, 4, v2")
    A(f"s_lshl_b32 s{sT0}, s{sW4}, 2")
    A(f"v_add_u32 v4, s{sT0}, v4")
    A("v_and_b32 v4, 7, v4")
    A("v_and_b32 v5, 7, v2")
    A("v_xor_b32 v4, v4, v5")
    A("v_lshlrev_b32 v4, 4, v4")
    A("v_lshrrev_b32 v5, 3, v2")
    A("v_lshlrev_b32 v5, 11, v5")
    A(f"v_add_u32 v{VX}, v4, v5")
    A(f"s_lshl_b32 s{sT1}, s{sRB}, 5")
    A(f"s_add_u32 s{sT1}, s{sT1}, s{sW4}")
    A(f"s_lshl_b32 s{sT1}, s{sT1}, 14")
    for n in range(4):
        A(f"s_add_u32 s{sT0}, s{sROT}, {n}")
        A(f"s_and_b32 s{sT0}, s{sT0}, 3")
        A(f"s_lshl_b32 s{sT0}, s{sT0}, 16")
        A(f"s_add_u32 s{sXO+n}, s{sT0}, s{sT1}")
        A(f"s_add_u32 s{sXO+n+4}, s{sXO+n}, {4<<16}")
    A("v_lshrrev_b32 v4, 4, v2")
    A("v_and_b32 v5, 15, v2")
    A("v_lshlrev_b32 v8, 2, v4")
    A("v_xor_b32 v5, v5, v8")
    A(f"v_mul_lo_u32 v{VW}, v4, s{sWSTR}")
    A("v_and_b32 v8, 3, v5")
    A("v_lshlrev_b32 v8, 4, v8")
    A(f"v_add_u32 v{VW}, v{VW}, v8")
    A("v_bfe_u32 v8, v5, 2, 1")
    A(f"v_mul_lo_u32 v8, v8, s{sS1}")
    A("v_bfe_u32 v9, v5, 3, 1")
    A(f"v_mul_lo_u32 v9, v9, s{sS2}")
    A(f"v_add3_u32 v8, v8, v9, s{sCOL}")
    A(f"v_lshl_add_u32 v{VW}, v8, 1, v{VW}")
    A(f"s_lshl_b32 s{sT0}, s{sW4}, 2")
    A(f"s_mul_i32 s{sWO}, s{sT0}, s{sWSTR}")
    A(f"s_lshl_b32 s{sT0}, s{sWSTR}, 4")
    for n in range(1, 4):
        A(f"s_add_u32 s{sWO+n}, s{sWO+n-1}, s{sT0}")
    A(f"s_lshl_b32 s{sWADV}, s{sWSTR}, 6")
    A(f"s_lshl_b32 s{sT0}, s{sW4}, 10")
    A(f"v_lshl_add_u32 v{VE}, v2, 4, s{sT0}")
    A(f"s_mov_b32 s{sBASE}, s{sT0}")
    A(f"s_add_u32 s{sT1}, s{sT0}, {3*K1_STAGE}")
    PF = OPT["pf1"] in (2, 3)
    SPF, VPFA, VPFD, sPFO, sPFA, sT2, sT3, sPFG, sPFC = 44, 10, 11, 74, 75, 38, 39, 30, 31
    if OPT["pf1"] == 3:
        A(f"s_bfe_u32 s{sPFG}, s2, 0x20003")
        A(f"s_lshr_b32 s{sT2}, s2, 5")
        A(f"s_lshl_b32 s{sT2}, s{sT2}, 3")
        A(f"s_add_u32 s{sT2}, s{sT2}, s{sXCD}")
        A(f"s_cmp_lt_u32 s{sW4}, 2")
        A("s_cbranch_scc0 K1_PFW")
        A("v_lshrrev_b32 v4, 1, v2")
        A(f"v_lshlrev_b32 v{VPFA}, 11, v4")
        A("v_and_b32 v4, 1, v2")
        A(f"v_lshl_add_u32 v{VPFA}, v4, 7, v{VPFA}")
        A(f"s_lshl_b32 s{sPFO}, s{sT2}, 16")
        A(f"s_mov_b32 s{sPFA}, 256")
        A(f"s_mov_b32 s{sPFC}, s{sW4}")
        A("s_branch K1_PFD")
        A.label("K1_PFW")
        A(f"v_lshlrev_b32 v{VPFA}, 7, v2")
        A(f"s_lshl_b32 s{sT2}, s{sT2}, 1")
        A(f"s_add_u32 s{sT2}, s{sT2}, s{sW4}")
        A(f"s_sub_u32 s{sT2}, s{sT2}, 2")
        A(f"s_sub_u32 s{sT3}, s{sT2}, 96")
        A(f"s_cmp_lt_u32 s{sT2}, 96")
        A(f"s_cselect_b32 s{sT2}, s{sT2}, s{sT3}")
        A(f"s_cselect_b32 s{sPFC}, 2, 3")
        A(f"s_cselect_b32 s{sPFA}, 3, 1")
        A(f"s_lshl_b32 s{sPFA}, s{sPFA}, 18")
        A(f"s_lshl_b32 s{sPFO}, s{sT2}, 13")
        A.label("K1_PFD")
        A(f"s_add_u32 s{sPFO}, s{sPFO}, s{sPFA}")
    build_srds()
    if OPT["pf1"] == 3:
        A(f"s_bitcmp1_b32 s{sPFC}, 0")
        A("s_cselect_b64 s[54:55], s[44:45], s[40:41]")
        A("s_cselect_b64 s[56:57], s[46:47], s[42:43]")
        A(f"s_cselect_b32 s{sT2}, 2, 6")
        A(f"s_bitcmp1_b32 s{sPFC}, 1")
        A("s_cselect_b64 s[54:55], s[56:57], s[54:55]")
        A(f"s_cselect_b32 s{sT2}, s{sT2}, 4")
        A(f"s_mov_b32 s{SPF}, s54")
        A(f"s_and_b32 s{SPF+1}, s55, 0xffff")
        A(f"s_lshl_b32 s{SPF+2}, s{sT2}, 20")
        A(f"s_mov_b32 s{SPF+3}, 0x20000")
    def issue(isB):
        seq = []
        for n in range(8):
            seq.append((n * 4096, f"buffer_load_dwordx4 v{VX}, s[{SX}:{SX+3}], s{sXO+n} offen {OPT['ld1']} lds"))
        for n in range(4):
            seq.append((K1_WOFF + n * 4096, f"buffer_load_dwordx4 v{VW}, s[{SW}:{SW+3}], s{sWO+n} offen {OPT['ld1']} lds"))
        order = [0, 8, 1, 2, 9, 3, 4, 10, 5, 6, 11, 7]
        seq = [seq[i] for i in order]
        if isB:
            seq.insert(2, (K1_EOFF, f"buffer_load_dwordx4 v{VE}, s[{SE}:{SE+3}], 0 offen lds"))
        for off, ins in seq:
            A(f"s_add_u32 m0, s{sBASE}, {off}")
            A("s_nop 0")
            A(ins)
        if PF:
            A(f"s_and_b32 s{sT2}, s{sCNT}, 3")
            A(f"s_cmp_eq_u32 s{sT2}, s{sPFG}")
            A(f"s_cselect_b32 s{sT2}, s{sPFO}, 0x40000000")
            A(f"s_cmp_lt_u32 s{sCNT}, 7")
            A(f"s_cselect_b32 s{sT2}, s{sT2}, 0x40000000")
            A(f"buffer_load_dword v{VPFD}, v{VPFA}, s[{SPF}:{SPF+3}], s{sT2} offen {OPT['pfm1']}")
            A(f"s_add_u32 s{sPFO}, s{sPFO}, s{sPFA}")
        A(f"v_add_u32 v{VX}, 128, v{VX}")
        A(f"v_add_u32 v{VW}, s{sWADV}, v{VW}")
        if isB:
            A(f"v_add_u32 v{VE}, 4096, v{VE}")
        A(f"s_add_u32 s{sBASE}, s{sBASE}, {K1_STAGE}")
        A(f"s_cmp_ge_u32 s{sBASE}, s{sT1}")
        A(f"s_cselect_b32 s{sBASE}, s{sT0}, s{sBASE}")
    A(f"s_cmp_eq_u32 s{sTYPE}, 2")
    A("s_cbranch_scc1 K1_LOADB")
    for isB in (False, True):
        n = 13 if isB else 12
        tag = "B" if isB else "A"
        if isB: A.label("K1_LOADB")
        A(f"s_mov_b32 s{sCNT}, 0")
        tl_init(A)
        A(f"s_branch K1_LIN{tag}")
        A.label(f"K1_LLOOP{tag}")
        A(f"s_cmp_lt_u32 s{sCNT}, 2")
        A(f"s_cbranch_scc1 K1_LIN{tag}")
        tl_pre(A)
        A(f"s_waitcnt vmcnt({n+2 if PF else n})")
        tl_mid(A)
        A("s_barrier")
        tl_post(A)
        A.label(f"K1_LIN{tag}")
        issue(isB)
        A(f"s_add_u32 s{sCNT}, s{sCNT}, 1")
        A(f"s_cmp_lt_u32 s{sCNT}, 16")
        A(f"s_cbranch_scc1 K1_LLOOP{tag}")
        tl_pre(A)
        A(f"s_waitcnt vmcnt({n+2 if PF else n})")
        tl_mid(A)
        A("s_barrier")
        tl_post(A)
        tl_pre(A)
        A("s_waitcnt vmcnt(0)")
        tl_mid(A)
        A("s_barrier")
        tl_post(A)
        tl_out(A, 0, SWS, sWAVE)
        stamp(A, 1)
        stamp_out(A, 0, SWS, sWAVE, 2)
        A("s_endpgm")

    A.label("K1_COMPUTE")
    XA, WA, EA = 16, 20, 22
    VPF = 24
    FB = [32, 60]
    FX = lambda b, t: FB[b] + 4 * t
    FW = lambda b, u: FB[b] + 16 + 4 * u
    FE = lambda b: FB[b] + 24
    XACC = 96
    ACC = lambda t, u: 112 + 16 * (2 * t + u)
    sWM, sWN = 38, 39
    A(f"s_lshr_b32 s{sWM}, s{sWAVE}, 1")
    A(f"s_and_b32 s{sWN}, s{sWAVE}, 1")
    A("v_and_b32 v3, 31, v2")
    A("v_lshrrev_b32 v4, 5, v2")
    build_srds()
    if OPT["pf1"] == 3:
        A("v_lshlrev_b32 v10, 7, v2")
        A(f"s_lshl_b32 s{sT0}, s{sRB}, 13")
        A(f"s_cmp_eq_u32 s{sTYPE}, 2")
        A(f"s_cselect_b32 s{sT0}, s{sT0}, 0x40000000")
        A(f"s_cmp_eq_u32 s{sWAVE}, 0")
        A(f"s_cselect_b32 s{sT0}, s{sT0}, 0x40000000")
        A(f"buffer_load_dword v{VPF}, v10, s[{SE}:{SE+3}], s{sT0} offen")
    A("v_bfe_u32 v5, v2, 1, 3")
    A(f"s_lshl_b32 s{sT0}, s{sWM}, 14")
    A(f"v_lshl_add_u32 v6, v3, 7, s{sT0}")
    for ks in range(4):
        A(f"v_add_u32 v7, {2*ks}, v4")
        A("v_xor_b32 v7, v7, v5")
        A(f"v_lshl_add_u32 v{XA+ks}, v7, 4, v6")
    A("v_bfe_u32 v5, v2, 2, 2")
    A("v_lshl_add_u32 v6, v4, 3, v5")
    A("v_bfe_u32 v7, v2, 4, 1")
    A("v_bfe_u32 v8, v2, 1, 1")
    A("v_lshl_add_u32 v7, v7, 1, v8")
    A("v_and_b32 v8, 1, v2")
    A("v_lshlrev_b32 v8, 3, v8")
    A("v_lshl_add_u32 v8, v6, 8, v8")
    for u in range(2):
        A(f"s_lshl_b32 s{sT0}, s{sWN}, 1")
        A(f"s_add_u32 s{sT0}, s{sT0}, {u}")
        A(f"v_xor_b32 v9, s{sT0}, v5")
        A("v_lshl_add_u32 v9, v9, 2, v7")
        A(f"v_lshl_add_u32 v{WA+u}, v9, 4, v8")
    A("v_bfe_u32 v7, v2, 4, 1")
    A("v_lshlrev_b32 v7, 5, v7")
    A("v_and_b32 v8, 3, v2")
    A("v_lshl_add_u32 v7, v8, 3, v7")
    A(f"v_lshl_add_u32 v{EA}, v6, 6, v7")
    A(f"s_cmp_eq_u32 s{sTYPE}, 2")
    A(f"s_cselect_b32 s{sT0}, 0, {hexf(EPS)}")
    A(f"s_cmp_eq_u32 s{sTYPE}, 0")
    A(f"s_cselect_b32 s{sT1}, {hexf(EPS)}, 0")
    for t in range(4):
        for r in range(16):
            A(f"v_mov_b32 v{ACC(t,0)+r}, s{sT0}")
            A(f"v_mov_b32 v{ACC(t,1)+r}, s{sT1}")
    for r in range(16):
        A(f"v_mov_b32 v{XACC+r}, 0")
    A(f"s_mov_b32 s{sSTG}, {K1_STAGE}")
    A(f"s_mov_b32 s{sBASE}, 0")
    A(f"s_mov_b32 s{sCNT}, 16")

    def reads(b, ks, extra):
        R = []
        R.append(f"ds_read_b128 {vr(FX(b,0),4)}, v{XA+ks} offset:0")
        for u in range(2):
            R.append(f"ds_read_b64_tr_b16 {vr(FW(b,u),2)}, v{WA+u} offset:{K1_WOFF+ks*4096}")
            R.append(f"ds_read_b64_tr_b16 {vr(FW(b,u)+2,2)}, v{WA+u} offset:{K1_WOFF+ks*4096+1024}")
        for t in range(1, 4):
            R.append(f"ds_read_b128 {vr(FX(b,t),4)}, v{XA+ks} offset:{t*4096}")
        if extra:
            R.append(f"ds_read_b64_tr_b16 {vr(FE(b),2)}, v{EA} offset:{K1_EOFF+ks*1024}")
            R.append(f"ds_read_b64_tr_b16 {vr(FE(b)+2,2)}, v{EA} offset:{K1_EOFF+ks*1024+256}")
        return R

    def mainloop(tag, transposed, extra):
        A.label(f"K1_ML{tag}")
        stamp(A, 1)
        A("s_barrier")
        stamp(A, 2)
        for r in reads(0, 0, extra): A(r)
        A.label(f"K1_LOOP{tag}")
        start = len(A.lines)
        for s in range(4):
            b = s & 1
            mf = []
            for t in range(4):
                for u in range(2):
                    mf.append(mfma32(ACC(t,u), FW(b,u), FX(b,t)) if transposed else mfma32(ACC(t,u), FX(b,t), FW(b,u)))
            if extra == "K": mf.append(mfma32(XACC, FE(b), FX(b,0)))
            if extra == "V": mf.append(mfma32(XACC, FX(b,0), FE(b)))
            fill = reads(b ^ 1, (s + 1) & 3, extra)
            post = []
            if s == 2:
                post = [f"s_add_u32 s{sBASE}, s{sBASE}, 1",
                        f"s_cmp_eq_u32 s{sBASE}, 3",
                        f"s_cselect_b32 s{sDELTA}, {-2*K1_STAGE & 0xffffffff}, s{sSTG}",
                        f"s_cselect_b32 s{sBASE}, 0, s{sBASE}"]
                post += [f"v_add_u32 v{XA+i}, s{sDELTA}, v{XA+i}" for i in range(7 if extra else 6)]
            if s == 3:
                post = [f"s_sub_u32 s{sCNT}, s{sCNT}, 1", f"s_cmp_lg_u32 s{sCNT}, 0"]
            A("s_waitcnt lgkmcnt(0)")
            for k, m in enumerate(mf):
                A(m)
                if s == 3 and k == 0: A("s_barrier")
                n = 2
                while n and fill:
                    A(fill.pop(0)); n -= 1
                if n == 2:
                    n = 4
                    while n and post:
                        A(post.pop(0)); n -= 1
            for p in post: A(p)
        A(f"s_cbranch_scc1 K1_LOOP{tag}")
        body = A.lines[start:]
        chk(body + body, f"k1 loop {tag}")
        stamp(A, 3)
        A("s_waitcnt lgkmcnt(0)")
        A("s_nop 15")

    VC1, VC2, VEPS = 4, 6, 8
    def consts():
        A(f"v_mov_b32 v{VC1}, {hexf(LOG2E)}")
        A(f"v_mov_b32 v{VC1+1}, {hexf(LOG2E)}")
        A(f"v_mov_b32 v{VC2}, {hexf(-EPS*LOG2E)}")
        A(f"v_mov_b32 v{VC2+1}, {hexf(-EPS*LOG2E)}")
        A(f"v_mov_b32 v{VEPS}, {hexf(EPS)}")
    TMP = 32
    def phi_tile(base):
        for i in range(8):
            A(f"v_pk_fma_f32 {vr(TMP+2*i,2)}, {vr(base+2*i,2)}, {vr(VC1,2)}, {vr(VC2,2)}")
        for i in range(16):
            A(f"v_exp_f32 v{TMP+i}, v{TMP+i} clamp")
            A(f"v_max_f32 v{base+i}, v{base+i}, v{VEPS}")
        for i in range(8):
            A(f"v_pk_add_f32 {vr(base+2*i,2)}, {vr(base+2*i,2)}, {vr(TMP+2*i,2)}")
        pack_tile(base)
    def pack_tile(base):
        for i in range(8):
            A(f"v_cvt_pk_bf16_f32 v{base+i}, v{base+2*i}, v{base+2*i+1}")

    def q_store_setup(wsoff, cbsub):
        A("v_lshlrev_b32 v3, 4, v2")
        A(f"s_sub_u32 s{sT1}, s{sCBG}, {cbsub}")
        A(f"s_lshl_b32 s{sT1}, s{sT1}, 1")
        A(f"s_add_u32 s{sT1}, s{sT1}, s{sWN}")
        A(f"s_lshl_b32 s{sT1}, s{sT1}, 12")
        A(f"s_add_u32 s{sT1}, s{sT1}, {wsoff}")
        A(f"s_lshl_b32 s{sXO+4}, s{sRB}, 1")
        A(f"s_add_u32 s{sXO+4}, s{sXO+4}, s{sWM}")
        A(f"s_lshl_b32 s{sXO+4}, s{sXO+4}, 2")
        for t in range(4):
            A(f"s_add_u32 s{sT0}, s{sROT}, {t}")
            A(f"s_and_b32 s{sT0}, s{sT0}, 3")
            A(f"s_add_u32 s{sT0}, s{sT0}, s{sXO+4}")
            if t == 0: A(f"s_mov_b32 s{sXO+5}, s{sT0}")
            A(f"s_lshl_b32 s{sT0}, s{sT0}, 16")
            A(f"s_add_u32 s{sXO+t}, s{sT0}, s{sT1}")
    def q_store(t, u):
        for half in range(2):
            A(f"buffer_store_dwordx4 {vr(ACC(t,u)+4*half,4)}, v3, s[{SWS}:{SWS+3}], s{sXO+t} offen offset:{u*2048+half*1024} {ST}")
    def fin():
        stamp(A, 4)
        if DIAG: A("s_waitcnt vmcnt(0)")
        stamp(A, 5)
        stamp_out(A, 0, SWS, sWAVE, 6)

    A(f"s_cmp_eq_u32 s{sTYPE}, 1")
    A("s_cbranch_scc1 K1_MLN")
    A(f"s_cmp_eq_u32 s{sTYPE}, 0")
    A("s_cbranch_scc1 K1_MLT")
    A(f"s_cmp_eq_u32 s{sWN}, 1")
    A("s_cbranch_scc1 K1_MLT")
    A(f"s_bitcmp1_b32 s{sCBG}, 0")
    A("s_cbranch_scc1 K1_MLTV")
    mainloop("TK", True, "K")
    A(f"v_mov_b32 v{VC1}, {hexf(KSCALE)}")
    A(f"v_mov_b32 v{VC1+1}, {hexf(KSCALE)}")
    for i in range(8):
        A(f"v_pk_mul_f32 {vr(XACC+2*i,2)}, {vr(XACC+2*i,2)}, {vr(VC1,2)}")
    A(f"s_mov_b32 s{sDELTA}, {WS_KV}")
    A("s_branch K1_EPX")
    mainloop("TV", True, "V")
    A(f"s_mov_b32 s{sDELTA}, {WS_KV + 2048}")
    A.label("K1_EPX")
    pack_tile(XACC)
    q_store_setup(WS_QB, 24)
    A(f"s_lshl_b32 s{sT0}, s{sXO+5}, 12")
    A(f"s_add_u32 s{sT0}, s{sT0}, s{sDELTA}")
    for half in range(2):
        A(f"buffer_store_dwordx4 {vr(XACC+4*half,4)}, v3, s[{SWS}:{SWS+3}], s{sT0} offen offset:{half*1024} {ST}")
    A("s_branch K1_EPQB2")
    mainloop("T", True, None)
    A(f"s_cmp_eq_u32 s{sTYPE}, 0")
    A("s_cbranch_scc1 K1_EPQA")
    q_store_setup(WS_QB, 24)
    A.label("K1_EPQB2")
    for t in range(4):
        for u in range(2):
            pack_tile(ACC(t,u))
            q_store(t, u)
    fin()
    A("s_endpgm")
    A.label("K1_EPQA")
    consts()
    q_store_setup(WS_QA, 0)
    for t in range(4):
        for u in range(2):
            phi_tile(ACC(t,u))
            q_store(t, u)
    fin()
    A("s_endpgm")
    mainloop("N", False, None)
    consts()
    ONES = 12
    KVD, ZD = 64, 80
    for i in range(4):
        A(f"v_mov_b32 v{ONES+i}, 0x3f803f80")
    for t in range(4):
        phi_tile(ACC(t,0))
        pack_tile(ACC(t,1))
        A("s_nop 1")
        for half in range(2):
            first = (t == 0 and half == 0)
            A(mfma32(KVD, ACC(t,0)+4*half, ACC(t,1)+4*half, "0" if first else None))
            A(mfma32(ZD, ONES, ACC(t,0)+4*half, "0" if first else None))
    A("v_lshlrev_b32 v3, 4, v2")
    A(f"s_lshl_b32 s{sT0}, s{sWN}, 13")
    A(f"v_add_u32 v5, s{sT0}, v3")
    A(f"s_sub_u32 s{sT0}, s{sCBG}, 8")
    A(f"s_lshl_b32 s{sT0}, s{sT0}, 1")
    A(f"s_add_u32 s{sT0}, s{sT0}, s{sWN}")
    A(f"s_lshl_b32 s{sXO}, s{sT0}, 3")
    A(f"s_add_u32 s{sXO}, s{sXO}, s{sRB}")
    A(f"s_lshl_b32 s{sXO}, s{sXO}, 12")
    A(f"s_add_u32 s{sXO}, s{sXO}, {WS_KVP}")
    A(f"s_lshl_b32 s{sXO+1}, s{sT0}, 10")
    A(f"s_lshl_b32 s{sT1}, s{sRB}, 2")
    A(f"s_add_u32 s{sXO+1}, s{sXO+1}, s{sT1}")
    A(f"s_add_u32 s{sXO+1}, s{sXO+1}, {WS_ZP}")
    A("v_and_b32 v4, 31, v2")
    A("v_lshlrev_b32 v4, 5, v4")
    A("s_nop 7")
    A(f"s_cmp_eq_u32 s{sWM}, 0")
    A("s_cbranch_scc1 K1_KVR")
    for q in range(4):
        A(f"ds_write_b128 v5, {vr(KVD+4*q,4)} offset:{q*1024}")
    A(f"ds_write_b32 v5, v{ZD} offset:4096")
    A("s_waitcnt lgkmcnt(0)")
    A("s_barrier")
    fin()
    A("s_endpgm")
    A.label("K1_KVR")
    A("s_barrier")
    for q in range(4):
        A(f"ds_read_b128 {vr(TMP+4*q,4)}, v5 offset:{q*1024}")
    A(f"ds_read_b32 v{TMP+16}, v5 offset:4096")
    A("s_waitcnt lgkmcnt(0)")
    for i in range(8):
        A(f"v_pk_add_f32 {vr(KVD+2*i,2)}, {vr(KVD+2*i,2)}, {vr(TMP+2*i,2)}")
    A(f"v_add_f32 v{ZD}, v{ZD}, v{TMP+16}")
    for q in range(4):
        A(f"buffer_store_dwordx4 {vr(KVD+4*q,4)}, v3, s[{SWS}:{SWS+3}], s{sXO} offen offset:{q*1024} {ST}")
    A(f"buffer_store_dword v{ZD}, v4, s[{SWS}:{SWS+3}], s{sXO+1} offen {ST}")
    fin()
    A.label("K1_END")
    A("s_endpgm")
    chk(A.lines, "k1")
    return header("proj_kernel") + A.text() + descriptor("proj_kernel", 240, 96)

K2_KVX = 131072
K2_ZX = K2_KVX + 2048
K2_LDS = K2_ZX + 64

def gen_k2():
    A = Asm()
    ST = OPT["st2"]
    SWS, SWO = 4, 8
    sWAVE, sH, sRB, sRT, sT0, sT1, sCNT, sM0, sGO, sQO, sHW = 20, 21, 22, 23, 24, 25, 26, 27, 28, 29, 32
    VL16, VCUR, VNXT = 1, 3, 4
    Q, ONES, KF, VF, P, K0 = [16, 128], 24, 28, 36, 44, 56
    L = [52, 136]
    S = [64, 80]
    O, NEGM = [96, 140], 112
    A("s_cmp_ge_u32 s2, 256")
    A("s_cbranch_scc1 K2_END")
    stamp(A, 0)
    A("s_load_dwordx2 s[52:53], s[0:1], 80")
    A("s_load_dwordx2 s[40:41], s[0:1], 16")
    A("s_load_dwordx2 s[44:45], s[0:1], 56")
    A("v_lshrrev_b32 v5, 6, v0")
    A("v_and_b32 v2, 63, v0")
    A(f"s_and_b32 s{sH}, s2, 31")
    A(f"s_lshr_b32 s{sRB}, s2, 5")
    A(f"v_readfirstlane_b32 s{sWAVE}, v5")
    A(f"v_lshlrev_b32 v{VL16}, 4, v2")
    A("v_lshrrev_b32 v7, 5, v2")
    A(f"s_lshl_b32 s{sRT}, s{sRB}, 3")
    A(f"s_cmp_ge_u32 s{sWAVE}, 8")
    A("s_cbranch_scc1 K2_HELP")
    sG = 33
    A(f"s_lshr_b32 s{sG}, s{sWAVE}, 2")
    A(f"s_and_b32 s{sT0}, s{sWAVE}, 3")
    A(f"s_lshl_b32 s{sT0}, s{sT0}, 1")
    A(f"s_add_u32 s{sRT}, s{sRT}, s{sT0}")
    A(f"s_add_u32 s{sRT}, s{sRT}, s{sG}")
    A(f"s_lshl_b32 s{sQO}, s{sRT}, 16")
    A(f"s_lshl_b32 s{sT0}, s{sH}, 11")
    A(f"s_add_u32 s{sQO}, s{sQO}, s{sT0}")
    A(f"s_add_u32 s{sT0}, s{sQO}, {WS_QB}")
    A(f"s_xor_b32 s{sGO}, s{sT0}, 65536")
    A(f"s_mov_b32 s{sT1}, {WS_KV}")
    A("s_waitcnt lgkmcnt(0)")
    srd(A, SWS, 52, WS_USED)
    for half in range(2):
        A(f"buffer_load_dwordx4 {vr(K0+4*half,4)}, v{VL16}, s[{SWS}:{SWS+3}], s{sT1} offen offset:{half*1024}")
        A(f"buffer_load_dwordx4 {vr(Q[0]+4*half,4)}, v{VL16}, s[{SWS}:{SWS+3}], s{sT0} offen offset:{half*1024}")
        A(f"buffer_load_dwordx4 {vr(Q[1]+4*half,4)}, v{VL16}, s[{SWS}:{SWS+3}], s{sGO} offen offset:{half*1024}")
    A("v_bfe_u32 v8, v2, 2, 1")
    A("v_bfe_u32 v9, v2, 4, 1")
    A("v_cmp_eq_u32 vcc, v8, v9")
    A("v_mov_b32 v8, 0x3f803f80")
    A(f"s_lshl_b32 s{sT0}, s{sG}, 14")
    A(f"v_add_u32 v{VCUR}, s{sT0}, v{VL16}")
    A(f"v_cndmask_b32 v{ONES}, 0, v8, vcc")
    for i in range(1, 4):
        A(f"v_mov_b32 v{ONES+i}, v{ONES}")
    for x in range(2):
        for i in range(16):
            A(f"v_mov_b32 v{O[x]+i}, 0")
        for i in range(4):
            A(f"v_mov_b32 v{L[x]+i}, 0")
    for i in range(4):
        A(f"v_mov_b32 v{VF+4+i}, 0")
        A(f"v_mov_b32 v{P+4+i}, 0")
    A(f"v_add_u32 v{VNXT}, 32768, v{VCUR}")
    A(f"s_mov_b32 s{sCNT}, 0")
    stamp(A, 1)
    A("s_waitcnt vmcnt(3)")
    A(mfma32(S[0], K0, Q[0], "0"))
    A(mfma32(S[1], K0, Q[1], "0"))
    A("s_waitcnt vmcnt(0)")
    A(mfma32(S[0], K0+4, Q[0]+4))
    A(mfma32(S[1], K0+4, Q[1]+4))
    stamp(A, 2)
    A("s_nop 10")
    A(f"v_max3_f32 v8, v{S[0]}, v{S[0]+1}, v{S[0]+2}")
    A(f"v_max3_f32 v9, v{S[0]+3}, v{S[0]+4}, v{S[0]+5}")
    for i in range(6, 30, 4):
        A(f"v_max3_f32 v8, v8, v{S[0]+i}, v{S[0]+i+1}")
        A(f"v_max3_f32 v9, v9, v{S[0]+i+2}, v{S[0]+i+3}")
    A(f"v_max3_f32 v8, v8, v{S[0]+30}, v{S[0]+31}")
    A("v_max_f32 v8, v8, v9")
    A("v_mov_b32 v9, v8")
    A("s_nop 1")
    A("v_permlane32_swap_b32 v8, v9")
    A("v_max_f32 v8, v8, v9")
    A("v_sub_f32 v8, 0, v8")
    for i in range(16):
        A(f"v_mov_b32 v{NEGM+i}, v8")
    A("s_barrier")
    A(f"ds_read_b128 {vr(KF,4)}, v{VCUR}")
    A(f"ds_read_b128 {vr(KF+4,4)}, v{VCUR} offset:1024")
    A(f"ds_read_b128 {vr(VF,4)}, v{VCUR} offset:2048")
    stamp(A, 3)
    A("s_waitcnt lgkmcnt(0)")
    A(mfma32(S[0], KF, Q[0], NEGM))
    A(mfma32(S[0], KF+4, Q[0]+4))
    for i in range(4):
        A(f"v_mov_b32 v{K0+i}, 0")
    A("s_nop 6")
    A(".p2align 3")
    A.label("K2_LOOP")
    start = len(A.lines)
    for st in range(8):
        jj, x = st >> 1, st & 1
        Sc, Sn = S[x], S[x ^ 1]
        E = lambda i: f"v_exp_f32 v{Sc+i}, v{Sc+i}"
        C = lambda i: f"v_cvt_pk_bf16_f32 v{P+i}, v{Sc+2*i}, v{Sc+2*i+1}"
        def addr(tile, part):
            if tile < 4: return f"v{VCUR} offset:{tile*4096+part*1024}"
            return f"v{VNXT} offset:{(tile-4)*4096+part*1024}"
        if OPT["k2sched"] == 0:
            if x == 1: A("s_waitcnt lgkmcnt(1)")
            A(mfma32(Sn, KF, Q[x^1], NEGM))
            A(E(0)); A(E(1)); A(E(2)); A(E(3))
            A(mfma32(Sn, KF+4, Q[x^1]+4))
            if st == 6 and not OPT["k2nobar"]:
                A("s_barrier")
            if x == 0:
                A(f"ds_read_b128 {vr(KF,4)}, {addr(jj+1,0)}")
                A(f"ds_read_b128 {vr(KF+4,4)}, {addr(jj+1,1)}")
            A(C(0)); A(C(1)); A(E(4)); A(E(5)); A(E(6))
            if x == 1: A("s_waitcnt lgkmcnt(0)")
            A(mfma32(O[x^1], VF+4, P+4))
            if x == 0: A(f"ds_read_b128 {vr(VF+4,4)}, {addr(jj,3)}")
            A(E(7)); A(C(2)); A(C(3)); A(E(8))
            A(mfma16(L[x^1], ONES, P+4))
            A(E(9)); A(E(10))
            if x == 0: A("s_waitcnt lgkmcnt(3)")
            A(mfma32(O[x], VF, P))
            if x == 1: A(f"ds_read_b128 {vr(VF,4)}, {addr(jj+1,2)}")
            A(E(11)); A(C(4)); A(C(5)); A(E(12))
            A(mfma16(L[x], ONES, P))
            if st == 7:
                A(f"s_add_u32 s{sCNT}, s{sCNT}, 1")
                A(f"s_cmp_lt_u32 s{sCNT}, 8")
            A(E(13)); A(E(14)); A(E(15)); A(C(6)); A(C(7))
        else:
            T = K0
            ET = lambda i: f"v_exp_f32 v{T+i-12}, v{Sc+i}"
            CT = lambda i: f"v_cvt_pk_bf16_f32 v{P+i}, v{T+2*(i-6)}, v{T+2*(i-6)+1}"
            rdK = [f"ds_read_b128 {vr(KF,4)}, {addr(jj+1,0)}", f"ds_read_b128 {vr(KF+4,4)}, {addr(jj+1,1)}"] if x == 0 else [None, None]
            rdV1 = f"ds_read_b128 {vr(VF+4,4)}, {addr(jj,3)}" if x == 0 else None
            rdV0 = f"ds_read_b128 {vr(VF,4)}, {addr(jj+1,2)}" if x == 1 else None
            bar = "s_barrier" if (st == 6 and not OPT["k2nobar"]) else None
            cnt = [f"s_add_u32 s{sCNT}, s{sCNT}, 1", f"s_cmp_lt_u32 s{sCNT}, 8"] if st == 7 else [None, None]
            if OPT["k2sched"] == 1:
                seq = [mfma32(Sn, KF, Q[x^1], NEGM), E(0), CT(6), E(1), CT(7), E(2),
                       mfma32(Sn, KF+4, Q[x^1]+4), bar, E(3), rdK[0], E(4), rdK[1], C(0), E(5),
                       "s_waitcnt lgkmcnt(0)" if x == 1 else None,
                       mfma32(O[x^1], VF+4, P+4), C(1), E(6), rdV1, E(7), C(2),
                       mfma16(L[x^1], ONES, P+4), C(3), E(8), E(9),
                       "s_waitcnt lgkmcnt(3)" if x == 0 else None,
                       mfma32(O[x], VF, P), E(10), rdV0, E(11), C(4), ET(12),
                       mfma16(L[x], ONES, P), ET(13), cnt[0], C(5), ET(14), cnt[1], ET(15),
                       "s_waitcnt lgkmcnt(1)" if x == 0 else None]
            else:
                seq = [mfma32(Sn, KF, Q[x^1], NEGM), bar, rdK[0], E(0), E(1), E(2), E(3),
                       mfma32(Sn, KF+4, Q[x^1]+4), rdK[1], "s_waitcnt lgkmcnt(0)" if x == 1 else None,
                       C(0), C(1), E(4), E(5), E(6),
                       mfma32(O[x^1], VF+4, P+4), rdV1, cnt[0], E(7), C(2), C(3), E(8),
                       mfma16(L[x^1], ONES, P+4), "s_waitcnt lgkmcnt(3)" if x == 0 else None, cnt[1], E(9), E(10),
                       mfma32(O[x], VF, P), rdV0, E(11), C(4), C(5), E(12),
                       mfma16(L[x], ONES, P), "s_waitcnt lgkmcnt(1)" if x == 0 else None,
                       E(13), E(14), E(15), C(6), C(7)]
            for ins in seq:
                if ins: A(ins)
    A(f"v_mov_b32 v{VCUR}, v{VNXT}")
    A(f"v_add_u32 v{VNXT}, 32768, v{VNXT}")
    A(f"v_and_b32 v{VNXT}, 0x1ffff, v{VNXT}")
    A("s_cbranch_scc1 K2_LOOP")
    body = A.lines[start:]
    chk(body + body, "k2 loop")
    stamp(A, 4)
    if OPT["k2sched"] == 1:
        A(f"v_cvt_pk_bf16_f32 v{P+6}, v{K0}, v{K0+1}")
        A(f"v_cvt_pk_bf16_f32 v{P+7}, v{K0+2}, v{K0+3}")
        A("s_nop 1")
    A(mfma32(O[1], VF+4, P+4))
    A(mfma16(L[1], ONES, P+4))
    XB = 32768
    A(f"s_mul_i32 s{sT0}, s{sWAVE}, 5120")
    A(f"s_xor_b32 s{sT1}, s{sWAVE}, 4")
    A(f"s_mul_i32 s{sT1}, s{sT1}, 5120")
    A(f"v_add_u32 v8, s{sT0}, v{VL16}")
    A(f"v_add_u32 v9, s{sT1}, v{VL16}")
    A(f"s_add_u32 s{sT0}, s{sQO}, {WS_OB}")
    A(f"v_mov_b32 v10, {hexf(2.0**120)}")
    A(f"v_mov_b32 v11, {hexf(2.0**60)}")
    A(f"v_mov_b32 v12, {hexf(2.0**-60)}")
    A("s_nop 3")
    for q in range(4):
        A(f"ds_write_b128 v8, {vr(O[1]+4*q,4)} offset:{XB+q*1024}")
    A(f"ds_write_b32 v8, v{L[1]} offset:{XB+4096}")
    A("s_waitcnt lgkmcnt(0)")
    A("s_barrier")
    for q in range(4):
        A(f"ds_read_b128 {vr(S[0]+4*q,4)}, v9 offset:{XB+q*1024}")
    A(f"ds_read_b32 v{S[1]}, v9 offset:{XB+4096}")
    A("s_waitcnt lgkmcnt(0)")
    O, L, Q = O[0], L[0], Q[0]
    A(f"v_add_f32 v{L}, v{L}, v{S[1]}")
    for i in range(8):
        A(f"v_pk_add_f32 {vr(O+2*i,2)}, {vr(O+2*i,2)}, {vr(S[0]+2*i,2)}")
    A(f"v_cmp_nlt_f32 vcc, v{L}, v11")
    A(f"v_cmp_nge_f32 s[34:35], v{L}, v12")
    A(f"v_add_f32 v8, |v{O}|, |v{O+1}|")
    A(f"v_add_f32 v9, |v{O+2}|, |v{O+3}|")
    for i in range(4, 16, 2):
        A(f"v_add_f32 v8, v8, |v{O+i}|")
        A(f"v_add_f32 v9, v9, |v{O+i+1}|")
    A("v_add_f32 v8, v8, v9")
    A("v_cmp_nlt_f32 s[30:31], v8, v10")
    A("s_or_b64 vcc, vcc, s[34:35]")
    A("s_nop 1")
    A("s_or_b64 vcc, vcc, s[30:31]")
    A("s_cbranch_vccnz K2_SLOW")
    A.label("K2_FIN")
    A(f"v_rcp_f32 v8, v{L}")
    A("s_nop 0")
    A("v_mov_b32 v9, v8")
    for i in range(8):
        A(f"v_pk_mul_f32 {vr(O+2*i,2)}, {vr(O+2*i,2)}, v[8:9]")
    for i in range(8):
        A(f"v_cvt_pk_bf16_f32 v{O+i}, v{O+2*i}, v{O+2*i+1}")
    for half in range(2):
        A(f"buffer_store_dwordx4 {vr(O+4*half,4)}, v{VL16}, s[{SWS}:{SWS+3}], s{sT0} offen offset:{half*1024} {ST}")
    if DIAG: A("s_waitcnt vmcnt(0)")
    stamp(A, 5)
    stamp_out(A, 1, SWS, sWAVE, 6, 160)
    A.label("K2_END")
    A("s_endpgm")

    A.label("K2_HELP")
    KVP, ZP, PQ, KVA, ZA, NUM, DEN, VPF = 16, 48, 52, 68, 76, 84, 100, 116
    BAR = (lambda: None) if OPT["k2nobar"] else (lambda: A("s_barrier"))
    A(f"s_setprio {OPT['k2prio']}")
    A(f"s_sub_u32 s{sHW}, s{sWAVE}, 8")
    A(f"s_lshl_b32 s{sM0}, s{sHW}, 13")
    A(f"s_add_u32 s{sGO}, s{sM0}, {WS_KV}")
    A(f"s_lshl_b32 s{sT0}, s{sHW}, 1")
    A(f"s_add_u32 s{sRT}, s{sRT}, s{sT0}")
    A(f"s_lshl_b32 s{sQO}, s{sRT}, 16")
    A(f"s_lshl_b32 s{sT0}, s{sH}, 11")
    A(f"s_add_u32 s{sQO}, s{sQO}, s{sT0}")
    A("s_waitcnt lgkmcnt(0)")
    srd(A, SWS, 52, WS_USED)
    def dma_chunk():
        for g in range(2):
            A(f"s_add_u32 m0, s{sM0}, {g*4096}")
            if g: A(f"s_add_u32 s{sGO}, s{sGO}, 4096")
            else: A("s_nop 0")
            for n in range(4):
                A(f"buffer_load_dwordx4 v{VL16}, s[{SWS}:{SWS+3}], s{sGO} offen offset:{n*1024} lds")
        A(f"s_add_u32 s{sGO}, s{sGO}, {32768-4096}")
        A(f"s_add_u32 s{sM0}, s{sM0}, 32768")
        A(f"s_and_b32 s{sM0}, s{sM0}, 0x1ffff")
    dma_chunk()
    A("s_cmp_ge_u32 s2, 128")
    A("s_cselect_b64 s[54:55], s[44:45], s[40:41]")
    srd(A, SWO, 54, 2 << 20)
    stamp(A, 1)
    A("s_waitcnt vmcnt(0)")
    stamp(A, 2)
    A("s_barrier")
    dma_chunk()
    A(f"s_lshl_b32 s{sT0}, s{sH}, 15")
    A(f"s_lshl_b32 s{sT1}, s{sHW}, 10")
    A(f"s_add_u32 s{sT0}, s{sT0}, s{sT1}")
    A(f"s_add_u32 s{sT0}, s{sT0}, {WS_KVP}")
    for p in range(8):
        A(f"buffer_load_dwordx4 {vr(KVP+4*p,4)}, v{VL16}, s[{SWS}:{SWS+3}], s{sT0} offen")
        if p < 7: A(f"s_add_u32 s{sT0}, s{sT0}, 4096")
    A("v_and_b32 v6, 31, v2")
    A("v_lshlrev_b32 v6, 5, v6")
    A("v_lshl_add_u32 v6, v7, 4, v6")
    A(f"s_lshl_b32 s{sT0}, s{sH}, 10")
    A(f"s_add_u32 s{sT0}, s{sT0}, {WS_ZP}")
    A(f"buffer_load_dwordx4 {vr(ZP,4)}, v6, s[{SWS}:{SWS+3}], s{sT0} offen")
    A(f"s_add_u32 s{sT0}, s{sQO}, {WS_QA}")
    A(f"s_add_u32 s{sT1}, s{sT0}, 65536")
    for r in range(2):
        for half in range(2):
            A(f"buffer_load_dwordx4 {vr(PQ+8*r+4*half,4)}, v{VL16}, s[{SWS}:{SWS+3}], s{sT0+r} offen offset:{half*1024}")
    A("s_waitcnt vmcnt(13)")
    BAR()
    dma_chunk()
    A("s_waitcnt vmcnt(8)")
    n = 8
    while n > 1:
        n //= 2
        for i in range(n):
            for hf in range(2):
                A(f"v_pk_add_f32 {vr(KVP+4*i+2*hf,2)}, {vr(KVP+4*i+2*hf,2)}, {vr(KVP+4*(i+n)+2*hf,2)}")
    A(f"s_lshr_b32 s{sT0}, s{sHW}, 1")
    A(f"s_lshl_b32 s{sT0}, s{sT0}, 10")
    A(f"s_and_b32 s{sT1}, s{sHW}, 1")
    A(f"s_lshl_b32 s{sT1}, s{sT1}, 3")
    A(f"s_add_u32 s{sT0}, s{sT0}, s{sT1}")
    A(f"s_add_u32 s{sT0}, s{sT0}, {K2_KVX}")
    A(f"v_add_u32 v8, s{sT0}, v{VL16}")
    A(f"v_cvt_pk_bf16_f32 v{KVP}, v{KVP}, v{KVP+1}")
    A(f"v_cvt_pk_bf16_f32 v{KVP+1}, v{KVP+2}, v{KVP+3}")
    A(f"ds_write_b64 v8, {vr(KVP,2)}")
    A(f"s_cmp_eq_u32 s{sHW}, 0")
    A("s_cbranch_scc0 K2_NOZ")
    A(f"v_pk_add_f32 {vr(ZP,2)}, {vr(ZP,2)}, {vr(ZP+2,2)}")
    A("v_and_b32 v9, 31, v2")
    A(f"v_add_f32 v{ZP}, v{ZP}, v{ZP+1}")
    A("v_lshlrev_b32 v9, 1, v9")
    A(f"v_mov_b32 v{ZP+1}, v{ZP}")
    A(f"v_add_u32 v9, {K2_ZX}, v9")
    A("s_nop 0")
    A(f"v_permlane32_swap_b32 v{ZP}, v{ZP+1}")
    A(f"v_add_f32 v{ZP}, v{ZP}, v{ZP+1}")
    A(f"v_cvt_pk_bf16_f32 v{ZP}, v{ZP}, v{ZP}")
    A(f"ds_write_b16 v9, v{ZP}")
    A.label("K2_NOZ")
    dma_chunk()
    A("s_waitcnt vmcnt(8) lgkmcnt(0)")
    BAR()
    dma_chunk()
    A("v_lshlrev_b32 v10, 3, v7")
    A(f"v_add_u32 v10, {K2_ZX}, v10")
    A(f"v_add_u32 v11, {K2_KVX}, v{VL16}")
    A(f"ds_read2_b64 {vr(ZA,4)}, v10 offset0:0 offset1:2")
    A(f"ds_read2_b64 {vr(ZA+4,4)}, v10 offset0:4 offset1:6")
    A(f"ds_read_b128 {vr(KVA,4)}, v11")
    A(f"ds_read_b128 {vr(KVA+4,4)}, v11 offset:1024")
    A(f"s_add_u32 s{sT0}, s{sQO}, {WS_OA}")
    A(f"s_add_u32 s{sT1}, s{sT0}, 65536")
    A("s_waitcnt lgkmcnt(0)")
    NUMS, DENS = [NUM, 16], [DEN, 32]
    for r in range(2):
        A(mfma32(DENS[r], ZA, PQ+8*r, "0"))
        A(mfma32(DENS[r], ZA+4, PQ+8*r+4))
        A(mfma32(NUMS[r], KVA, PQ+8*r, "0"))
        A(mfma32(NUMS[r], KVA+4, PQ+8*r+4))
    A("s_nop 7")
    for r in range(2):
        N_ = NUMS[r]
        A(f"v_add_f32 v8, {hexf(EPS)}, v{DENS[r]}")
        A("v_rcp_f32 v8, v8")
        A("s_nop 0")
        A("v_mov_b32 v9, v8")
        for i in range(8):
            A(f"v_pk_mul_f32 {vr(N_+2*i,2)}, {vr(N_+2*i,2)}, v[8:9]")
        for i in range(8):
            A(f"v_cvt_pk_bf16_f32 v{N_+i}, v{N_+2*i}, v{N_+2*i+1}")
        for half in range(2):
            A(f"buffer_store_dwordx4 {vr(N_+4*half,4)}, v{VL16}, s[{SWS}:{SWS+3}], s{sT0+r} offen offset:{half*1024} {ST}")
    A("s_waitcnt vmcnt(12)")
    BAR()
    dma_chunk()
    A("v_lshlrev_b32 v8, 7, v2")
    A(f"s_and_b32 s{sT0}, s2, 127")
    A(f"s_lshl_b32 s{sT0}, s{sT0}, 1")
    A(f"s_add_u32 s{sT0}, s{sT0}, s{sHW}")
    A(f"s_lshl_b32 s{sT0}, s{sT0}, 13")
    A(f"s_cmp_lt_u32 s{sHW}, {2 if OPT['pf2'] else 0}")
    A(f"s_cselect_b32 s{sT0}, s{sT0}, 0x40000000")
    A(f"buffer_load_dword v{VPF}, v8, s[{SWO}:{SWO+3}], s{sT0} offen {OPT['pfm2']}")
    A("s_waitcnt vmcnt(9)")
    BAR()
    dma_chunk()
    A("s_waitcnt vmcnt(9)")
    BAR()
    dma_chunk()
    A("s_waitcnt vmcnt(8)")
    BAR()
    A("s_waitcnt vmcnt(0)")
    BAR()
    stamp(A, 3)
    stamp_out(A, 1, SWS, sWAVE, 4, 160)
    A("s_endpgm")
    A.label("K2_SLOW")
    A(f"v_mov_b32 v8, 0xff800000")
    A(f"s_mov_b32 s{sT1}, {WS_KV}")
    A(f"s_mov_b32 s{sCNT}, 0")
    A.label("K2_SLOW1")
    A(f"buffer_load_dwordx4 {vr(KF,4)}, v{VL16}, s[{SWS}:{SWS+3}], s{sT1} offen")
    A(f"buffer_load_dwordx4 {vr(KF+4,4)}, v{VL16}, s[{SWS}:{SWS+3}], s{sT1} offen offset:1024")
    A("s_waitcnt vmcnt(0)")
    A(mfma32(S[0], KF, Q, "0"))
    A(mfma32(S[0], KF+4, Q+4))
    A("s_nop 15")
    for i in range(0, 16, 2):
        A(f"v_max3_f32 v8, v8, v{S[0]+i}, v{S[0]+i+1}")
    A(f"s_add_u32 s{sT1}, s{sT1}, 4096")
    A(f"s_add_u32 s{sCNT}, s{sCNT}, 1")
    A(f"s_cmp_lt_u32 s{sCNT}, 64")
    A("s_cbranch_scc1 K2_SLOW1")
    A("v_mov_b32 v9, v8")
    A("s_nop 1")
    A("v_permlane32_swap_b32 v8, v9")
    A("v_max_f32 v8, v8, v9")
    A("v_sub_f32 v8, 0, v8")
    for i in range(16):
        A(f"v_mov_b32 v{NEGM+i}, v8")
        A(f"v_mov_b32 v{O+i}, 0")
    for i in range(4):
        A(f"v_mov_b32 v{L+i}, 0")
    A(f"s_mov_b32 s{sT1}, {WS_KV}")
    A(f"s_mov_b32 s{sCNT}, 0")
    A.label("K2_SLOW2")
    for i in range(2):
        A(f"buffer_load_dwordx4 {vr(KF+4*i,4)}, v{VL16}, s[{SWS}:{SWS+3}], s{sT1} offen offset:{1024*i}")
        A(f"buffer_load_dwordx4 {vr(VF+4*i,4)}, v{VL16}, s[{SWS}:{SWS+3}], s{sT1} offen offset:{2048+1024*i}")
    A("s_waitcnt vmcnt(0)")
    A(mfma32(S[0], KF, Q, NEGM))
    A(mfma32(S[0], KF+4, Q+4))
    A("s_nop 15")
    for i in range(16):
        A(f"v_exp_f32 v{S[0]+i}, v{S[0]+i}")
    A("s_nop 0")
    for i in range(8):
        A(f"v_cvt_pk_bf16_f32 v{P+i}, v{S[0]+2*i}, v{S[0]+2*i+1}")
    A("s_nop 1")
    A(mfma32(O, VF, P))
    A(mfma16(L, ONES, P))
    A(mfma32(O, VF+4, P+4))
    A(mfma16(L, ONES, P+4))
    A("s_nop 15")
    A(f"s_add_u32 s{sT1}, s{sT1}, 4096")
    A(f"s_add_u32 s{sCNT}, s{sCNT}, 1")
    A(f"s_cmp_lt_u32 s{sCNT}, 64")
    A("s_cbranch_scc1 K2_SLOW2")
    A("s_branch K2_FIN")
    chk(A.lines, "k2")
    return header("attn_kernel") + A.text() + descriptor("attn_kernel", 156, 64, 168)

K3_STAGE = 32768
K3_NB = 5
K3_WOFF = 16384
K3_LDS = K3_NB * K3_STAGE

def gen_k3():
    A = Asm()
    ST = OPT["st3"]
    SO, SW, SOUT = 4, 8, 12
    sXCD, sIDX, sWAVE, sRB, sCB, sT0, sW4, sT1, sBR = 20, 21, 22, 23, 24, 25, 26, 27, 28
    sBASE, sCNT, sDELTA, sAO = 34, 35, 36, 37
    sWO, sSTG = 60, 72
    A("s_cmp_ge_u32 s2, 256")
    A("s_cbranch_scc1 K3_END")
    stamp(A, 0)
    A("s_load_dwordx2 s[40:41], s[0:1], 16")
    A("s_load_dwordx4 s[44:47], s[0:1], 56")
    A("s_load_dwordx2 s[52:53], s[0:1], 80")
    A("v_lshrrev_b32 v1, 6, v0")
    A("v_and_b32 v2, 63, v0")
    A(f"s_and_b32 s{sXCD}, s2, 7")
    A(f"s_lshr_b32 s{sIDX}, s2, 3")
    A(f"v_readfirstlane_b32 s{sWAVE}, v1")
    A(f"s_lshr_b32 s{sBR}, s{sXCD}, 2")
    A(f"s_and_b32 s{sRB}, s{sXCD}, 1")
    A(f"s_lshl_b32 s{sRB}, s{sRB}, 3")
    A(f"s_and_b32 s{sT0}, s{sIDX}, 7")
    A(f"s_add_u32 s{sRB}, s{sRB}, s{sT0}")
    A(f"s_bfe_u32 s{sCB}, s{sXCD}, 0x10001")
    A(f"s_lshl_b32 s{sCB}, s{sCB}, 2")
    A(f"s_lshr_b32 s{sT0}, s{sIDX}, 3")
    A(f"s_add_u32 s{sCB}, s{sCB}, s{sT0}")
    def build_srds():
        A("s_waitcnt lgkmcnt(0)")
        A(f"s_cmp_eq_u32 s{sBR}, 1")
        A("s_cselect_b64 s[54:55], s[44:45], s[40:41]")
        srd(A, SO, 52, WS_USED)
        srd(A, SW, 54, 2 << 20)
        srd(A, SOUT, 46, 8 << 20)
    A(f"s_cmp_lt_u32 s{sWAVE}, 4")
    A("s_cbranch_scc1 K3_COMPUTE")
    VA, VW = 3, 6
    A(f"s_sub_u32 s{sW4}, s{sWAVE}, 4")
    A(f"v_lshlrev_b32 v{VA}, 4, v2")
    A(f"s_lshl_b32 s{sAO}, s{sRB}, 2")
    A(f"s_add_u32 s{sAO}, s{sAO}, s{sW4}")
    A(f"s_lshl_b32 s{sAO}, s{sAO}, 16")
    A(f"s_lshl_b32 s{sT0}, s{sBR}, 22")
    A(f"s_add_u32 s{sAO}, s{sAO}, s{sT0}")
    A(f"s_add_u32 s{sAO}, s{sAO}, {WS_OA}")
    A("v_lshrrev_b32 v4, 4, v2")
    A("v_and_b32 v5, 15, v2")
    A("v_lshlrev_b32 v8, 2, v4")
    A("v_xor_b32 v5, v5, v8")
    A("v_lshlrev_b32 v4, 11, v4")
    A(f"v_lshl_add_u32 v{VW}, v5, 4, v4")
    A(f"s_lshl_b32 s{sT0}, s{sCB}, 8")
    A(f"v_add_u32 v{VW}, s{sT0}, v{VW}")
    A(f"s_lshl_b32 s{sWO}, s{sW4}, 13")
    for n in range(1, 4):
        A(f"s_add_u32 s{sWO+n}, s{sWO}, {n*16*2048}")
    A(f"s_mov_b32 s{sBASE}, 0")
    A(f"s_lshl_b32 s{sT0}, s{sW4}, 12")
    A(f"s_lshl_b32 s{sT1}, s{sW4}, 10")
    A(f"s_add_u32 s{sT1}, s{sT1}, {K3_WOFF}")
    build_srds()
    def issue():
        A(f"s_add_u32 m0, s{sBASE}, s{sT0}")
        A(f"s_add_u32 s{sDELTA}, s{sBASE}, s{sT1}")
        for n in range(4):
            A(f"buffer_load_dwordx4 v{VA}, s[{SO}:{SO+3}], s{sAO} offen offset:{n*1024} lds")
        for n in range(4):
            A(f"s_add_u32 m0, s{sDELTA}, {n*4096}")
            A("s_nop 0")
            A(f"buffer_load_dwordx4 v{VW}, s[{SW}:{SW+3}], s{sWO+n} offen lds")
        A(f"s_add_u32 s{sAO}, s{sAO}, 4096")
        A(f"v_add_u32 v{VW}, {64*2048}, v{VW}")
        A(f"s_add_u32 s{sBASE}, s{sBASE}, {K3_STAGE}")
        A(f"s_cmp_ge_u32 s{sBASE}, {K3_LDS}")
        A(f"s_cselect_b32 s{sBASE}, 0, s{sBASE}")
    n = 8
    A(f"s_mov_b32 s{sCNT}, 0")
    tl_init(A)
    A("s_branch K3_LIN")
    A.label("K3_LLOOP")
    tl_pre(A)
    A(f"s_cmp_ge_u32 s{sCNT}, 6")
    A("s_cbranch_scc1 K3_LW24")
    A(f"s_cmp_eq_u32 s{sCNT}, 4")
    A("s_cbranch_scc1 K3_LW16")
    A(f"s_cmp_eq_u32 s{sCNT}, 2")
    A("s_cbranch_scc0 K3_LIN")
    A("s_waitcnt vmcnt(8)")
    A.label("K3_LW16")
    A("s_waitcnt vmcnt(16)")
    A.label("K3_LW24")
    A("s_waitcnt vmcnt(24)")
    tl_mid(A)
    A("s_barrier")
    tl_post(A)
    A.label("K3_LIN")
    issue()
    A(f"s_add_u32 s{sCNT}, s{sCNT}, 1")
    A(f"s_cmp_lt_u32 s{sCNT}, 16")
    A("s_cbranch_scc1 K3_LLOOP")
    for i in (3, 2, 1, 0):
        tl_pre(A)
        A(f"s_waitcnt vmcnt({i*n})")
        tl_mid(A)
        A("s_barrier")
        tl_post(A)
    tl_out(A, 1, SO, sWAVE)
    stamp(A, 1)
    stamp_out(A, 2, SO, sWAVE, 2)
    A("s_endpgm")
    A.label("K3_COMPUTE")
    AA, WA, VPF = 16, 17, 20
    FB = [32, 48]
    FA = lambda b, t: FB[b] + 4 * t
    FW = lambda b, u: FB[b] + 8 + 4 * u
    ACC = lambda t, u: 64 + 16 * (2 * t + u)
    sWM, sWN = 38, 39
    A(f"s_lshr_b32 s{sWM}, s{sWAVE}, 1")
    A(f"s_and_b32 s{sWN}, s{sWAVE}, 1")
    if OPT["pf3"]:
        A("v_lshlrev_b32 v10, 7, v2")
        A(f"s_lshl_b32 s{sAO}, s{sRB}, 2")
        A(f"s_and_b32 s{sT0}, s{sCB}, 3")
        A(f"s_add_u32 s{sAO}, s{sAO}, s{sT0}")
        A(f"s_lshl_b32 s{sAO}, s{sAO}, 16")
        A(f"s_lshl_b32 s{sT0}, s{sBR}, 22")
        A(f"s_add_u32 s{sAO}, s{sAO}, s{sT0}")
        A(f"s_lshl_b32 s{sT0}, s{sWAVE}, 13")
        A(f"s_add_u32 s{sAO}, s{sAO}, s{sT0}")
        A(f"s_add_u32 s{sAO}, s{sAO}, {WS_OA}")
        A(f"s_add_u32 s{sT1}, s{sAO}, 32768")
    build_srds()
    if OPT["pf3"]:
        A(f"buffer_load_dword v{VPF}, v10, s[{SO}:{SO+3}], s{sAO} offen")
        A(f"buffer_load_dword v{VPF+1}, v10, s[{SO}:{SO+3}], s{sT1} offen")
    A(f"s_lshl_b32 s{sT0}, s{sWM}, 13")
    A(f"v_lshl_add_u32 v{AA}, v2, 4, s{sT0}")
    A("v_lshrrev_b32 v4, 5, v2")
    A("v_bfe_u32 v5, v2, 2, 2")
    A("v_lshl_add_u32 v6, v4, 2, v5")
    A("v_bfe_u32 v7, v2, 4, 1")
    A("v_bfe_u32 v8, v2, 1, 1")
    A("v_lshl_add_u32 v7, v7, 1, v8")
    A("v_and_b32 v8, 1, v2")
    A("v_lshlrev_b32 v8, 3, v8")
    A("v_lshl_add_u32 v8, v6, 8, v8")
    for u in range(2):
        A(f"s_lshl_b32 s{sT0}, s{sWN}, 1")
        A(f"s_add_u32 s{sT0}, s{sT0}, {u}")
        A(f"v_xor_b32 v9, s{sT0}, v5")
        A("v_lshl_add_u32 v9, v9, 2, v7")
        A(f"v_lshl_add_u32 v{WA+u}, v9, 4, v8")
    for r in range(64):
        A(f"v_mov_b32 v{64+r}, 0")
    A(f"s_mov_b32 s{sSTG}, {K3_STAGE}")
    A(f"s_mov_b32 s{sBASE}, 0")
    A(f"s_mov_b32 s{sCNT}, 16")
    RS = 144
    VEW, VER, VEG = 24, 25, 26
    A(f"s_mul_i32 s{sT0}, s{sWAVE}, {64*RS}")
    A("v_and_b32 v3, 31, v2")
    A(f"v_mul_u32_u24 v3, {RS}, v3")
    A("v_lshl_add_u32 v3, v4, 3, v3")
    A(f"v_add_u32 v{VEW}, s{sT0}, v3")
    A("v_lshrrev_b32 v3, 3, v2")
    A("v_and_b32 v5, 7, v2")
    A(f"v_mul_u32_u24 v6, {RS}, v3")
    A("v_lshl_add_u32 v6, v5, 4, v6")
    A(f"v_add_u32 v{VER}, s{sT0}, v6")
    A("v_lshlrev_b32 v3, 12, v3")
    A(f"v_lshl_add_u32 v{VEG}, v5, 4, v3")
    A(f"s_lshl_b32 s{sT0}, s{sRB}, 1")
    A(f"s_add_u32 s{sT0}, s{sT0}, s{sWM}")
    A(f"s_lshl_b32 s{sT0}, s{sT0}, 18")
    A(f"s_lshl_b32 s{sT1}, s{sBR}, 3")
    A(f"s_add_u32 s{sT1}, s{sT1}, s{sCB}")
    A(f"s_lshl_b32 s{sT1}, s{sT1}, 1")
    A(f"s_add_u32 s{sT1}, s{sT1}, s{sWN}")
    A(f"s_lshl_b32 s{sT1}, s{sT1}, 7")
    A(f"s_add_u32 s{sWO}, s{sT0}, s{sT1}")
    def reads(b, ks):
        R = [f"ds_read_b128 {vr(FA(b,0),4)}, v{AA} offset:{ks*1024}"]
        for u in range(2):
            R.append(f"ds_read_b64_tr_b16 {vr(FW(b,u),2)}, v{WA+u} offset:{K3_WOFF+ks*4096}")
            R.append(f"ds_read_b64_tr_b16 {vr(FW(b,u)+2,2)}, v{WA+u} offset:{K3_WOFF+ks*4096+2048}")
        R.append(f"ds_read_b128 {vr(FA(b,1),4)}, v{AA} offset:{4096+ks*1024}")
        return R
    stamp(A, 1)
    A("s_barrier")
    stamp(A, 2)
    for r in reads(0, 0): A(r)
    A.label("K3_LOOP")
    start = len(A.lines)
    for s in range(4):
        b = s & 1
        mf = [mfma32(ACC(t,u), FW(b,u), FA(b,t)) for t in range(2) for u in range(2)]
        fill = reads(b ^ 1, (s + 1) & 3)
        post = []
        if s == 1:
            post = [f"s_add_u32 s{sBASE}, s{sBASE}, 1",
                    f"s_cmp_eq_u32 s{sBASE}, {K3_NB}",
                    f"s_cselect_b32 s{sDELTA}, {-(K3_NB-1)*K3_STAGE & 0xffffffff}, s{sSTG}",
                    f"s_cselect_b32 s{sBASE}, 0, s{sBASE}"]
        if s == 2:
            post = [f"v_add_u32 v{AA+i}, s{sDELTA}, v{AA+i}" for i in range(3)]
        if s == 3:
            post = [f"s_sub_u32 s{sCNT}, s{sCNT}, 1", f"s_cmp_lg_u32 s{sCNT}, 0"]
        A("s_waitcnt lgkmcnt(0)")
        for k, m in enumerate(mf):
            A(m)
            if s == 3 and k == 0: A("s_barrier")
            n = 3
            while n and fill:
                A(fill.pop(0)); n -= 1
            if n == 3:
                while post: A(post.pop(0))
    A("s_cbranch_scc1 K3_LOOP")
    body = A.lines[start:]
    chk(body + body, "k3 loop")
    stamp(A, 3)
    A("s_waitcnt lgkmcnt(0)")
    A("s_nop 7")
    for t in range(2):
        for u in range(2):
            b = ACC(t,u)
            for g in range(4):
                A(f"v_cvt_pk_bf16_f32 v{b+4*g}, v{b+4*g}, v{b+4*g+1}")
                A(f"v_cvt_pk_bf16_f32 v{b+4*g+1}, v{b+4*g+2}, v{b+4*g+3}")
                A(f"ds_write_b64 v{VEW}, {vr(b+4*g,2)} offset:{t*32*RS + u*64 + g*16}")
    A("s_waitcnt lgkmcnt(0)")
    for i in range(8):
        A(f"ds_read_b128 {vr(32+4*i,4)}, v{VER} offset:{i*8*RS}")
    for i in range(8):
        A(f"s_waitcnt lgkmcnt({7-i})")
        A(f"buffer_store_dwordx4 {vr(32+4*i,4)}, v{VEG}, s[{SOUT}:{SOUT+3}], s{sWO} offen {ST}")
        if i < 7: A(f"s_add_u32 s{sWO}, s{sWO}, {8*4096}")
    stamp(A, 4)
    if DIAG: A("s_waitcnt vmcnt(0)")
    stamp(A, 5)
    stamp_out(A, 2, SO, sWAVE, 6)
    A.label("K3_END")
    A("s_endpgm")
    chk(A.lines, "k3")
    return header("out_kernel") + A.text() + descriptor("out_kernel", 128, 96)

def main():
    pos = [a for a in sys.argv[1:] if not a.startswith("--") and "=" not in a]
    out = pos[0] if pos else f"cdna_kernels/{KNAME}.s"
    ref = open(f"cdna_kernels/{KNAME}.s.ref").read().split("\n")
    head = [l for l in ref if l.startswith(";") and "@launch" not in l and "Override" not in l and "grid=ceil" not in l]
    head.append(f"; @launch kernel=proj_kernel grid=(256,1,1) block=(512,1,1) lds={K1_LDS}")
    head.append(f"; @launch kernel=attn_kernel grid=(256,1,1) block=(768,1,1) lds={K2_LDS}")
    head.append(f"; @launch kernel=out_kernel grid=(256,1,1) block=(512,1,1) lds={K3_LDS}")
    txt = "\n".join(head) + '\n.amdgcn_target "amdgcn-amd-amdhsa--gfx950"\n' + gen_k1() + gen_k2() + gen_k3()
    open(out, "w").write(txt)
    seen = set()
    for p in PROBS:
        if p not in seen:
            print("HAZARD", p); seen.add(p)
    print("written", out, len(txt))
main()
```

```python
import sys, math, os
from asmlib import *

KNAME = "concat_heads__linear_attn_block__grouped_kv_mqa__prompt"
OPT = dict(pf1=1, pfs="x013579b", pf0=1, pf2=1, hprio=2, aslist=0, wpre=5, slp=1)
for a in sys.argv[1:]:
    if "=" in a:
        k, v = a.lstrip("-").split("=", 1)
        OPT[k] = int(v) if v.lstrip("-").isdigit() else v.replace("+", " ")
DIAG = "--diag" in sys.argv

WS_QA = 0
WS_QB = 4 << 20
WS_OA = 8 << 20
WS_OB = 12 << 20
WS_KV = 16 << 20
WS_KVP = WS_KV + (256 << 10)
WS_ZP = WS_KVP + (1 << 20)
WS_FL = WS_ZP + (32 << 10)
FL_A, FL_O, FL_B = 0, 256 * 128, 512 * 128
WS_USED = WS_FL + (576 * 128)
WS_DIAG = 24 << 20
if DIAG: WS_USED = WS_DIAG + (2 << 20)

LOG2E = 1.4426950408889634
KSCALE = (32 ** -0.5) * LOG2E
EPS = 1e-6
OOB = 0x40000000

P1_STAGE, P1_WOFF, P1_EOFF = 53248, 32768, 49152
MISC = 3 * P1_STAGE
L_CNT1, L_CNTA, L_CNTB, L_XF = MISC, MISC + 4, MISC + 8, MISC + 16
L_GOB, L_GOA, L_GOO = MISC + 32, MISC + 36, MISC + 40
L_ZX = MISC + 64
L_KVX = MISC + 2048
L_WR = 0
L_QS = 16384
L_R = 81920
LDS_TOTAL = 163840

PROBS = []
def chk(lines, name):
    PROBS.extend(check_hazards(lines, name))
def mfma32(d, a, b, c=None):
    cs = vr(d, 16) if c is None else (vr(c, 16) if isinstance(c, int) else c)
    return f"v_mfma_f32_32x32x16_bf16 {vr(d,16)}, {vr(a,4)}, {vr(b,4)}, {cs}"
def mfma16(d, a, b, c=None):
    cs = vr(d, 4) if c is None else (vr(c, 4) if isinstance(c, int) else c)
    return f"v_mfma_f32_16x16x32_bf16 {vr(d,4)}, {vr(a,4)}, {vr(b,4)}, {cs}"

class VM:
    def __init__(self): self.q = []
    def add(self, tag, n=1): self.q += [tag] * n
    def has(self, tag): return tag in self.q
    def wait(self, A, *tags):
        idxs = [i for i, t in enumerate(self.q) if t in tags]
        if not idxs: return
        idx = max(idxs)
        n = len(self.q) - 1 - idx
        assert n <= 63
        A(f"s_waitcnt vmcnt({n})")
        self.q = self.q[idx + 1:]
    def clear(self): self.q = []

A = Asm()
pAX, pAW, pAWO, pBX, pBWQ, pBWK, pBWV, pBWO, pOUT, pDBG, pWS = 40, 42, 44, 46, 48, 50, 52, 54, 56, 58, 60
SX, SW, SE, SWS, SPF, SDBG = 4, 8, 12, 16, 64, 84
SWO, SOUT = 4, 8
sXCD, sIDX, sWAVE, sRB, sCBG, sT0, sW4, sT1 = 20, 21, 22, 23, 24, 25, 26, 27
sTYPE, sCOL, sS1, sS2, sWSTR, sROT, sBASE, sCNT, sDELTA, sWADV = 28, 29, 30, 31, 32, 33, 34, 35, 36, 37
sWM, sWN = 38, 39
sXO, sWO, sSTG = 68, 76, 80
sPOLL = 96

def srd(dst, lo, nbytes):
    A(f"s_mov_b32 s{dst}, s{lo}")
    A(f"s_and_b32 s{dst+1}, s{lo+1}, 0xffff")
    if isinstance(nbytes, int): A(f"s_mov_b32 s{dst+2}, {nbytes}")
    else: A(nbytes)
    A(f"s_mov_b32 s{dst+3}, 0x20000")

def stamp(i):
    if not DIAG: return
    A("s_memtime s[98:99]")
    A("s_memrealtime s[100:101]")
    A("s_waitcnt lgkmcnt(0)")
    A(f"v_writelane_b32 v255, s98, {i}")
    A(f"v_writelane_b32 v255, s100, {32+i}")
def stamp_out():
    if not DIAG: return
    A("s_getreg_b32 s98, hwreg(HW_REG_XCC_ID)")
    A("s_and_b32 s98, s98, 15")
    A("v_writelane_b32 v255, s98, 30")
    A(f"v_writelane_b32 v255, s{sTYPE}, 31")
    A("v_and_b32 v254, 63, v0")
    A("v_lshlrev_b32 v254, 2, v254")
    A("s_lshl_b32 s98, s2, 3")
    A(f"s_add_u32 s98, s98, s{sWAVE}")
    A("s_lshl_b32 s98, s98, 8")
    A(f"s_add_u32 s98, s98, {WS_DIAG}")
    A(f"buffer_store_dword v255, v254, s[{SWS}:{SWS+3}], s98 offen")

uid = [0]
def U(p):
    uid[0] += 1
    return f"{p}_{uid[0]}"

def poll(srdreg, soff, need, vtmp):
    L, D = U("POLL"), U("POLLD")
    A(f"s_mov_b32 s{sPOLL}, 300000")
    A(f"v_mov_b32 v{vtmp+1}, 0")
    A.label(L)
    A(f"buffer_load_dword v{vtmp}, v{vtmp+1}, s[{srdreg}:{srdreg+3}], {soff} offen sc1")
    A("s_waitcnt vmcnt(0)")
    A(f"v_cmp_gt_u32 vcc, {need}, v{vtmp}")
    A(f"s_sub_u32 s{sPOLL}, s{sPOLL}, 1")
    A(f"s_cbranch_vccz {D}")
    if OPT["slp"]: A(f"s_sleep {OPT['slp']}")
    A(f"s_cmp_lg_u32 s{sPOLL}, 0")
    A(f"s_cbranch_scc1 {L}")
    A.label(D)

def poll_shared(soff, need, lgo, vtmp):
    O_, D = U("PSO"), U("PSD")
    A(f"s_mov_b32 s{sPOLL+1}, {lgo}")
    A(f"s_cmp_eq_u32 s{sW4}, 0")
    A(f"s_cbranch_scc0 {O_}")
    poll(SWS, soff, need, vtmp)
    lds_flag_set(sPOLL + 1, vtmp, vtmp + 1)
    A(f"s_branch {D}")
    A.label(O_)
    lds_flag_wait(sPOLL + 1, vtmp, vtmp + 1, sleep=1)
    A.label(D)

def signal(lcnt, sfl, voff, smask, va, vb):
    D = U("SIG")
    A(f"v_mov_b32 v{va}, {lcnt}")
    A(f"v_mov_b32 v{vb}, 1")
    A("s_mov_b64 exec, 1")
    A("s_waitcnt vmcnt(0)")
    A(f"ds_add_rtn_u32 v{va}, v{va}, v{vb}")
    A("s_waitcnt lgkmcnt(0)")
    A(f"v_readfirstlane_b32 s{sPOLL}, v{va}")
    A(f"s_mov_b64 exec, {smask}")
    A(f"s_cmp_eq_u32 s{sPOLL}, 3")
    A(f"s_cbranch_scc0 {D}")
    A(f"buffer_atomic_add v{vb}, v{voff}, s[{SWS}:{SWS+3}], s{sfl} offen sc1")
    A.label(D)
    A("s_mov_b64 exec, -1")

def lds_flag_set(addr_sgpr, va, vb):
    A(f"v_mov_b32 v{va}, s{addr_sgpr}")
    A(f"v_mov_b32 v{vb}, 1")
    A("s_waitcnt lgkmcnt(0)")
    A(f"ds_write_b32 v{va}, v{vb}")
def lds_flag_wait(addr_sgpr, va, vb, sleep=0):
    L = U("LFW")
    A(f"v_mov_b32 v{va}, s{addr_sgpr}")
    A.label(L)
    if sleep: A(f"s_sleep {sleep}")
    A(f"ds_read_b32 v{vb}, v{va}")
    A("s_waitcnt lgkmcnt(0)")
    A(f"v_cmp_eq_u32 vcc, 0, v{vb}")
    A("s_nop 0")
    A(f"s_cbranch_vccnz {L}")

def entry():
    A("s_cmp_ge_u32 s2, 256")
    A("s_cbranch_scc1 K_END")
    A("s_load_dwordx16 s[40:55], s[0:1], 0")
    A("s_load_dwordx4 s[56:59], s[0:1], 64")
    A("s_load_dwordx2 s[60:61], s[0:1], 80")
    if DIAG: A("v_mov_b32 v255, 0")
    A("v_lshrrev_b32 v1, 6, v0")
    A("v_and_b32 v2, 63, v0")
    A(f"s_and_b32 s{sXCD}, s2, 7")
    A(f"s_lshr_b32 s{sIDX}, s2, 3")
    A(f"v_readfirstlane_b32 s{sWAVE}, v1")
    A(f"s_lshr_b32 s{sT1}, s{sXCD}, 1")
    A(f"s_and_b32 s{sW4}, s{sXCD}, 1")
    A(f"s_mov_b32 s{sS1}, 32")
    A(f"s_mov_b32 s{sS2}, 64")
    A(f"s_cmp_lt_u32 s{sIDX}, 8")
    A("s_cbranch_scc0 K1_MAPA")
    A(f"s_lshl_b32 s{sRB}, s{sT1}, 1")
    A(f"s_and_b32 s{sT0}, s{sIDX}, 1")
    A(f"s_add_u32 s{sRB}, s{sRB}, s{sT0}")
    A(f"s_lshl_b32 s{sCBG}, s{sW4}, 2")
    A(f"s_lshr_b32 s{sT0}, s{sIDX}, 1")
    A(f"s_add_u32 s{sCBG}, s{sCBG}, s{sT0}")
    A(f"s_mov_b32 s{sTYPE}, 2")
    A(f"s_lshl_b32 s{sCOL}, s{sCBG}, 7")
    A(f"s_mov_b32 s{sWSTR}, 2048")
    A(f"s_lshr_b32 s{sROT}, s{sCBG}, 1")
    A("s_branch K1_MAPD")
    A.label("K1_MAPA")
    A(f"s_mov_b32 s{sWSTR}, 6144")
    A(f"s_mov_b32 s{sROT}, 0")
    A(f"s_lshl_b32 s{sRB}, s{sW4}, 2")
    A(f"s_and_b32 s{sT0}, s{sIDX}, 3")
    A(f"s_add_u32 s{sRB}, s{sRB}, s{sT0}")
    A(f"s_lshr_b32 s{sT0}, s{sIDX}, 2")
    A(f"s_cmp_lt_u32 s{sT0}, 4")
    A("s_cbranch_scc0 K1_MAPKV")
    A(f"s_lshl_b32 s{sCBG}, s{sT1}, 1")
    A(f"s_add_u32 s{sCBG}, s{sCBG}, s{sT0}")
    A(f"s_sub_u32 s{sCBG}, s{sCBG}, 2")
    A(f"s_mov_b32 s{sTYPE}, 0")
    A(f"s_lshl_b32 s{sCOL}, s{sCBG}, 7")
    A("s_branch K1_MAPD")
    A.label("K1_MAPKV")
    A(f"s_lshl_b32 s{sCBG}, s{sT1}, 2")
    A(f"s_add_u32 s{sCBG}, s{sCBG}, s{sT0}")
    A(f"s_sub_u32 s{sCBG}, s{sCBG}, 4")
    A(f"s_mov_b32 s{sTYPE}, 1")
    A(f"s_lshl_b32 s{sCOL}, s{sCBG}, 6")
    A(f"s_add_u32 s{sCOL}, s{sCOL}, 1024")
    A(f"s_mov_b32 s{sS1}, 1024")
    A(f"s_mov_b32 s{sS2}, 32")
    A.label("K1_MAPD")
    A(f"s_cmp_lt_u32 s{sWAVE}, 4")
    A("s_cbranch_scc1 K1_COMPUTE")

def build_srds_p1():
    A("s_waitcnt lgkmcnt(0)")
    A(f"s_cmp_eq_u32 s{sTYPE}, 2")
    A(f"s_cselect_b64 s[62:63], s[{pBX}:{pBX+1}], s[{pAX}:{pAX+1}]")
    A(f"s_cselect_b64 s[94:95], s[{pBWQ}:{pBWQ+1}], s[{pAW}:{pAW+1}]")
    srd(SX, 62, 4 << 20)
    srd(SW, 94, f"s_lshl_b32 s{SW+2}, s{sWSTR}, 10")
    A(f"s_bitcmp1_b32 s{sCBG}, 0")
    A(f"s_cselect_b64 s[62:63], s[{pBWV}:{pBWV+1}], s[{pBWK}:{pBWK+1}]")
    srd(SE, 62, 65536)
def build_srds_common():
    srd(SWS, pWS, WS_USED)
    srd(SDBG, pDBG, 256)

VPFA, VPFD = 10, 11
sPFO, sPFA, sT2, sT3 = 82, 83, 30, 31
def pf_setup(role, member):
    W, D = U("PFW"), U("PFD")
    A(f"s_cmp_lt_u32 s{role}, 2")
    A(f"s_cbranch_scc0 {W}")
    A("v_lshrrev_b32 v12, 1, v2")
    A(f"v_lshlrev_b32 v{VPFA}, 11, v12")
    A("v_and_b32 v12, 1, v2")
    A(f"v_lshl_add_u32 v{VPFA}, v12, 7, v{VPFA}")
    A(f"s_lshl_b32 s{sPFO}, s{member}, 16")
    A(f"s_mov_b32 s{sPFA}, 256")
    A(f"s_cmp_eq_u32 s{role}, 1")
    A(f"s_cselect_b64 s[62:63], s[{pBX}:{pBX+1}], s[{pAX}:{pAX+1}]")
    A(f"s_mov_b32 s{sT2}, 4")
    A(f"s_branch {D}")
    A.label(W)
    A(f"v_lshlrev_b32 v{VPFA}, 7, v2")
    A(f"s_lshl_b32 s{sT2}, s{member}, 1")
    A(f"s_add_u32 s{sT2}, s{sT2}, s{role}")
    A(f"s_sub_u32 s{sT2}, s{sT2}, 2")
    A(f"s_sub_u32 s{sT3}, s{sT2}, 96")
    A(f"s_cmp_lt_u32 s{sT2}, 96")
    A(f"s_cselect_b32 s{sPFO}, s{sT2}, s{sT3}")
    A(f"s_cselect_b64 s[62:63], s[{pAW}:{pAW+1}], s[{pBWQ}:{pBWQ+1}]")
    A(f"s_cselect_b32 s{sT2}, 6, 2")
    A(f"s_lshl_b32 s{sPFA}, s{sT2}, 17")
    A(f"s_lshl_b32 s{sPFO}, s{sPFO}, 13")
    A.label(D)
    srd(SPF, 62, f"s_lshl_b32 s{SPF+2}, s{sT2}, 20")

def p1_loader():
    VX, VW, VE = 3, 6, 7
    A(f"s_sub_u32 s{sW4}, s{sWAVE}, 4")
    A("v_lshrrev_b32 v4, 4, v2")
    A(f"s_lshl_b32 s{sT0}, s{sW4}, 2")
    A(f"v_add_u32 v4, s{sT0}, v4")
    A("v_and_b32 v4, 7, v4")
    A("v_and_b32 v5, 7, v2")
    A("v_xor_b32 v4, v4, v5")
    A("v_lshlrev_b32 v4, 4, v4")
    A("v_lshrrev_b32 v5, 3, v2")
    A("v_lshlrev_b32 v5, 11, v5")
    A(f"v_add_u32 v{VX}, v4, v5")
    A(f"s_lshl_b32 s{sT1}, s{sRB}, 5")
    A(f"s_add_u32 s{sT1}, s{sT1}, s{sW4}")
    A(f"s_lshl_b32 s{sT1}, s{sT1}, 14")
    for n in range(4):
        A(f"s_add_u32 s{sT0}, s{sROT}, {n}")
        A(f"s_and_b32 s{sT0}, s{sT0}, 3")
        A(f"s_lshl_b32 s{sT0}, s{sT0}, 16")
        A(f"s_add_u32 s{sXO+n}, s{sT0}, s{sT1}")
        A(f"s_add_u32 s{sXO+n+4}, s{sXO+n}, {4<<16}")
    A("v_lshrrev_b32 v4, 4, v2")
    A("v_and_b32 v5, 15, v2")
    A("v_lshlrev_b32 v8, 2, v4")
    A("v_xor_b32 v5, v5, v8")
    A(f"v_mul_lo_u32 v{VW}, v4, s{sWSTR}")
    A("v_and_b32 v8, 3, v5")
    A("v_lshlrev_b32 v8, 4, v8")
    A(f"v_add_u32 v{VW}, v{VW}, v8")
    A("v_bfe_u32 v8, v5, 2, 1")
    A(f"v_mul_lo_u32 v8, v8, s{sS1}")
    A("v_bfe_u32 v9, v5, 3, 1")
    A(f"v_mul_lo_u32 v9, v9, s{sS2}")
    A(f"v_add3_u32 v8, v8, v9, s{sCOL}")
    A(f"v_lshl_add_u32 v{VW}, v8, 1, v{VW}")
    A(f"s_lshl_b32 s{sT0}, s{sW4}, 2")
    A(f"s_mul_i32 s{sWO}, s{sT0}, s{sWSTR}")
    A(f"s_lshl_b32 s{sT0}, s{sWSTR}, 4")
    for n in range(1, 4):
        A(f"s_add_u32 s{sWO+n}, s{sWO+n-1}, s{sT0}")
    A(f"s_lshl_b32 s{sWADV}, s{sWSTR}, 6")
    A(f"s_lshl_b32 s{sT0}, s{sW4}, 10")
    A(f"v_lshl_add_u32 v{VE}, v2, 4, s{sT0}")
    A(f"s_mov_b32 s{sBASE}, s{sT0}")
    A(f"s_add_u32 s{sT1}, s{sT0}, {3*P1_STAGE}")
    build_srds_p1()
    stamp(0)
    sI1, sI2, sI3, sO2, sO3, sG, sM = 88, 89, 90, 91, 92, 38, 39
    def issue(isB):
        PF = OPT["pf1"] and not isB
        seq = []
        for n in range(8):
            seq.append((n * 4096, f"buffer_load_dwordx4 v{VX}, s[{SX}:{SX+3}], s{sXO+n} offen lds"))
        for n in range(4):
            seq.append((P1_WOFF + n * 4096, f"buffer_load_dwordx4 v{VW}, s[{SW}:{SW+3}], s{sWO+n} offen lds"))
        order = [0, 8, 1, 2, 9, 3, 4, 10, 5, 6, 11, 7]
        seq = [seq[i] for i in order]
        if isB:
            seq.insert(2, (P1_EOFF, f"buffer_load_dwordx4 v{VE}, s[{SE}:{SE+3}], 0 offen lds"))
        for off, ins in seq:
            A(f"s_add_u32 m0, s{sBASE}, {off}")
            A("s_nop 0")
            A(ins)
        if PF:
            A(f"s_cmp_eq_u32 s{sCNT}, 0")
            A("s_cbranch_scc0 K1_PFS")
            A(f"s_lshr_b32 s{sG}, s{sIDX}, 3")
            A(f"s_add_u32 s{sG}, s{sG}, 1")
            A(f"s_cmp_ge_u32 s{sG}, 3")
            A(f"s_cselect_b32 s{sM}, 3, 0")
            A(f"s_sub_u32 s{sG}, s{sG}, s{sM}")
            A(f"s_and_b32 s{sM}, s{sIDX}, 7")
            A(f"s_lshl_b32 s{sM}, s{sM}, 3")
            A(f"s_add_u32 s{sM}, s{sM}, s{sXCD}")
            pf_setup(sW4, sM)
            sched = [int(c, 16) for c in str(OPT["pfs"])[1:]]
            sched = (sched + [15] * 9)[:9]
            pk = [sum(sched[3 * r + g] << (4 * g) for g in range(3)) for r in range(3)]
            A(f"s_add_u32 s{sM}, s{sG}, 1")
            A(f"s_mul_i32 s{sM}, s{sM}, s{sPFA}")
            A(f"s_add_u32 s{sPFO}, s{sPFO}, s{sM}")
            A(f"s_mul_i32 s{sPFA}, s{sPFA}, 3")
            A(f"s_add_u32 s{sO2}, s{sPFO}, s{sPFA}")
            A(f"s_add_u32 s{sO3}, s{sO2}, s{sPFA}")
            A(f"s_cmp_eq_u32 s{sG}, 0")
            A(f"s_cselect_b32 s{sO3}, s{sO3}, {OOB}")
            A(f"s_lshl_b32 s{sG}, s{sG}, 2")
            for r, reg in enumerate((sI1, sI2, sI3)):
                A(f"s_lshr_b32 s{reg}, {pk[r]}, s{sG}")
                A(f"s_and_b32 s{reg}, s{reg}, 15")
            A.label("K1_PFS")
            A(f"s_cmp_eq_u32 s{sCNT}, s{sI1}")
            A(f"s_cselect_b32 s{sT2}, s{sPFO}, {OOB}")
            A(f"s_cmp_eq_u32 s{sCNT}, s{sI2}")
            A(f"s_cselect_b32 s{sT2}, s{sO2}, s{sT2}")
            A(f"s_cmp_eq_u32 s{sCNT}, s{sI3}")
            A(f"s_cselect_b32 s{sT2}, s{sO3}, s{sT2}")
            A(f"buffer_load_dword v{VPFD}, v{VPFA}, s[{SPF}:{SPF+3}], s{sT2} offen")
        A(f"v_add_u32 v{VX}, 128, v{VX}")
        A(f"v_add_u32 v{VW}, s{sWADV}, v{VW}")
        if isB:
            A(f"v_add_u32 v{VE}, 4096, v{VE}")
        A(f"s_add_u32 s{sBASE}, s{sBASE}, {P1_STAGE}")
        A(f"s_cmp_ge_u32 s{sBASE}, s{sT1}")
        A(f"s_cselect_b32 s{sBASE}, s{sT0}, s{sBASE}")
        return (13 if isB else 12) + (2 if PF else 0)
    A(f"s_mov_b32 s{sCNT}, 0")
    A(f"s_cmp_eq_u32 s{sTYPE}, 2")
    A("s_cbranch_scc1 K1_LINB")
    A("s_branch K1_LINA")
    for isB in (False, True):
        tag = "B" if isB else "A"
        n = (13 if isB else 12) + (2 if (OPT["pf1"] and not isB) else 0)
        A.label(f"K1_LLOOP{tag}")
        A(f"s_cmp_lt_u32 s{sCNT}, 2")
        A(f"s_cbranch_scc1 K1_LIN{tag}")
        A(f"s_waitcnt vmcnt({n})")
        A("s_barrier")
        A.label(f"K1_LIN{tag}")
        assert issue(isB) == n
        A(f"s_add_u32 s{sCNT}, s{sCNT}, 1")
        A(f"s_cmp_lt_u32 s{sCNT}, 16")
        A(f"s_cbranch_scc1 K1_LLOOP{tag}")
        A(f"s_waitcnt vmcnt({n})")
        if not isB: A("s_branch K1_LTAIL")
    A.label("K1_LTAIL")
    A("s_barrier")
    build_srds_common()
    A("s_waitcnt vmcnt(0)")
    A("s_barrier")
    A(f"s_cmp_eq_u32 s{sW4}, 0")
    A("s_cbranch_scc0 K1_NOINI")
    poll(SDBG, "0", 1, 4)
    A.label("K1_NOINI")
    A("s_barrier")
    stamp(1)

def p1_compute():
    A.label("K1_COMPUTE")
    XA, WA, EA = 16, 20, 22
    VPF = 24
    FB = [32, 60]
    FX = lambda b, t: FB[b] + 4 * t
    FW = lambda b, u: FB[b] + 16 + 4 * u
    FE = lambda b: FB[b] + 24
    XACC = 96
    ACC = lambda t, u: 112 + 16 * (2 * t + u)
    A(f"s_lshr_b32 s{sWM}, s{sWAVE}, 1")
    A(f"s_and_b32 s{sWN}, s{sWAVE}, 1")
    A("v_and_b32 v3, 31, v2")
    A("v_lshrrev_b32 v4, 5, v2")
    build_srds_p1()
    build_srds_common()
    stamp(0)
    A(f"s_cmp_eq_u32 s{sWAVE}, 0")
    A("s_cbranch_scc0 K1_NW0")
    if OPT["pf1"]:
        A("v_lshlrev_b32 v10, 7, v2")
        A(f"s_lshl_b32 s{sT0}, s{sRB}, 13")
        A(f"s_cmp_eq_u32 s{sTYPE}, 2")
        A(f"s_cselect_b32 s{sT0}, s{sT0}, {OOB}")
        A(f"buffer_load_dword v{VPF}, v10, s[{SE}:{SE+3}], s{sT0} offen")
    A("v_and_b32 v10, 15, v2")
    A("v_lshlrev_b32 v10, 2, v10")
    A(f"v_add_u32 v10, {MISC}, v10")
    A("v_mov_b32 v12, 0")
    A("ds_write_b32 v10, v12")
    A("s_waitcnt lgkmcnt(0)")
    A("s_branch K1_WD")
    A.label("K1_NW0")
    A(f"s_cmp_eq_u32 s{sWAVE}, 1")
    A("s_cbranch_scc0 K1_NW1")
    if OPT["pf0"]:
        A(f"s_and_b32 s{sT0}, s{sIDX}, 3")
        A(f"s_lshr_b32 s{sT1}, s2, 5")
        A(f"s_lshl_b32 s{sT1}, s{sT1}, 3")
        A(f"s_add_u32 s{sT1}, s{sT1}, s{sXCD}")
        pf_setup(sT0, sT1)
        A(f"buffer_load_dword v{VPF+1}, v{VPFA}, s[{SPF}:{SPF+3}], s{sPFO} offen")
    A("s_branch K1_WD")
    A.label("K1_NW1")
    A(f"s_cmp_eq_u32 s{sWAVE}, 2")
    A("s_cbranch_scc0 K1_WD")
    A("s_cmp_eq_u32 s2, 0")
    A("s_cbranch_scc0 K1_WD")
    A("v_lshlrev_b32 v10, 7, v2")
    A("v_mov_b32 v28, 0")
    A(f"s_mov_b32 s{sT0}, {WS_FL}")
    for i in range(9):
        A(f"buffer_store_dword v28, v10, s[{SWS}:{SWS+3}], s{sT0} offen sc1")
        A(f"s_add_u32 s{sT0}, s{sT0}, 8192")
    A("v_mov_b32 v12, 1")
    A("s_waitcnt vmcnt(0)")
    A(f"buffer_store_dword v12, v28, s[{SDBG}:{SDBG+3}], 0 offen sc1")
    A.label("K1_WD")
    A("v_bfe_u32 v5, v2, 1, 3")
    A(f"s_lshl_b32 s{sT0}, s{sWM}, 14")
    A(f"v_lshl_add_u32 v6, v3, 7, s{sT0}")
    for ks in range(4):
        A(f"v_add_u32 v7, {2*ks}, v4")
        A("v_xor_b32 v7, v7, v5")
        A(f"v_lshl_add_u32 v{XA+ks}, v7, 4, v6")
    A("v_bfe_u32 v5, v2, 2, 2")
    A("v_lshl_add_u32 v6, v4, 3, v5")
    A("v_bfe_u32 v7, v2, 4, 1")
    A("v_bfe_u32 v8, v2, 1, 1")
    A("v_lshl_add_u32 v7, v7, 1, v8")
    A("v_and_b32 v8, 1, v2")
    A("v_lshlrev_b32 v8, 3, v8")
    A("v_lshl_add_u32 v8, v6, 8, v8")
    for u in range(2):
        A(f"s_lshl_b32 s{sT0}, s{sWN}, 1")
        A(f"s_add_u32 s{sT0}, s{sT0}, {u}")
        A(f"v_xor_b32 v9, s{sT0}, v5")
        A("v_lshl_add_u32 v9, v9, 2, v7")
        A(f"v_lshl_add_u32 v{WA+u}, v9, 4, v8")
    A("v_bfe_u32 v7, v2, 4, 1")
    A("v_lshlrev_b32 v7, 5, v7")
    A("v_and_b32 v8, 3, v2")
    A("v_lshl_add_u32 v7, v8, 3, v7")
    A(f"v_lshl_add_u32 v{EA}, v6, 6, v7")
    A(f"s_cmp_eq_u32 s{sTYPE}, 2")
    A(f"s_cselect_b32 s{sT0}, 0, {hexf(EPS)}")
    A(f"s_cmp_eq_u32 s{sTYPE}, 0")
    A(f"s_cselect_b32 s{sT1}, {hexf(EPS)}, 0")
    for t in range(4):
        for r in range(16):
            A(f"v_mov_b32 v{ACC(t,0)+r}, s{sT0}")
            A(f"v_mov_b32 v{ACC(t,1)+r}, s{sT1}")
    for r in range(16):
        A(f"v_mov_b32 v{XACC+r}, 0")
    A(f"s_mov_b32 s{sSTG}, {P1_STAGE}")
    A(f"s_mov_b32 s{sBASE}, 0")
    A(f"s_mov_b32 s{sCNT}, 16")

    def reads(b, ks, extra):
        R = [f"ds_read_b128 {vr(FX(b,0),4)}, v{XA+ks} offset:0"]
        for u in range(2):
            R.append(f"ds_read_b64_tr_b16 {vr(FW(b,u),2)}, v{WA+u} offset:{P1_WOFF+ks*4096}")
            R.append(f"ds_read_b64_tr_b16 {vr(FW(b,u)+2,2)}, v{WA+u} offset:{P1_WOFF+ks*4096+1024}")
        for t in range(1, 4):
            R.append(f"ds_read_b128 {vr(FX(b,t),4)}, v{XA+ks} offset:{t*4096}")
        if extra:
            R.append(f"ds_read_b64_tr_b16 {vr(FE(b),2)}, v{EA} offset:{P1_EOFF+ks*1024}")
            R.append(f"ds_read_b64_tr_b16 {vr(FE(b)+2,2)}, v{EA} offset:{P1_EOFF+ks*1024+256}")
        return R
    def mainloop(tag, transposed, extra, par=None):
        ex = lambda st: extra if (par is None or (st & 1) == par) else None
        A.label(f"K1_ML{tag}")
        A("s_barrier")
        stamp(1)
        for r in reads(0, 0, ex(0)): A(r)
        A.label(f"K1_LOOP{tag}")
        start = len(A.lines)
        for s in range(4):
            b = s & 1
            mf = []
            for t in range(4):
                for u in range(2):
                    mf.append(mfma32(ACC(t,u), FW(b,u), FX(b,t)) if transposed else mfma32(ACC(t,u), FX(b,t), FW(b,u)))
            if ex(s) == "K": mf.append(mfma32(XACC, FE(b), FX(b,0)))
            if ex(s) == "V": mf.append(mfma32(XACC, FX(b,0), FE(b)))
            fill = reads(b ^ 1, (s + 1) & 3, ex(s + 1))
            post = []
            if s == 2:
                post = [f"s_add_u32 s{sBASE}, s{sBASE}, 1",
                        f"s_cmp_eq_u32 s{sBASE}, 3",
                        f"s_cselect_b32 s{sDELTA}, {-2*P1_STAGE & 0xffffffff}, s{sSTG}",
                        f"s_cselect_b32 s{sBASE}, 0, s{sBASE}"]
                post += [f"v_add_u32 v{XA+i}, s{sDELTA}, v{XA+i}" for i in range(7 if extra else 6)]
            if s == 3:
                post = [f"s_sub_u32 s{sCNT}, s{sCNT}, 1", f"s_cmp_lg_u32 s{sCNT}, 0"]
            A("s_waitcnt lgkmcnt(0)")
            for k, m in enumerate(mf):
                A(m)
                if s == 3 and k == 0: A("s_barrier")
                n = 2
                while n and fill:
                    A(fill.pop(0)); n -= 1
                if n == 2:
                    n = 4
                    while n and post:
                        A(post.pop(0)); n -= 1
            for p in post: A(p)
        A(f"s_cbranch_scc1 K1_LOOP{tag}")
        body = A.lines[start:]
        chk(body + body, f"k1 loop {tag}")
        stamp(2)
        A("s_waitcnt lgkmcnt(0)")
        A("s_nop 15")

    VC1, VC2, VEPS = 4, 6, 8
    def consts():
        A(f"v_mov_b32 v{VC1}, {hexf(LOG2E)}")
        A(f"v_mov_b32 v{VC1+1}, {hexf(LOG2E)}")
        A(f"v_mov_b32 v{VC2}, {hexf(-EPS*LOG2E)}")
        A(f"v_mov_b32 v{VC2+1}, {hexf(-EPS*LOG2E)}")
        A(f"v_mov_b32 v{VEPS}, {hexf(EPS)}")
    TMP = 32
    def pack_tile(base):
        for i in range(8):
            A(f"v_cvt_pk_bf16_f32 v{base+i}, v{base+2*i}, v{base+2*i+1}")
    def phi_tile(base):
        for i in range(8):
            A(f"v_pk_fma_f32 {vr(TMP+2*i,2)}, {vr(base+2*i,2)}, {vr(VC1,2)}, {vr(VC2,2)}")
        for i in range(16):
            A(f"v_exp_f32 v{TMP+i}, v{TMP+i} clamp")
            A(f"v_max_f32 v{base+i}, v{base+i}, v{VEPS}")
        for i in range(8):
            A(f"v_pk_add_f32 {vr(base+2*i,2)}, {vr(base+2*i,2)}, {vr(TMP+2*i,2)}")
        pack_tile(base)
    def q_store_setup(wsoff):
        A("v_lshlrev_b32 v3, 4, v2")
        A(f"s_lshl_b32 s{sT1}, s{sCBG}, 1")
        A(f"s_add_u32 s{sT1}, s{sT1}, s{sWN}")
        A(f"s_lshl_b32 s{sT1}, s{sT1}, 12")
        A(f"s_add_u32 s{sT1}, s{sT1}, {wsoff}")
        A(f"s_lshl_b32 s{sXO+4}, s{sRB}, 1")
        A(f"s_add_u32 s{sXO+4}, s{sXO+4}, s{sWM}")
        A(f"s_lshl_b32 s{sXO+4}, s{sXO+4}, 2")
        for t in range(4):
            A(f"s_add_u32 s{sT0}, s{sROT}, {t}")
            A(f"s_and_b32 s{sT0}, s{sT0}, 3")
            A(f"s_add_u32 s{sT0}, s{sT0}, s{sXO+4}")
            if t == 0: A(f"s_mov_b32 s{sXO+5}, s{sT0}")
            A(f"s_lshl_b32 s{sT0}, s{sT0}, 16")
            A(f"s_add_u32 s{sXO+t}, s{sT0}, s{sT1}")
    def q_store(t, u):
        for half in range(2):
            A(f"buffer_store_dwordx4 {vr(ACC(t,u)+4*half,4)}, v3, s[{SWS}:{SWS+3}], s{sXO+t} offen offset:{u*2048+half*1024} sc1")
    sFL = sXO + 6

    A(f"s_cmp_eq_u32 s{sTYPE}, 1")
    A("s_cbranch_scc1 K1_MLN")
    A(f"s_cmp_eq_u32 s{sTYPE}, 0")
    A("s_cbranch_scc1 K1_MLT")
    A(f"s_cmp_eq_u32 s{sWN}, 1")
    A("s_cbranch_scc1 K1_B1")
    A(f"s_bitcmp1_b32 s{sCBG}, 0")
    A("s_cbranch_scc1 K1_MLTV0")
    mainloop("TK0", True, "K", 0)
    A(f"s_mov_b32 s{sDELTA}, {WS_KV}")
    A(f"v_mov_b32 v{VC1}, {hexf(KSCALE)}")
    A("s_branch K1_EPX")
    mainloop("TV0", True, "V", 0)
    A(f"s_mov_b32 s{sDELTA}, {WS_KV + 2048}")
    A(f"v_mov_b32 v{VC1}, 1.0")
    A.label("K1_EPX")
    A(f"v_mov_b32 v{VC1+1}, v{VC1}")
    q_store_setup(WS_QB)
    A(f"s_lshl_b32 s{sT0}, s{sWM}, 12")
    A(f"v_add_u32 v6, s{sT0}, v3")
    A(f"s_lshl_b32 s{sT0}, s{sWM}, 2")
    A(f"s_add_u32 s{sT0}, s{sT0}, {L_XF}")
    lds_flag_wait(sT0, 8, 9)
    for q in range(4):
        A(f"ds_read_b128 {vr(TMP+4*q,4)}, v6 offset:{q*1024}")
    A(f"s_lshl_b32 s{sT0}, s{sXO+5}, 12")
    A(f"s_add_u32 s{sT0}, s{sT0}, s{sDELTA}")
    A("s_waitcnt lgkmcnt(0)")
    for i in range(8):
        A(f"v_pk_add_f32 {vr(XACC+2*i,2)}, {vr(XACC+2*i,2)}, {vr(TMP+2*i,2)}")
    for i in range(8):
        A(f"v_pk_mul_f32 {vr(XACC+2*i,2)}, {vr(XACC+2*i,2)}, {vr(VC1,2)}")
    pack_tile(XACC)
    for half in range(2):
        A(f"buffer_store_dwordx4 {vr(XACC+4*half,4)}, v3, s[{SWS}:{SWS+3}], s{sT0} offen offset:{half*1024} sc1")
    A("s_branch K1_EPQB")
    A.label("K1_B1")
    A(f"s_bitcmp1_b32 s{sCBG}, 0")
    A("s_cbranch_scc1 K1_MLTV1")
    mainloop("TK1", True, "K", 1)
    A("s_branch K1_EPX1")
    mainloop("TV1", True, "V", 1)
    A.label("K1_EPX1")
    A(f"s_lshl_b32 s{sT0}, s{sWM}, 12")
    A(f"v_lshl_add_u32 v6, v2, 4, s{sT0}")
    for q in range(4):
        A(f"ds_write_b128 v6, {vr(XACC+4*q,4)} offset:{q*1024}")
    A(f"s_lshl_b32 s{sT0}, s{sWM}, 2")
    A(f"s_add_u32 s{sT0}, s{sT0}, {L_XF}")
    lds_flag_set(sT0, 8, 9)
    q_store_setup(WS_QB)
    A.label("K1_EPQB")
    for t in range(4):
        for u in range(2):
            pack_tile(ACC(t,u))
            q_store(t, u)
    A(f"s_mov_b32 s{sFL}, {WS_FL + FL_B}")
    A("v_lshlrev_b32 v10, 7, v2")
    A("s_mov_b64 s[92:93], -1")
    A("s_branch K1_DONE")
    mainloop("T", True, None)
    consts()
    q_store_setup(WS_QA)
    for t in range(4):
        for u in range(2):
            phi_tile(ACC(t,u))
            q_store(t, u)
    A(f"s_lshl_b32 s{sFL}, s{sRB}, 3")
    A(f"s_add_u32 s{sFL}, s{sFL}, s{sCBG}")
    A(f"s_lshl_b32 s{sFL}, s{sFL}, 9")
    A(f"s_add_u32 s{sFL}, s{sFL}, {WS_FL + FL_A}")
    A("v_lshlrev_b32 v10, 7, v2")
    A("s_mov_b64 s[92:93], 15")
    A("s_branch K1_DONE")
    mainloop("N", False, None)
    consts()
    ONES = 12
    KVD, ZD = 64, 80
    for i in range(4):
        A(f"v_mov_b32 v{ONES+i}, 0x3f803f80")
    for t in range(4):
        phi_tile(ACC(t,0))
        pack_tile(ACC(t,1))
        A("s_nop 1")
        for half in range(2):
            first = (t == 0 and half == 0)
            A(mfma32(KVD, ACC(t,0)+4*half, ACC(t,1)+4*half, "0" if first else None))
            A(mfma32(ZD, ONES, ACC(t,0)+4*half, "0" if first else None))
    A("v_lshlrev_b32 v3, 4, v2")
    A(f"s_lshl_b32 s{sT0}, s{sWN}, 13")
    A(f"v_add_u32 v5, s{sT0}, v3")
    A(f"s_lshl_b32 s{sT0}, s{sCBG}, 1")
    A(f"s_add_u32 s{sT0}, s{sT0}, s{sWN}")
    A(f"s_lshl_b32 s{sXO}, s{sT0}, 3")
    A(f"s_add_u32 s{sXO}, s{sXO}, s{sRB}")
    A(f"s_lshl_b32 s{sXO+1}, s{sXO}, 7")
    A(f"s_add_u32 s{sXO+1}, s{sXO+1}, {WS_ZP}")
    A(f"s_lshl_b32 s{sXO}, s{sXO}, 12")
    A(f"s_add_u32 s{sXO}, s{sXO}, {WS_KVP}")
    A("v_and_b32 v4, 31, v2")
    A("v_lshlrev_b32 v4, 2, v4")
    A(f"s_lshl_b32 s{sFL}, s{sCBG}, 8")
    A(f"s_add_u32 s{sFL}, s{sFL}, {WS_FL + FL_A}")
    A("v_lshrrev_b32 v10, 1, v2")
    A("v_lshlrev_b32 v10, 5, v10")
    A("v_and_b32 v11, 1, v2")
    A("v_add_lshl_u32 v10, v10, v11, 7")
    A("s_mov_b64 s[92:93], 0xffff")
    A(f"s_lshl_b32 s{sT0}, s{sWN}, 2")
    A(f"s_add_u32 s{sT0}, s{sT0}, {L_XF}")
    A(f"s_cmp_eq_u32 s{sWM}, 0")
    A("s_cbranch_scc1 K1_KVR")
    for q in range(4):
        A(f"ds_write_b128 v5, {vr(KVD+4*q,4)} offset:{q*1024}")
    A(f"ds_write_b32 v5, v{ZD} offset:4096")
    lds_flag_set(sT0, 8, 9)
    A("s_branch K1_DONE")
    A.label("K1_KVR")
    lds_flag_wait(sT0, 8, 9)
    for q in range(4):
        A(f"ds_read_b128 {vr(TMP+4*q,4)}, v5 offset:{q*1024}")
    A(f"ds_read_b32 v{TMP+16}, v5 offset:4096")
    A("s_waitcnt lgkmcnt(0)")
    for i in range(8):
        A(f"v_pk_add_f32 {vr(KVD+2*i,2)}, {vr(KVD+2*i,2)}, {vr(TMP+2*i,2)}")
    A(f"v_add_f32 v{ZD}, v{ZD}, v{TMP+16}")
    for q in range(4):
        A(f"buffer_store_dwordx4 {vr(KVD+4*q,4)}, v3, s[{SWS}:{SWS+3}], s{sXO} offen offset:{q*1024} sc1")
    A(f"buffer_store_dword v{ZD}, v4, s[{SWS}:{SWS+3}], s{sXO+1} offen sc1")
    A.label("K1_DONE")
    stamp(3)
    return sFL

sH, sRB8, sQO, sHW, sM0, sGO, sNB = 23, 24, 29, 26, 30, 31, 32
VL16 = 1
def p2_common():
    A(f"s_and_b32 s{sH}, s2, 31")
    A(f"s_lshr_b32 s{sRB8}, s2, 5")
    A(f"v_lshlrev_b32 v{VL16}, 4, v2")
    A("v_lshrrev_b32 v7, 5, v2")
    A(f"s_and_b32 s{sHW}, s{sWAVE}, 3")
    A(f"s_lshl_b32 s{sQO}, s{sRB8}, 2")
    A(f"s_add_u32 s{sQO}, s{sQO}, s{sHW}")
    A(f"s_lshl_b32 s{sQO}, s{sQO}, 17")
    A(f"s_lshl_b32 s{sT0}, s{sH}, 11")
    A(f"s_add_u32 s{sQO}, s{sQO}, s{sT0}")

AT = dict(Q=[16, 128], ONES=24, KF=28, VF=36, P=44, L=[52, 56], S=[64, 80], O=[96, 140], NEGM=[112, 156])
def p2_attn(sFL1):
    VCUR, VNXT = 3, 4
    Q, ONES, KF, VF, P, L, S, O, NEGM = (AT[k] for k in ("Q", "ONES", "KF", "VF", "P", "L", "S", "O", "NEGM"))
    p2_common()
    signal(L_CNT1, sFL1, 10, "s[92:93]", 8, 9)
    stamp(4)
    A("v_bfe_u32 v8, v2, 2, 1")
    A("v_bfe_u32 v9, v2, 4, 1")
    A("v_cmp_eq_u32 vcc, v8, v9")
    A("v_mov_b32 v8, 0x3f803f80")
    A(f"v_add_u32 v{VCUR}, {L_R}, v{VL16}")
    A(f"v_cndmask_b32 v{ONES}, 0, v8, vcc")
    for i in range(1, 4):
        A(f"v_mov_b32 v{ONES+i}, v{ONES}")
    for x in range(2):
        for i in range(16):
            A(f"v_mov_b32 v{O[x]+i}, 0")
        for i in range(4):
            A(f"v_mov_b32 v{L[x]+i}, 0")
    for i in range(4):
        A(f"v_mov_b32 v{VF+4+i}, 0")
        A(f"v_mov_b32 v{P+4+i}, 0")
    A(f"v_add_u32 v{VNXT}, 16384, v{VCUR}")
    A(f"s_lshl_b32 s{sT0}, s{sHW}, 12")
    A(f"v_add_u32 v5, s{sT0}, v{VL16}")
    A(f"s_mov_b32 s{sCNT}, 0")
    A("s_barrier")
    stamp(5)
    A(f"ds_read_b128 {vr(KF,4)}, v{VCUR}")
    A(f"ds_read_b128 {vr(Q[0],4)}, v5 offset:{L_QS}")
    A(f"ds_read_b128 {vr(Q[1],4)}, v5 offset:{L_QS+2048}")
    A(f"ds_read_b128 {vr(KF+4,4)}, v{VCUR} offset:1024")
    A(f"ds_read_b128 {vr(Q[0]+4,4)}, v5 offset:{L_QS+1024}")
    A(f"ds_read_b128 {vr(Q[1]+4,4)}, v5 offset:{L_QS+3072}")
    A(f"ds_read_b128 {vr(VF,4)}, v{VCUR} offset:2048")
    A("s_waitcnt lgkmcnt(4)")
    A(mfma32(S[0], KF, Q[0], "0"))
    A(mfma32(S[1], KF, Q[1], "0"))
    A("s_waitcnt lgkmcnt(1)")
    A(mfma32(S[0], KF+4, Q[0]+4))
    A(mfma32(S[1], KF+4, Q[1]+4))
    A("s_nop 10")
    for x in range(2):
        m = 8 + 2 * x
        A(f"v_max3_f32 v{m}, v{S[x]}, v{S[x]+1}, v{S[x]+2}")
        A(f"v_max3_f32 v{m+1}, v{S[x]+3}, v{S[x]+4}, v{S[x]+5}")
        for i in range(6, 14, 4):
            A(f"v_max3_f32 v{m}, v{m}, v{S[x]+i}, v{S[x]+i+1}")
            A(f"v_max3_f32 v{m+1}, v{m+1}, v{S[x]+i+2}, v{S[x]+i+3}")
        A(f"v_max3_f32 v{m}, v{m}, v{S[x]+14}, v{S[x]+15}")
        A(f"v_max_f32 v{m}, v{m}, v{m+1}")
        A(f"v_mov_b32 v{m+1}, v{m}")
    A("s_nop 0")
    A("v_permlane32_swap_b32 v8, v9")
    A("v_permlane32_swap_b32 v10, v11")
    A("v_max_f32 v8, v8, v9")
    A("v_max_f32 v10, v10, v11")
    for i in range(16):
        A(f"v_sub_f32 v{NEGM[1]+i}, 0, v10")
    for i in range(16):
        A(f"v_sub_f32 v{S[0]+i}, v{S[0]+i}, v8")
    for i in range(16):
        A(f"v_sub_f32 v{NEGM[0]+i}, 0, v8")
    stamp(6)
    A(".p2align 3")
    A.label("K2_LOOP")
    start = len(A.lines)
    for st in range(8):
        jj, x = st >> 1, st & 1
        Sc, Sn = S[x], S[x ^ 1]
        E = lambda i: f"v_exp_f32 v{Sc+i}, v{Sc+i}"
        C = lambda i: f"v_cvt_pk_bf16_f32 v{P+i}, v{Sc+2*i}, v{Sc+2*i+1}"
        def addr(tile, part):
            if tile < 4: return f"v{VCUR} offset:{tile*4096+part*1024}"
            return f"v{VNXT} offset:{(tile-4)*4096+part*1024}"
        rdK = [f"ds_read_b128 {vr(KF,4)}, {addr(jj+1,0)}", f"ds_read_b128 {vr(KF+4,4)}, {addr(jj+1,1)}"] if x == 0 else [None, None]
        rdV1 = f"ds_read_b128 {vr(VF+4,4)}, {addr(jj,3)}" if x == 0 else None
        rdV0 = f"ds_read_b128 {vr(VF,4)}, {addr(jj+1,2)}" if x == 1 else None
        bar = "s_barrier" if st == 6 else None
        sal = [None] * 4
        if st == 5: sal = [f"s_add_u32 s{sNB}, s{sCNT}, 2", f"s_and_b32 s{sNB}, s{sNB}, 3", f"s_lshl_b32 s{sNB}, s{sNB}, 14", f"s_add_u32 s{sNB}, s{sNB}, {L_R}"]
        if st == 7: sal = [f"s_add_u32 s{sCNT}, s{sCNT}, 1", f"s_cmp_lt_u32 s{sCNT}, 16", None, None]
        seq = [mfma32(Sn, KF, Q[x^1], NEGM[x^1]), bar, rdK[0], sal[0], E(0), E(1), E(2), E(3),
               mfma32(Sn, KF+4, Q[x^1]+4), rdK[1], "s_waitcnt lgkmcnt(0)" if x == 1 else None,
               C(0), C(1), E(4), E(5), E(6),
               mfma32(O[x^1], VF+4, P+4), rdV1, sal[1], E(7), C(2), C(3), E(8),
               mfma16(L[x^1], ONES, P+4), "s_waitcnt lgkmcnt(3)" if x == 0 else None, sal[2], E(9), E(10),
               mfma32(O[x], VF, P), rdV0, E(11), C(4), C(5), E(12),
               mfma16(L[x], ONES, P), "s_waitcnt lgkmcnt(1)" if x == 0 else None, sal[3],
               E(13), E(14), E(15), C(6), C(7)]
        for ins in seq:
            if ins: A(ins)
    A(f"v_mov_b32 v{VCUR}, v{VNXT}")
    A(f"v_add_u32 v{VNXT}, s{sNB}, v{VL16}")
    A("s_cbranch_scc1 K2_LOOP")
    body = A.lines[start:]
    chk(body + body, "k2 loop")
    stamp(7)
    A(mfma32(O[1], VF+4, P+4))
    A(mfma16(L[1], ONES, P+4))
    sO0, sO1, sFL = 68, 69, 70
    A(f"s_add_u32 s{sO0}, s{sQO}, {WS_OB}")
    A(f"s_add_u32 s{sO1}, s{sO0}, 65536")
    A(f"v_mov_b32 v10, {hexf(2.0**120)}")
    A(f"v_mov_b32 v11, {hexf(2.0**60)}")
    first = True
    for x in range(2):
        for i in range(0, 16, 2):
            if first:
                A(f"v_add_f32 v8, |v{O[x]}|, |v{O[x]+1}|"); A(f"v_mov_b32 v9, 0"); first = False
            else:
                A(f"v_add_f32 v8, v8, |v{O[x]+i}|")
                A(f"v_add_f32 v9, v9, |v{O[x]+i+1}|")
    A(f"v_cmp_nlt_f32 vcc, v{L[0]}, v11")
    A(f"v_cmp_nlt_f32 s[72:73], v{L[1]}, v11")
    A("v_add_f32 v8, v8, v9")
    A("v_cmp_nlt_f32 s[74:75], v8, v10")
    A("s_or_b64 vcc, vcc, s[72:73]")
    A("s_nop 1")
    A("s_or_b64 vcc, vcc, s[74:75]")
    A("s_cbranch_vccnz K2_SLOW")
    A.label("K2_FIN")
    A(f"v_rcp_f32 v8, v{L[0]}")
    A(f"v_rcp_f32 v10, v{L[1]}")
    A("v_mov_b32 v9, v8")
    A("v_mov_b32 v11, v10")
    for x in range(2):
        for i in range(8):
            A(f"v_pk_mul_f32 {vr(O[x]+2*i,2)}, {vr(O[x]+2*i,2)}, v[{8+2*x}:{9+2*x}]")
        for i in range(8):
            A(f"v_cvt_pk_bf16_f32 v{O[x]+i}, v{O[x]+2*i}, v{O[x]+2*i+1}")
        for half in range(2):
            A(f"buffer_store_dwordx4 {vr(O[x]+4*half,4)}, v{VL16}, s[{SWS}:{SWS+3}], s{sO0+x} offen offset:{half*1024} sc1")
    A(f"s_lshl_b32 s{sFL}, s{sRB8}, 11")
    A(f"s_add_u32 s{sFL}, s{sFL}, {WS_FL + FL_O + 128 * 128}")
    stamp(8)
    return sFL

def p2_slow():
    Q, ONES, KF, VF, P, L, S, O, NEGM = (AT[k] for k in ("Q", "ONES", "KF", "VF", "P", "L", "S", "O", "NEGM"))
    A.label("K2_SLOW")
    sK = 33
    for x in range(2):
        A(f"v_mov_b32 v8, 0xff800000")
        A(f"s_mov_b32 s{sK}, {WS_KV}")
        A(f"s_mov_b32 s{sCNT}, 0")
        A("s_waitcnt lgkmcnt(0)")
        A.label(f"K2_SLOW1{x}")
        A(f"buffer_load_dwordx4 {vr(KF,4)}, v{VL16}, s[{SWS}:{SWS+3}], s{sK} offen sc1")
        A(f"buffer_load_dwordx4 {vr(KF+4,4)}, v{VL16}, s[{SWS}:{SWS+3}], s{sK} offen offset:1024 sc1")
        A("s_waitcnt vmcnt(0)")
        A(mfma32(S[0], KF, Q[x], "0"))
        A(mfma32(S[0], KF+4, Q[x]+4))
        A("s_nop 15")
        for i in range(0, 16, 2):
            A(f"v_max3_f32 v8, v8, v{S[0]+i}, v{S[0]+i+1}")
        A(f"s_add_u32 s{sK}, s{sK}, 4096")
        A(f"s_add_u32 s{sCNT}, s{sCNT}, 1")
        A(f"s_cmp_lt_u32 s{sCNT}, 64")
        A(f"s_cbranch_scc1 K2_SLOW1{x}")
        A("v_mov_b32 v9, v8")
        A("s_nop 1")
        A("v_permlane32_swap_b32 v8, v9")
        A("v_max_f32 v8, v8, v9")
        for i in range(16):
            A(f"v_sub_f32 v{NEGM[0]+i}, 0, v8")
            A(f"v_mov_b32 v{O[x]+i}, 0")
        for i in range(4):
            A(f"v_mov_b32 v{L[x]+i}, 0")
        A(f"s_mov_b32 s{sK}, {WS_KV}")
        A(f"s_mov_b32 s{sCNT}, 0")
        A.label(f"K2_SLOW2{x}")
        for i in range(2):
            A(f"buffer_load_dwordx4 {vr(KF+4*i,4)}, v{VL16}, s[{SWS}:{SWS+3}], s{sK} offen offset:{1024*i} sc1")
            A(f"buffer_load_dwordx4 {vr(VF+4*i,4)}, v{VL16}, s[{SWS}:{SWS+3}], s{sK} offen offset:{2048+1024*i} sc1")
        A("s_waitcnt vmcnt(0)")
        A(mfma32(S[0], KF, Q[x], NEGM[0]))
        A(mfma32(S[0], KF+4, Q[x]+4))
        A("s_nop 15")
        for i in range(16):
            A(f"v_exp_f32 v{S[0]+i}, v{S[0]+i}")
        A("s_nop 0")
        for i in range(8):
            A(f"v_cvt_pk_bf16_f32 v{P+i}, v{S[0]+2*i}, v{S[0]+2*i+1}")
        A("s_nop 1")
        A(mfma32(O[x], VF, P))
        A(mfma16(L[x], ONES, P))
        A(mfma32(O[x], VF+4, P+4))
        A(mfma16(L[x], ONES, P+4))
        A("s_nop 15")
        A(f"s_add_u32 s{sK}, s{sK}, 4096")
        A(f"s_add_u32 s{sCNT}, s{sCNT}, 1")
        A(f"s_cmp_lt_u32 s{sCNT}, 64")
        A(f"s_cbranch_scc1 K2_SLOW2{x}")
    A("s_branch K2_FIN")

sBR, sRB16, sCB = 88, 89, 90
def p3_decode():
    A(f"s_lshr_b32 s{sBR}, s{sXCD}, 2")
    A(f"s_and_b32 s{sRB16}, s{sXCD}, 1")
    A(f"s_lshl_b32 s{sRB16}, s{sRB16}, 3")
    A(f"s_and_b32 s{sT0}, s{sIDX}, 7")
    A(f"s_add_u32 s{sRB16}, s{sRB16}, s{sT0}")
    A(f"s_bfe_u32 s{sCB}, s{sXCD}, 0x10001")
    A(f"s_lshl_b32 s{sCB}, s{sCB}, 2")
    A(f"s_lshr_b32 s{sT0}, s{sIDX}, 3")
    A(f"s_add_u32 s{sCB}, s{sCB}, s{sT0}")

def p23_helper():
    KVP, ZP, PQ, KVA, ZA, NUM, DEN, VPF, VW, VFL, VT = 16, 48, 52, 68, 76, 84, 100, 116, 117, 118, 120
    sA0, sA1, sFL, sAO = 68, 69, 70, 71
    vm = VM()
    A(f"s_setprio {OPT['hprio']}")
    p2_common()
    p3_decode()
    A(f"s_lshl_b32 s{sM0}, s{sHW}, 12")
    A(f"s_add_u32 s{sGO}, s{sM0}, {WS_KV}")
    A(f"s_add_u32 s{sA0}, s{sQO}, {WS_QB}")
    A(f"s_add_u32 s{sA1}, s{sA0}, {65536 - 2048}")
    A(f"s_and_b32 s{sT0}, s2, 63")
    A(f"s_lshl_b32 s{sT0}, s{sT0}, 7")
    A(f"s_add_u32 s{sT0}, s{sT0}, {WS_FL + FL_B}")
    poll_shared(f"s{sT0}", 64, L_GOB, VT)
    stamp(2)
    nxt = [0]
    def dma_chunk():
        c = nxt[0]
        if c >= 16: return
        A(f"s_add_u32 m0, s{sM0}, {L_R + (c % 4) * 16384}")
        A("s_nop 0")
        for n in range(4):
            A(f"buffer_load_dwordx4 v{VL16}, s[{SWS}:{SWS+3}], s{sGO} offen offset:{n*1024} sc1 lds")
        A(f"s_add_u32 s{sGO}, s{sGO}, 16384")
        vm.add(("c", c), 4)
        nxt[0] += 1
    A(f"s_add_u32 m0, s{sM0}, {L_QS}")
    A("s_nop 0")
    for n in range(4):
        A(f"buffer_load_dwordx4 v{VL16}, s[{SWS}:{SWS+3}], s{sA0 + (n >> 1)} offen offset:{n*1024} sc1 lds")
    vm.add("q", 4)
    dma_chunk(); dma_chunk()
    A(f"s_cmp_eq_u32 s{sBR}, 1")
    A(f"s_cselect_b64 s[62:63], s[{pBWO}:{pBWO+1}], s[{pAWO}:{pAWO+1}]")
    srd(SWO, 62, 2 << 20)
    A("v_lshrrev_b32 v4, 4, v2")
    A("v_and_b32 v5, 15, v2")
    A("v_lshlrev_b32 v8, 2, v4")
    A("v_xor_b32 v5, v5, v8")
    A("v_lshlrev_b32 v4, 11, v4")
    A(f"v_lshl_add_u32 v{VW}, v5, 4, v4")
    A(f"s_lshl_b32 s{sT0}, s{sCB}, 8")
    A(f"v_add_u32 v{VW}, s{sT0}, v{VW}")
    A(f"s_lshl_b32 s{sWO}, s{sHW}, 13")
    for n in range(1, 4):
        A(f"s_add_u32 s{sWO+n}, s{sWO}, {n*16*2048}")
    sWD = 80
    A(f"s_lshl_b32 s{sWD}, s{sHW}, 10")
    nw = [0]
    def dma_w():
        s_ = nw[0]
        if s_ >= 16: return
        for n in range(4):
            A(f"s_add_u32 m0, s{sWD}, {L_WR + (s_ % 5) * 16384 + n * 4096}")
            A("s_nop 0")
            A(f"buffer_load_dwordx4 v{VW}, s[{SWO}:{SWO+3}], s{sWO+n} offen lds")
        A(f"v_add_u32 v{VW}, {64*2048}, v{VW}")
        vm.add(("w", s_), 4)
        nw[0] += 1
    no = [0]
    def dma_o():
        s_ = no[0]
        if s_ >= 16: return
        A(f"s_add_u32 m0, s{sM0}, {L_R + (s_ % 4) * 16384}")
        A("s_nop 0")
        for n in range(4):
            A(f"buffer_load_dwordx4 v{VL16}, s[{SWS}:{SWS+3}], s{sAO} offen offset:{n*1024} sc1 lds")
        A(f"s_add_u32 s{sAO}, s{sAO}, 4096")
        vm.add(("o", s_), 4)
        no[0] += 1
    def side_loads():
        A(f"s_lshl_b32 s{sT0}, s2, 7")
        A(f"s_add_u32 s{sT0}, s{sT0}, {WS_FL + FL_A}")
        poll_shared(f"s{sT0}", 9, L_GOA, VT)
        A(f"s_lshl_b32 s{sT0}, s{sH}, 15")
        A(f"s_lshl_b32 s{sT1}, s{sHW}, 10")
        A(f"s_add_u32 s{sT0}, s{sT0}, s{sT1}")
        A(f"s_add_u32 s{sT0}, s{sT0}, {WS_KVP}")
        for p in range(8):
            A(f"buffer_load_dwordx4 {vr(KVP+4*p,4)}, v{VL16}, s[{SWS}:{SWS+3}], s{sT0} offen sc1")
            if p < 7: A(f"s_add_u32 s{sT0}, s{sT0}, 4096")
        A("v_and_b32 v6, 31, v2")
        A("v_lshlrev_b32 v6, 2, v6")
        A("v_lshl_add_u32 v6, v7, 9, v6")
        A(f"s_lshl_b32 s{sT0}, s{sH}, 10")
        A(f"s_add_u32 s{sT0}, s{sT0}, {WS_ZP}")
        for i in range(4):
            A(f"buffer_load_dword v{ZP+i}, v6, s[{SWS}:{SWS+3}], s{sT0} offen offset:{i*128} sc1")
        A(f"s_add_u32 s{sA0}, s{sQO}, {WS_QA}")
        A(f"s_add_u32 s{sA1}, s{sA0}, 65536")
        for r in range(2):
            for half in range(2):
                A(f"buffer_load_dwordx4 {vr(PQ+8*r+4*half,4)}, v{VL16}, s[{SWS}:{SWS+3}], s{sA0+r} offen offset:{half*1024} sc1")
        vm.add("side", 16)
    def step_a():
        vm.wait(A, "side")
        n = 8
        while n > 1:
            n //= 2
            for i in range(n):
                for hf in range(2):
                    A(f"v_pk_add_f32 {vr(KVP+4*i+2*hf,2)}, {vr(KVP+4*i+2*hf,2)}, {vr(KVP+4*(i+n)+2*hf,2)}")
        A(f"s_lshr_b32 s{sT0}, s{sHW}, 1")
        A(f"s_lshl_b32 s{sT0}, s{sT0}, 10")
        A(f"s_and_b32 s{sT1}, s{sHW}, 1")
        A(f"s_lshl_b32 s{sT1}, s{sT1}, 3")
        A(f"s_add_u32 s{sT0}, s{sT0}, s{sT1}")
        A(f"s_add_u32 s{sT0}, s{sT0}, {L_KVX}")
        A(f"v_add_u32 v8, s{sT0}, v{VL16}")
        A(f"v_cvt_pk_bf16_f32 v{KVP}, v{KVP}, v{KVP+1}")
        A(f"v_cvt_pk_bf16_f32 v{KVP+1}, v{KVP+2}, v{KVP+3}")
        A(f"ds_write_b64 v8, {vr(KVP,2)}")
        A(f"s_cmp_eq_u32 s{sHW}, 0")
        A("s_cbranch_scc0 K2_NOZ")
        A(f"v_pk_add_f32 {vr(ZP,2)}, {vr(ZP,2)}, {vr(ZP+2,2)}")
        A("v_and_b32 v9, 31, v2")
        A(f"v_add_f32 v{ZP}, v{ZP}, v{ZP+1}")
        A("v_lshlrev_b32 v9, 1, v9")
        A(f"v_mov_b32 v{ZP+1}, v{ZP}")
        A(f"v_add_u32 v9, {L_ZX}, v9")
        A("s_nop 0")
        A(f"v_permlane32_swap_b32 v{ZP}, v{ZP+1}")
        A(f"v_add_f32 v{ZP}, v{ZP}, v{ZP+1}")
        A(f"v_cvt_pk_bf16_f32 v{ZP}, v{ZP}, v{ZP}")
        A(f"ds_write_b16 v9, v{ZP}")
        A.label("K2_NOZ")
        A("s_waitcnt lgkmcnt(0)")
    def step_b():
        A("v_lshlrev_b32 v10, 3, v7")
        A(f"v_add_u32 v10, {L_ZX}, v10")
        A(f"v_add_u32 v11, {L_KVX}, v{VL16}")
        A(f"ds_read2_b64 {vr(ZA,4)}, v10 offset0:0 offset1:2")
        A(f"ds_read2_b64 {vr(ZA+4,4)}, v10 offset0:4 offset1:6")
        A(f"ds_read_b128 {vr(KVA,4)}, v11")
        A(f"ds_read_b128 {vr(KVA+4,4)}, v11 offset:1024")
        A(f"s_add_u32 s{sA0}, s{sQO}, {WS_OA}")
        A(f"s_add_u32 s{sA1}, s{sA0}, 65536")
        A("s_waitcnt lgkmcnt(0)")
        NUMS, DENS = [NUM, 16], [DEN, 32]
        for r in range(2):
            A(mfma32(DENS[r], ZA, PQ+8*r, "0"))
            A(mfma32(DENS[r], ZA+4, PQ+8*r+4))
            A(mfma32(NUMS[r], KVA, PQ+8*r, "0"))
            A(mfma32(NUMS[r], KVA+4, PQ+8*r+4))
        A("s_nop 7")
        for r in range(2):
            N_ = NUMS[r]
            A(f"v_add_f32 v8, {hexf(EPS)}, v{DENS[r]}")
            A("v_rcp_f32 v8, v8")
            A("s_nop 0")
            A("v_mov_b32 v9, v8")
            for i in range(8):
                A(f"v_pk_mul_f32 {vr(N_+2*i,2)}, {vr(N_+2*i,2)}, v[8:9]")
            for i in range(8):
                A(f"v_cvt_pk_bf16_f32 v{N_+i}, v{N_+2*i}, v{N_+2*i+1}")
            for half in range(2):
                A(f"buffer_store_dwordx4 {vr(N_+4*half,4)}, v{VL16}, s[{SWS}:{SWS+3}], s{sA0+r} offen offset:{half*1024} sc1")
        vm.add("st", 4)
    def sig_oa():
        A(f"s_lshl_b32 s{sFL}, s{sRB8}, 11")
        A(f"s_add_u32 s{sFL}, s{sFL}, {WS_FL + FL_O}")
        A("v_lshlrev_b32 v10, 7, v2")
        signal(L_CNTA, sFL, 10, "0xffff", 8, 9)
        vm.clear()
        vm.add("flagst")
    def pf_wo():
        A("s_cmp_ge_u32 s2, 128")
        A(f"s_cselect_b64 s[62:63], s[{pBWO}:{pBWO+1}], s[{pAWO}:{pAWO+1}]")
        srd(SPF, 62, 2 << 20)
        A("v_lshlrev_b32 v8, 7, v2")
        A(f"s_and_b32 s{sT0}, s2, 127")
        A(f"s_lshl_b32 s{sT0}, s{sT0}, 1")
        A(f"s_add_u32 s{sT0}, s{sT0}, s{sHW}")
        A(f"s_lshl_b32 s{sT0}, s{sT0}, 13")
        A(f"s_cmp_lt_u32 s{sHW}, {2 if OPT['pf2'] else 0}")
        A(f"s_cselect_b32 s{sT0}, s{sT0}, {OOB}")
        A(f"buffer_load_dword v{VPF}, v8, s[{SPF}:{SPF+3}], s{sT0} offen")
        vm.add("pf")
    vm.wait(A, "q", ("c", 0))
    stamp(3)
    A("s_barrier")
    for c in range(1, 17):
        if c == 7: sig_oa()
        if c == 3: side_loads()
        lim = min(15, c + 1) if c >= 3 else 3
        k = 0
        while nxt[0] <= lim and k < 2:
            dma_chunk(); k += 1
        if c == 4: pf_wo()
        if c == 5: step_a()
        if c == 6: step_b()
        if 9 <= c < 9 + OPT["wpre"]: dma_w()
        vm.wait(A, ("c", c))
        A("s_barrier")
    stamp(4)
    A(f"s_lshl_b32 s{sAO}, s{sRB16}, 2")
    A(f"s_add_u32 s{sAO}, s{sAO}, s{sHW}")
    A(f"s_lshl_b32 s{sAO}, s{sAO}, 16")
    A(f"s_lshl_b32 s{sT0}, s{sBR}, 22")
    A(f"s_add_u32 s{sAO}, s{sAO}, s{sT0}")
    A(f"s_add_u32 s{sAO}, s{sAO}, {WS_OA}")
    A(f"s_lshl_b32 s{sT0}, s{sBR}, 4")
    A(f"s_add_u32 s{sT0}, s{sT0}, s{sRB16}")
    A(f"s_lshl_b32 s{sT0}, s{sT0}, 3")
    A(f"s_add_u32 s{sT0}, s{sT0}, s{sCB}")
    A(f"s_lshl_b32 s{sT0}, s{sT0}, 7")
    A(f"s_add_u32 s{sT0}, s{sT0}, {WS_FL + FL_O}")
    while nw[0] < 5: dma_w()
    poll_shared(f"s{sT0}", 32, L_GOO, VT)
    stamp(5)
    dma_o(); dma_o(); dma_o()
    for i in range(16):
        vm.wait(A, ("o", i), ("w", i))
        if i == 0: stamp(6)
        A("s_barrier")
        if no[0] <= i + 3: dma_o()
        if i >= 1 and nw[0] <= i + 4: dma_w()
    stamp(7)
    stamp_out()
    A("s_endpgm")

def p3_compute(sFL2):
    AA, WA = 16, 17
    FB = [32, 48]
    FA = lambda b, t: FB[b] + 4 * t
    FW = lambda b, u: FB[b] + 8 + 4 * u
    ACC = lambda t, u: 176 + 16 * (2 * t + u)
    sBO, sBW, sDO, sDW, sOUT = 30, 31, 32, 33, 71
    p3_decode()
    srd(SOUT, pOUT, 8 << 20)
    A(f"s_lshl_b32 s{sT0}, s{sWM}, 13")
    A(f"s_add_u32 s{sT0}, s{sT0}, {L_R}")
    A(f"v_lshl_add_u32 v{AA}, v2, 4, s{sT0}")
    A("v_lshrrev_b32 v4, 5, v2")
    A("v_bfe_u32 v5, v2, 2, 2")
    A("v_lshl_add_u32 v6, v4, 2, v5")
    A("v_bfe_u32 v7, v2, 4, 1")
    A("v_bfe_u32 v8, v2, 1, 1")
    A("v_lshl_add_u32 v7, v7, 1, v8")
    A("v_and_b32 v8, 1, v2")
    A("v_lshlrev_b32 v8, 3, v8")
    A("v_lshl_add_u32 v8, v6, 8, v8")
    for u in range(2):
        A(f"s_lshl_b32 s{sT0}, s{sWN}, 1")
        A(f"s_add_u32 s{sT0}, s{sT0}, {u}")
        A(f"v_xor_b32 v9, s{sT0}, v5")
        A("v_lshl_add_u32 v9, v9, 2, v7")
        A(f"v_lshl_add_u32 v{WA+u}, v9, 4, v8")
    for r in range(64):
        A(f"v_mov_b32 v{176+r}, 0")
    A(f"s_mov_b32 s{sSTG}, 16384")
    A(f"s_mov_b32 s{sBO}, 0")
    A(f"s_mov_b32 s{sBW}, 0")
    A(f"s_mov_b32 s{sCNT}, 16")
    RS = 144
    VEW, VER, VEG = 24, 25, 26
    A(f"s_mul_i32 s{sT0}, s{sWAVE}, {64*RS}")
    A("v_and_b32 v3, 31, v2")
    A(f"v_mul_u32_u24 v3, {RS}, v3")
    A("v_lshl_add_u32 v3, v4, 3, v3")
    A(f"v_add_u32 v{VEW}, s{sT0}, v3")
    A("v_lshrrev_b32 v3, 3, v2")
    A("v_and_b32 v5, 7, v2")
    A(f"v_mul_u32_u24 v6, {RS}, v3")
    A("v_lshl_add_u32 v6, v5, 4, v6")
    A(f"v_add_u32 v{VER}, s{sT0}, v6")
    A("v_lshlrev_b32 v3, 12, v3")
    A(f"v_lshl_add_u32 v{VEG}, v5, 4, v3")
    A(f"s_lshl_b32 s{sT0}, s{sRB16}, 1")
    A(f"s_add_u32 s{sT0}, s{sT0}, s{sWM}")
    A(f"s_lshl_b32 s{sT0}, s{sT0}, 18")
    A(f"s_lshl_b32 s{sT1}, s{sBR}, 3")
    A(f"s_add_u32 s{sT1}, s{sT1}, s{sCB}")
    A(f"s_lshl_b32 s{sT1}, s{sT1}, 1")
    A(f"s_add_u32 s{sT1}, s{sT1}, s{sWN}")
    A(f"s_lshl_b32 s{sT1}, s{sT1}, 7")
    A(f"s_add_u32 s{sOUT}, s{sT0}, s{sT1}")
    A("v_lshlrev_b32 v10, 7, v2")
    signal(L_CNTB, sFL2, 10, "0xffff", 8, 9)
    stamp(9)
    def reads(b, ks):
        R = [f"ds_read_b128 {vr(FA(b,0),4)}, v{AA} offset:{ks*1024}"]
        for u in range(2):
            R.append(f"ds_read_b64_tr_b16 {vr(FW(b,u),2)}, v{WA+u} offset:{L_WR+ks*4096}")
            R.append(f"ds_read_b64_tr_b16 {vr(FW(b,u)+2,2)}, v{WA+u} offset:{L_WR+ks*4096+2048}")
        R.append(f"ds_read_b128 {vr(FA(b,1),4)}, v{AA} offset:{4096+ks*1024}")
        return R
    A("s_waitcnt lgkmcnt(0)")
    A("s_barrier")
    stamp(10)
    for r in reads(0, 0): A(r)
    A.label("K3_LOOP")
    start = len(A.lines)
    for s in range(4):
        b = s & 1
        mf = [mfma32(ACC(t,u), FW(b,u), FA(b,t)) for t in range(2) for u in range(2)]
        fill = reads(b ^ 1, (s + 1) & 3)
        post = []
        if s == 0:
            post = [f"s_add_u32 s{sBO}, s{sBO}, 1", f"s_cmp_eq_u32 s{sBO}, 4",
                    f"s_cselect_b32 s{sDO}, {-3*16384 & 0xffffffff}, s{sSTG}", f"s_cselect_b32 s{sBO}, 0, s{sBO}"]
        if s == 1:
            post = [f"s_add_u32 s{sBW}, s{sBW}, 1", f"s_cmp_eq_u32 s{sBW}, 5",
                    f"s_cselect_b32 s{sDW}, {-4*16384 & 0xffffffff}, s{sSTG}", f"s_cselect_b32 s{sBW}, 0, s{sBW}"]
        if s == 2:
            post = [f"v_add_u32 v{AA}, s{sDO}, v{AA}", f"v_add_u32 v{WA}, s{sDW}, v{WA}", f"v_add_u32 v{WA+1}, s{sDW}, v{WA+1}"]
        if s == 3:
            post = [f"s_sub_u32 s{sCNT}, s{sCNT}, 1", f"s_cmp_lg_u32 s{sCNT}, 0"]
        A("s_waitcnt lgkmcnt(0)")
        for k, m in enumerate(mf):
            A(m)
            if s == 3 and k == 0: A("s_barrier")
            n = 3
            while n and fill:
                A(fill.pop(0)); n -= 1
            if n == 3:
                while post: A(post.pop(0))
    A("s_cbranch_scc1 K3_LOOP")
    body = A.lines[start:]
    chk(body + body, "k3 loop")
    stamp(11)
    A("s_waitcnt lgkmcnt(0)")
    A("s_nop 7")
    for t in range(2):
        for u in range(2):
            b = ACC(t,u)
            for g in range(4):
                A(f"v_cvt_pk_bf16_f32 v{b+4*g}, v{b+4*g}, v{b+4*g+1}")
                A(f"v_cvt_pk_bf16_f32 v{b+4*g+1}, v{b+4*g+2}, v{b+4*g+3}")
                A(f"ds_write_b64 v{VEW}, {vr(b+4*g,2)} offset:{t*32*RS + u*64 + g*16}")
    A("s_waitcnt lgkmcnt(0)")
    for i in range(8):
        A(f"ds_read_b128 {vr(32+4*i,4)}, v{VER} offset:{i*8*RS}")
    for i in range(8):
        A(f"s_waitcnt lgkmcnt({7-i})")
        A(f"buffer_store_dwordx4 {vr(32+4*i,4)}, v{VEG}, s[{SOUT}:{SOUT+3}], s{sOUT} offen sc1")
        if i < 7: A(f"s_add_u32 s{sOUT}, s{sOUT}, {8*4096}")
    stamp(12)
    if DIAG: A("s_waitcnt vmcnt(0)")
    stamp(13)
    stamp_out()
    A.label("K_END")
    A("s_endpgm")

def main():
    pos = [a for a in sys.argv[1:] if not a.startswith("--") and "=" not in a]
    out = pos[0] if pos else f"cdna_kernels/{KNAME}.s"
    entry()
    p1_loader()
    p23_helper()
    f1 = p1_compute()
    f2 = p2_attn(f1)
    p3_compute(f2)
    p2_slow()
    chk(A.lines, "all")
    name = f"{KNAME}_kernel"
    ref = open(f"cdna_kernels/{KNAME}.s.ref").read().split("\n")
    head = [l for l in ref if l.startswith(";") and "@launch" not in l and "Override" not in l and "grid=ceil" not in l]
    if OPT["aslist"]: head.append(f"; @launch kernel={name} grid=(256,1,1) block=(512,1,1) lds={LDS_TOTAL}")
    else: head.append(f"; @launch grid=(256,1,1) block=(512,1,1) lds={LDS_TOTAL}")
    nv = 256 if DIAG else 240
    txt = "\n".join(head) + f'''
.amdgcn_target "amdgcn-amd-amdhsa--gfx950"
.text
.globl {name}
.p2align 8
.type {name},@function
{name}:
''' + A.text() + f'''
.section .rodata,"a"
.p2align 6
.amdhsa_kernel {name}
  .amdhsa_next_free_vgpr {nv}
  .amdhsa_next_free_sgpr 102
  .amdhsa_accum_offset {nv}
  .amdhsa_group_segment_fixed_size 0
  .amdhsa_kernarg_size 88
  .amdhsa_user_sgpr_count 2
  .amdhsa_user_sgpr_kernarg_segment_ptr 1
  .amdhsa_system_sgpr_workgroup_id_x 1
.end_amdhsa_kernel
'''
    open(out, "w").write(txt)
    seen = set()
    for p in PROBS:
        if p not in seen:
            print("HAZARD", p); seen.add(p)
    print("written", out, len(txt))
main()
```

```python
from asmlib import *
def mfma32(d, a, b, c=None):
    cs = vr(d, 16) if c is None else (vr(c, 16) if isinstance(c, int) else c)
    return f"v_mfma_f32_32x32x16_bf16 {vr(d,16)}, {vr(a,4)}, {vr(b,4)}, {cs}"
def mfma16(d, a, b, c=None):
    cs = vr(d, 4) if c is None else (vr(c, 4) if isinstance(c, int) else c)
    return f"v_mfma_f32_16x16x32_bf16 {vr(d,4)}, {vr(a,4)}, {vr(b,4)}, {cs}"

def auto_waits(body):
    n = len(body)
    P = [parse(l) if l != "WAIT0" else dict(kind="wait0") for l in body]
    seq = list(range(n)) * 2
    isr = lambda i: P[i] and P[i]["kind"] == "ds" and P[i]["wr"]
    waits = {}
    done = -1
    lastm = None
    for pos, i in enumerate(seq):
        p = P[i]
        if not p: continue
        if p["kind"] == "wait0": done = pos
        if p["kind"] == "mfma":
            need = -1
            for q in range(pos - 1, max(-1, pos - n - 1), -1):
                if isr(seq[q]) and P[seq[q]]["wr"] & (p["A"] | p["B"]):
                    need = max(need, q)
            if need > done:
                assert lastm is not None and lastm > need, ("read too close", body[i])
                cnt = sum(1 for q in range(need + 1, lastm) if isr(seq[q]))
                cnt = min(cnt, 15)
                if pos >= n:
                    k = seq[lastm]
                    waits[k] = min(waits.get(k, 99), cnt)
                done = need
            lastm = pos
    out = []
    for i, l in enumerate(body):
        out.append("s_waitcnt lgkmcnt(0)" if l == "WAIT0" else l)
        if i in waits: out.append(f"s_waitcnt lgkmcnt({waits[i]})")
    return out

def attn_body(R, combined, sal_by_step, G=None, sumv=0):
    Q, ONES, KF, VF, P, L, S, O, NEGM, T, VCUR, VNXT = (R[k] for k in ("Q", "ONES", "KF", "VF", "P", "L", "S", "O", "NEGM", "T", "VCUR", "VNXT"))
    body = []
    for st in range(8):
        jj, x = st >> 1, st & 1
        Sc, Sn = S[x], S[x ^ 1]
        E = lambda i: f"v_exp_f32 v{Sc+i if i < 14 else T+i-14}, v{Sc+i}"
        C = lambda i: f"v_cvt_pk_bf16_f32 v{P+i}, v{Sc+2*i}, v{Sc+2*i+1}" if i < 7 else f"v_cvt_pk_bf16_f32 v{P+7}, v{T}, v{T+1}"
        def addr(tile, part):
            if tile < 4: return f"v{VCUR} offset:{tile*4096+part*1024}"
            return f"v{VNXT} offset:{(tile-4)*4096+part*1024}"
        rdK = [f"ds_read_b128 {vr(KF,4)}, {addr(jj+1,0)}", f"ds_read_b128 {vr(KF+4,4)}, {addr(jj+1,1)}"] if x == 0 else [None, None]
        rdV1 = f"ds_read_b128 {vr(VF+4,4)}, {addr(jj,3)}" if x == 0 else None
        rdV0 = f"ds_read_b128 {vr(VF,4)}, {addr(jj+1,2)}" if x == 1 else None
        QK1, QK2 = mfma32(Sn, KF, Q[x^1], NEGM[x^1]), mfma32(Sn, KF+4, Q[x^1]+4)
        PV2, SUMb = mfma32(O[x^1], VF+4, P+4), mfma16(L[x^1], ONES, P+4)
        PV1, SUMa = mfma32(O[x], VF, P), mfma16(L[x], ONES, P)
        sal = list(sal_by_step.get(st, []))
        S_ = lambda: sal.pop(0) if sal else None
        if sumv ==  3:
            bar = "s_barrier" if st == 5 else None
            m4 = lambda l, p: f"v_mfma_f32_4x4x4_16b_bf16 {vr(l,4)}, {vr(ONES,2)}, {vr(p,2)}, {vr(l,4)}"
            seq = [QK1, bar, rdK[0] or S_(), C(7), E(0), E(1), E(2),
                   QK2, rdK[1] or S_(), E(3), C(0), E(4), C(1), E(5),
                   PV2, rdV1 or S_(), E(6), E(7), C(2), C(3),
                   m4(L[x^1], P+4), S_(), E(8), m4(L[x], P), E(9), m4(L[x^1], P+6),
                   PV1, rdV0 or S_(), E(10), E(11), C(4), E(12),
                   m4(L[x], P+2), S_(), E(13), C(5), E(14), E(15), C(6)]
        elif sumv:
            bar = "s_barrier" if st == 5 else None
            AD = lambda i: f"v_pk_add_f32 {vr(L[x]+2*(i&1),2)}, {vr(L[x]+2*(i&1),2)}, {vr(Sc+2*i,2)}"
            AD7 = f"v_pk_add_f32 {vr(L[x^1]+2,2)}, {vr(L[x^1]+2,2)}, {vr(T,2)}"
            if sumv == 2: AD = lambda i: None; AD7 = None
            seq = [QK1, bar, rdK[0] or S_(), C(7), AD7, E(0), E(1), E(2), E(3),
                   QK2, rdK[1] or S_(), C(0), AD(0), E(4), C(1), AD(1), E(5), E(6), E(7),
                   PV2, rdV1 or S_(), C(2), AD(2), C(3), AD(3), E(8), E(9), E(10), E(11),
                   PV1, rdV0 or S_(), S_(), S_(), C(4), AD(4), E(12), C(5), AD(5), E(13), E(14), E(15), C(6), AD(6)]
        elif not combined:
            bar = "s_barrier" if st == 5 else None
            seq = [QK1, bar, rdK[0] or S_(), C(7), E(0), E(1), E(2),
                   QK2, rdK[1] or S_(), E(3), C(0), E(4), C(1), E(5),
                   PV2, rdV1 or S_(), E(6), E(7), C(2),
                   SUMb, S_(), C(3), E(8), E(9),
                   PV1, rdV0 or S_(), E(10), E(11), C(4), E(12),
                   SUMa, S_(), E(13), C(5), E(14), E(15), C(6)]
        else:
            b = st & 1
            FA = lambda bb, k, t: G["F"][bb] + 12 * k + 4 * t
            FW = lambda bb, k: G["F"][bb] + 12 * k + 8
            Gm = [mfma32(G["ACC"][t], FW(b, k), FA(b, k, t)) for k in range(2) for t in range(2)]
            gr = []
            for k in range(2):
                ks = 2 * ((st + 1) & 1) + k
                gr += [f"ds_read_b128 {vr(FA(b^1,k,0),4)}, v{G['XA']+ks}",
                       f"ds_read_b64_tr_b16 {vr(FW(b^1,k),2)}, v{G['WA']} offset:{G['WOFF']+ks*2048}",
                       f"ds_read_b64_tr_b16 {vr(FW(b^1,k)+2,2)}, v{G['WA']+1} offset:{G['WOFF']+ks*2048}",
                       f"ds_read_b128 {vr(FA(b^1,k,1),4)}, v{G['XA']+ks} offset:4096"]
            g = lambda: gr.pop(0) if gr else None
            upd = G["upd"] if x == 1 else []
            if x == 0:
                seq = [QK1, rdK[0], E(0), E(1), C(7),
                       Gm[0], g(), E(2), E(3), C(0),
                       QK2, rdK[1], E(4), E(5), C(1),
                       PV2, rdV1, E(6), E(7), C(2),
                       SUMb, g(), g(),
                       Gm[1], g(), E(8), E(9), C(3),
                       Gm[2], g(), E(10), E(11), C(4),
                       PV1, g(), E(12), E(13), C(5),
                       SUMa, g(), g(),
                       Gm[3], S_(), S_(), S_(), S_(), E(14), E(15), C(6)]
            else:
                seq = [QK1, S_(), S_(), E(0), E(1), C(7)] + upd[:3] + [
                       Gm[0], S_(), S_(), E(2), E(3), C(0)] + upd[3:] + [
                       QK2, "WAIT0", "s_barrier", g(), E(4), E(5), C(1),
                       PV2, g(), E(6), E(7), C(2),
                       SUMb, g(), g(),
                       Gm[1], g(), E(8), E(9), C(3),
                       Gm[2], g(), E(10), E(11), C(4),
                       PV1, rdV0, E(12), E(13), C(5),
                       SUMa, g(), g(),
                       Gm[3], E(14), E(15), C(6)]
            assert not gr
        assert not sal, sal
        body += [i for i in seq if i]
    return auto_waits(body)
```

```python
import sys, math, os
from asmlib import *
from attn_body import attn_body, auto_waits

KNAME = "concat_heads__linear_attn_block__grouped_kv_mqa__prompt"
OPT = dict(pf1=1, pfs="x012345", pf0=2, defat=3, pf2=1, hprio=2, aslist=0, wpre=5, slp=1, ld="", pfc=1, sumv=0, nosp=0, lite=0)
for a in sys.argv[1:]:
    if "=" in a:
        k, v = a.lstrip("-").split("=", 1)
        OPT[k] = int(v) if v.lstrip("-").isdigit() else v.replace("+", " ")
DIAG = "--diag" in sys.argv

WS_QA = 0
WS_QB = 4 << 20
WS_OA = 8 << 20
WS_OB = 12 << 20
WS_KV = 16 << 20
WS_KVP = WS_KV + (256 << 10)
WS_ZP = WS_KVP + (1 << 20)
WS_FL = WS_ZP + (32 << 10)
FL_A, FL_O, FL_B = 0, 256 * 128, 512 * 128
WS_USED = WS_FL + (576 * 128)
WS_DIAG = 24 << 20
if DIAG: WS_USED = WS_DIAG + (2 << 20)

LOG2E = 1.4426950408889634
KSCALE = (32 ** -0.5) * LOG2E
EPS = 1e-6
OOB = 0x40000000

P1_STAGE, P1_WOFF, P1_EOFF = 53248, 32768, 49152
MISC = 3 * P1_STAGE
L_CNT1, L_CNTA, L_CNTB, L_XF = MISC, MISC + 4, MISC + 8, MISC + 16
L_GOB, L_GOA, L_GOO = MISC + 32, MISC + 36, MISC + 40
L_ZX = MISC + 64
L_KVX = MISC + 2048
L_WR = 0
L_QS = 16384
L_R = 81920
LDS_TOTAL = 163840

PROBS = []
def chk(lines, name):
    PROBS.extend(check_hazards(lines, name))
def mfma32(d, a, b, c=None):
    cs = vr(d, 16) if c is None else (vr(c, 16) if isinstance(c, int) else c)
    return f"v_mfma_f32_32x32x16_bf16 {vr(d,16)}, {vr(a,4)}, {vr(b,4)}, {cs}"
def mfma16(d, a, b, c=None):
    cs = vr(d, 4) if c is None else (vr(c, 4) if isinstance(c, int) else c)
    return f"v_mfma_f32_16x16x32_bf16 {vr(d,4)}, {vr(a,4)}, {vr(b,4)}, {cs}"

class VM:
    def __init__(self): self.q = []
    def add(self, tag, n=1): self.q += [tag] * n
    def has(self, tag): return tag in self.q
    def wait(self, A, *tags):
        idxs = [i for i, t in enumerate(self.q) if t in tags]
        if not idxs: return
        idx = max(idxs)
        n = len(self.q) - 1 - idx
        assert n <= 63
        A(f"s_waitcnt vmcnt({n})")
        self.q = self.q[idx + 1:]
    def clear(self): self.q = []

A = Asm()
pAX, pAW, pAWO, pBX, pBWQ, pBWK, pBWV, pBWO, pOUT, pDBG, pWS = 40, 42, 44, 46, 48, 50, 52, 54, 56, 58, 60
SX, SW, SE, SWS, SPF, SDBG = 4, 8, 12, 16, 64, 84
SWO, SOUT = 4, 8
sXCD, sIDX, sWAVE, sRB, sCBG, sT0, sW4, sT1 = 20, 21, 22, 23, 24, 25, 26, 27
sTYPE, sCOL, sS1, sS2, sWSTR, sROT, sBASE, sCNT, sDELTA, sWADV = 28, 29, 30, 31, 32, 33, 34, 35, 36, 37
sWM, sWN = 38, 39
sXO, sWO, sSTG = 68, 76, 80
sPOLL = 96

def srd(dst, lo, nbytes):
    A(f"s_mov_b32 s{dst}, s{lo}")
    A(f"s_and_b32 s{dst+1}, s{lo+1}, 0xffff")
    if isinstance(nbytes, int): A(f"s_mov_b32 s{dst+2}, {nbytes}")
    else: A(nbytes)
    A(f"s_mov_b32 s{dst+3}, 0x20000")

def stamp(i):
    if not DIAG: return
    A("s_memtime s[98:99]")
    A("s_memrealtime s[100:101]")
    A("s_waitcnt lgkmcnt(0)")
    A(f"v_writelane_b32 v255, s98, {i}")
    A(f"v_writelane_b32 v255, s100, {32+i}")
def stamp_out():
    if not DIAG: return
    A("s_getreg_b32 s98, hwreg(HW_REG_XCC_ID)")
    A("s_and_b32 s98, s98, 15")
    A("v_writelane_b32 v255, s98, 30")
    A(f"v_writelane_b32 v255, s{sTYPE}, 31")
    A("v_and_b32 v254, 63, v0")
    A("v_lshlrev_b32 v254, 2, v254")
    A("s_lshl_b32 s98, s2, 3")
    A(f"s_add_u32 s98, s98, s{sWAVE}")
    A("s_lshl_b32 s98, s98, 8")
    A(f"s_add_u32 s98, s98, {WS_DIAG}")
    A(f"buffer_store_dword v255, v254, s[{SWS}:{SWS+3}], s98 offen")

def lite(i, inv=False):
    if not OPT["lite"]: return
    A("s_memrealtime s[100:101]")
    A("s_waitcnt lgkmcnt(0)")
    if inv: A("s_not_b32 s100, s100")
    A("v_mov_b32 v245, s100")
    A(f"v_mov_b32 v246, {4*i}")
    A("s_mov_b64 exec, 1")
    A(f"buffer_atomic_umax v245, v246, s[{SDBG}:{SDBG+3}], 0 offen sc1")
    A("s_mov_b64 exec, -1")
uid = [0]
def U(p):
    uid[0] += 1
    return f"{p}_{uid[0]}"

def poll(srdreg, soff, need, vtmp):
    L, D = U("POLL"), U("POLLD")
    A(f"s_mov_b32 s{sPOLL}, 300000")
    A(f"v_mov_b32 v{vtmp+1}, 0")
    A.label(L)
    A(f"buffer_load_dword v{vtmp}, v{vtmp+1}, s[{srdreg}:{srdreg+3}], {soff} offen sc1")
    A("s_waitcnt vmcnt(0)")
    A(f"v_cmp_gt_u32 vcc, {need}, v{vtmp}")
    A(f"s_sub_u32 s{sPOLL}, s{sPOLL}, 1")
    A(f"s_cbranch_vccz {D}")
    if OPT["slp"]: A(f"s_sleep {OPT['slp']}")
    A(f"s_cmp_lg_u32 s{sPOLL}, 0")
    A(f"s_cbranch_scc1 {L}")
    A.label(D)

def poll_shared(soff, need, lgo, vtmp):
    O_, D = U("PSO"), U("PSD")
    A(f"s_mov_b32 s{sPOLL+1}, {lgo}")
    A(f"s_cmp_eq_u32 s{sW4}, 0")
    A(f"s_cbranch_scc0 {O_}")
    poll(SWS, soff, need, vtmp)
    lds_flag_set(sPOLL + 1, vtmp, vtmp + 1)
    A(f"s_branch {D}")
    A.label(O_)
    lds_flag_wait(sPOLL + 1, vtmp, vtmp + 1, sleep=1)
    A.label(D)

def signal(lcnt, sfl, voff, smask, va, vb):
    D = U("SIG")
    A(f"v_mov_b32 v{va}, {lcnt}")
    A(f"v_mov_b32 v{vb}, 1")
    A("s_mov_b64 exec, 1")
    A("s_waitcnt vmcnt(0)")
    A(f"ds_add_rtn_u32 v{va}, v{va}, v{vb}")
    A("s_waitcnt lgkmcnt(0)")
    A(f"v_readfirstlane_b32 s{sPOLL}, v{va}")
    A(f"s_mov_b64 exec, {smask}")
    A(f"s_cmp_eq_u32 s{sPOLL}, 3")
    A(f"s_cbranch_scc0 {D}")
    A(f"buffer_atomic_add v{vb}, v{voff}, s[{SWS}:{SWS+3}], s{sfl} offen sc1")
    A.label(D)
    A("s_mov_b64 exec, -1")

def lds_flag_set(addr_sgpr, va, vb):
    A(f"v_mov_b32 v{va}, s{addr_sgpr}")
    A(f"v_mov_b32 v{vb}, 1")
    A("s_waitcnt lgkmcnt(0)")
    A(f"ds_write_b32 v{va}, v{vb}")
def lds_flag_wait(addr_sgpr, va, vb, sleep=0):
    L = U("LFW")
    A(f"v_mov_b32 v{va}, s{addr_sgpr}")
    A.label(L)
    if sleep: A(f"s_sleep {sleep}")
    A(f"ds_read_b32 v{vb}, v{va}")
    A("s_waitcnt lgkmcnt(0)")
    A(f"v_cmp_eq_u32 vcc, 0, v{vb}")
    A("s_nop 0")
    A(f"s_cbranch_vccnz {L}")

XS, XWOFF, XEOFF = 36864, 16384, 32768
L_XX = 147456
def cnt_load(srdreg, soff, vdst, vzero):
    A(f"buffer_load_dword v{vdst}, v{vzero}, s[{srdreg}:{srdreg+3}], {soff} sc1")
def cnt_check(srdreg, soff, need, vdst, vzero):
    L, D = U("POLL"), U("POLLD")
    A(f"s_mov_b32 s{sPOLL}, 300000")
    A.label(L)
    A(f"v_cmp_gt_u32 vcc, {need}, v{vdst}")
    A(f"s_sub_u32 s{sPOLL}, s{sPOLL}, 1")
    A(f"s_cbranch_vccz {D}")
    A("s_sleep 2")
    cnt_load(srdreg, soff, vdst, vzero)
    A("s_waitcnt vmcnt(0)")
    A(f"s_cmp_lg_u32 s{sPOLL}, 0")
    A(f"s_cbranch_scc1 {L}")
    A.label(D)

def entry():
    A("s_cmp_ge_u32 s2, 256")
    A("s_cbranch_scc1 K_END")
    A("s_load_dwordx16 s[40:55], s[0:1], 0")
    A("s_load_dwordx4 s[56:59], s[0:1], 64")
    A("s_load_dwordx2 s[60:61], s[0:1], 80")
    if DIAG: A("v_mov_b32 v255, 0")
    A("v_lshrrev_b32 v1, 6, v0")
    A("v_and_b32 v2, 63, v0")
    A(f"s_and_b32 s{sXCD}, s2, 7")
    A(f"s_lshr_b32 s{sIDX}, s2, 3")
    A(f"v_readfirstlane_b32 s{sWAVE}, v1")
    A(f"s_and_b32 s{sT1}, s{sXCD}, 3")
    A(f"s_lshr_b32 s{sW4}, s{sXCD}, 2")
    A(f"s_cmp_lt_u32 s{sIDX}, 16")
    A("s_cbranch_scc0 K1_MAPY")
    A(f"s_lshl_b32 s{sRB}, s{sT1}, 2")
    A(f"s_and_b32 s{sT0}, s{sIDX}, 3")
    A(f"s_add_u32 s{sRB}, s{sRB}, s{sT0}")
    A(f"s_lshl_b32 s{sCBG}, s{sW4}, 2")
    A(f"s_lshr_b32 s{sT0}, s{sIDX}, 2")
    A(f"s_add_u32 s{sCBG}, s{sCBG}, s{sT0}")
    A(f"s_mov_b32 s{sTYPE}, 0")
    A(f"s_and_b32 s{sROT}, s{sCBG}, 3")
    A("s_branch K1_MAPD")
    A.label("K1_MAPY")
    A(f"s_lshl_b32 s{sRB}, s{sT1}, 1")
    A(f"s_and_b32 s{sT0}, s{sIDX}, 1")
    A(f"s_add_u32 s{sRB}, s{sRB}, s{sT0}")
    A(f"s_lshl_b32 s{sCBG}, s{sW4}, 3")
    A(f"s_bfe_u32 s{sT0}, s{sIDX}, 0x30001")
    A(f"s_add_u32 s{sCBG}, s{sCBG}, s{sT0}")
    A(f"s_mov_b32 s{sTYPE}, 1")
    A(f"s_mov_b32 s{sROT}, 0")
    A.label("K1_MAPD")
    A(f"s_and_b32 s{sW4}, s{sWAVE}, 3")
    A(f"s_cmp_lt_u32 s{sWAVE}, 4")
    A("s_cbranch_scc1 K1_COMPUTE")

def srd_e():
    A(f"s_bitcmp1_b32 s{sCBG}, 2")
    A(f"s_cselect_b64 s[62:63], s[{pBWV}:{pBWV+1}], s[{pBWK}:{pBWK+1}]")
    srd(SE, 62, 65536)
def build_srds_common():
    srd(SWS, pWS, WS_USED)
    srd(SDBG, pDBG, 256)

VPFA, VPFD = 10, 11
sPFO, sPFA, sT2, sT3 = 82, 83, 30, 31
def pf_setup(role, member):
    W, D = U("PFW"), U("PFD")
    A(f"s_cmp_lt_u32 s{role}, 2")
    A(f"s_cbranch_scc0 {W}")
    A("v_lshrrev_b32 v12, 1, v2")
    A(f"v_lshlrev_b32 v{VPFA}, 11, v12")
    A("v_and_b32 v12, 1, v2")
    A(f"v_lshl_add_u32 v{VPFA}, v12, 7, v{VPFA}")
    A(f"s_lshl_b32 s{sPFO}, s{member}, 16")
    A(f"s_mov_b32 s{sPFA}, 256")
    A(f"s_cmp_eq_u32 s{role}, 1")
    A(f"s_cselect_b64 s[62:63], s[{pBX}:{pBX+1}], s[{pAX}:{pAX+1}]")
    A(f"s_mov_b32 s{sT2}, 4")
    A(f"s_branch {D}")
    A.label(W)
    A(f"v_lshlrev_b32 v{VPFA}, 7, v2")
    A(f"s_lshl_b32 s{sT2}, s{member}, 1")
    A(f"s_add_u32 s{sT2}, s{sT2}, s{role}")
    A(f"s_sub_u32 s{sT2}, s{sT2}, 2")
    A(f"s_sub_u32 s{sT3}, s{sT2}, 96")
    A(f"s_cmp_lt_u32 s{sT2}, 96")
    A(f"s_cselect_b32 s{sPFO}, s{sT2}, s{sT3}")
    A(f"s_cselect_b64 s[62:63], s[{pAW}:{pAW+1}], s[{pBWQ}:{pBWQ+1}]")
    A(f"s_cselect_b32 s{sT2}, 6, 2")
    A(f"s_lshl_b32 s{sPFA}, s{sT2}, 17")
    A(f"s_lshl_b32 s{sPFO}, s{sPFO}, 13")
    A.label(D)
    srd(SPF, 62, f"s_lshl_b32 s{SPF+2}, s{sT2}, 20")

def p1_loader():
    VX, VW, VE, VW2 = 3, 6, 7, 9
    sLIM, sB0 = 29, 37
    A("v_lshrrev_b32 v4, 4, v2")
    A(f"s_lshl_b32 s{sT0}, s{sW4}, 2")
    A(f"v_add_u32 v4, s{sT0}, v4")
    A("v_and_b32 v4, 7, v4")
    A("v_and_b32 v5, 7, v2")
    A("v_xor_b32 v4, v4, v5")
    A("v_lshlrev_b32 v4, 4, v4")
    A("v_lshrrev_b32 v5, 3, v2")
    A(f"v_lshl_add_u32 v{VX}, v5, 11, v4")
    A("v_lshrrev_b32 v4, 4, v2")
    A("v_and_b32 v5, 15, v2")
    A("v_lshlrev_b32 v8, 2, v4")
    A("v_xor_b32 v5, v5, v8")
    A(f"s_lshl_b32 s{sB0}, s{sW4}, 10")
    A(f"s_mov_b32 s{sBASE}, s{sB0}")
    A(f"s_mov_b32 s{sCNT}, 0")
    def dma(off, ins):
        A(f"s_add_u32 m0, s{sBASE}, {off}")
        A("s_nop 0")
        A(ins)
    def adv(stage):
        A(f"s_add_u32 s{sBASE}, s{sBASE}, {stage}")
        A(f"s_cmp_ge_u32 s{sBASE}, s{sLIM}")
        A(f"s_cselect_b32 s{sBASE}, s{sB0}, s{sBASE}")
        A(f"s_add_u32 s{sCNT}, s{sCNT}, 1")
    xl = lambda n: (n * 4096, f"buffer_load_dwordx4 v{VX}, s[{SX}:{SX+3}], s{sXO+n} offen lds")
    A(f"s_cmp_eq_u32 s{sTYPE}, 1")
    A("s_cbranch_scc1 K1_LY")
    A(f"s_lshl_b32 s{sT1}, s{sRB}, 4")
    A(f"s_add_u32 s{sT1}, s{sT1}, s{sW4}")
    A(f"s_lshl_b32 s{sT1}, s{sT1}, 14")
    for n in range(4):
        A(f"s_add_u32 s{sT0}, s{sROT}, {n}")
        A(f"s_and_b32 s{sT0}, s{sT0}, 3")
        A(f"s_lshl_b32 s{sT0}, s{sT0}, 16")
        A(f"s_add_u32 s{sXO+n}, s{sT0}, s{sT1}")
    A(f"s_lshl_b32 s{sT0}, s{sCBG}, 8")
    A(f"v_lshl_add_u32 v8, v5, 4, s{sT0}")
    A(f"v_lshl_add_u32 v{VW}, v4, 11, v8")
    A(f"s_lshl_b32 s{sWO}, s{sW4}, 13")
    for n in range(1, 4):
        A(f"s_add_u32 s{sWO+n}, s{sWO}, {n*16*2048}")
    A(f"v_lshl_add_u32 v{VE}, v2, 4, s{sB0}")
    A(f"s_add_u32 s{sLIM}, s{sB0}, {4*XS}")
    A("s_waitcnt lgkmcnt(0)")
    srd(SX, pBX, 4 << 20)
    srd(SW, pBWQ, 2 << 20)
    srd_e()
    stamp(0)
    A("s_branch K1_XINB")
    A.label("K1_XLB")
    A(f"s_cmp_lt_u32 s{sCNT}, 2")
    A("s_cbranch_scc1 K1_XINB")
    A("s_waitcnt vmcnt(9)")
    A("s_barrier")
    A.label("K1_XINB")
    wl = lambda n, v: (XWOFF + n * 4096, f"buffer_load_dwordx4 v{v}, s[{SW}:{SW+3}], s{sWO+n} offen lds")
    for off, ins in (xl(0), wl(0, VW), (XEOFF, f"buffer_load_dwordx4 v{VE}, s[{SE}:{SE+3}], 0 offen lds"), xl(1), wl(1, VW), xl(2), wl(2, VW), xl(3), wl(3, VW)):
        dma(off, ins)
    A(f"v_add_u32 v{VX}, 128, v{VX}")
    A(f"v_add_u32 v{VW}, {64*2048}, v{VW}")
    A(f"v_add_u32 v{VE}, 4096, v{VE}")
    adv(XS)
    A(f"s_cmp_lt_u32 s{sCNT}, 16")
    A("s_cbranch_scc1 K1_XLB")
    srd(SX, pAX, 4 << 20)
    srd(SW, pAW, 6 << 20)
    A(f"v_subrev_u32 v{VX}, 2048, v{VX}")
    A(f"v_mul_u32_u24 v{VW2}, 6144, v4")
    A(f"v_add_u32 v{VW2}, v{VW2}, v8")
    A(f"s_mul_i32 s{sWO}, s{sW4}, {4*6144}")
    for n in range(1, 4):
        A(f"s_add_u32 s{sWO+n}, s{sWO}, {n*16*6144}")
    A.label("K1_XLA")
    A("s_waitcnt vmcnt(8)")
    A("s_barrier")
    for off, ins in (xl(0), wl(0, VW2), xl(1), wl(1, VW2), xl(2), wl(2, VW2), xl(3), wl(3, VW2)):
        dma(off, ins)
    A(f"v_add_u32 v{VX}, 128, v{VX}")
    A(f"v_add_u32 v{VW2}, {64*6144}, v{VW2}")
    adv(XS)
    A(f"s_cmp_lt_u32 s{sCNT}, 32")
    A("s_cbranch_scc1 K1_XLA")
    A("s_waitcnt vmcnt(8)")
    A("s_branch K1_LTAIL")
    A.label("K1_LY")
    A(f"s_lshl_b32 s{sT1}, s{sRB}, 5")
    A(f"s_add_u32 s{sT1}, s{sT1}, s{sW4}")
    A(f"s_lshl_b32 s{sXO}, s{sT1}, 14")
    for n in range(1, 8):
        A(f"s_add_u32 s{sXO+n}, s{sXO}, {n<<16}")
    A(f"v_mul_u32_u24 v{VW}, 6144, v4")
    A("v_and_b32 v8, 3, v5")
    A(f"v_lshl_add_u32 v{VW}, v8, 4, v{VW}")
    A("v_bfe_u32 v8, v5, 2, 1")
    A(f"v_lshl_add_u32 v{VW}, v8, 11, v{VW}")
    A("v_bfe_u32 v8, v5, 3, 1")
    A(f"v_lshl_add_u32 v{VW}, v8, 6, v{VW}")
    A(f"s_lshl_b32 s{sT0}, s{sCBG}, 7")
    A(f"s_add_u32 s{sT0}, s{sT0}, 2048")
    A(f"v_add_u32 v{VW}, s{sT0}, v{VW}")
    A(f"s_mul_i32 s{sWO}, s{sW4}, {4*6144}")
    for n in range(1, 4):
        A(f"s_add_u32 s{sWO+n}, s{sWO}, {n*16*6144}")
    A(f"s_add_u32 s{sLIM}, s{sB0}, {3*P1_STAGE}")
    A("s_waitcnt lgkmcnt(0)")
    srd(SX, pAX, 4 << 20)
    srd(SW, pAW, 6 << 20)
    stamp(0)
    PF = 1 if OPT["pf1"] else 0
    n = 12 + 2 * PF
    sI, sO, sG, sM = 88, 92, 38, 39
    A("s_branch K1_YIN")
    A.label("K1_YL")
    A(f"s_cmp_lt_u32 s{sCNT}, 2")
    A("s_cbranch_scc1 K1_YIN")
    A(f"s_waitcnt vmcnt({n})")
    A("s_barrier")
    A.label("K1_YIN")
    seq = [xl(i) for i in range(8)] + [(P1_WOFF + i * 4096, f"buffer_load_dwordx4 v{VW}, s[{SW}:{SW+3}], s{sWO+i} offen lds") for i in range(4)]
    for i in [0, 8, 1, 2, 9, 3, 4, 10, 5, 6, 11, 7]:
        dma(*seq[i])
    if PF:
        A(f"s_cmp_eq_u32 s{sCNT}, 0")
        A("s_cbranch_scc0 K1_PFS")
        A(f"s_bfe_u32 s{sG}, s{sIDX}, 0x10003")
        A(f"s_and_b32 s{sM}, s{sIDX}, 7")
        A(f"s_lshl_b32 s{sM}, s{sM}, 3")
        A(f"s_add_u32 s{sM}, s{sM}, s{sXCD}")
        pf_setup(sW4, sM)
        A(f"s_add_u32 s{sM}, s{sG}, {OPT['pf0']}")
        A(f"s_mul_i32 s{sM}, s{sM}, s{sPFA}")
        A(f"s_add_u32 s{sPFO}, s{sPFO}, s{sM}")
        A(f"s_lshl_b32 s{sPFA}, s{sPFA}, 1")
        sched = [int(c, 16) for c in str(OPT["pfs"])[1:]][:8 - OPT["pf0"]]
        masks = [sum(1 << it for it in sched[g::2]) for g in range(2)]
        A(f"s_cmp_eq_u32 s{sG}, 0")
        A(f"s_mov_b32 s{sI}, {masks[1]}")
        A(f"s_cselect_b32 s{sI}, {masks[0]}, s{sI}")
        A.label("K1_PFS")
        A(f"s_bitcmp1_b32 s{sI}, s{sCNT}")
        A("s_cbranch_scc0 K1_PFX")
        A(f"buffer_load_dword v{VPFD}, v{VPFA}, s[{SPF}:{SPF+3}], s{sPFO} offen")
        A(f"s_add_u32 s{sPFO}, s{sPFO}, s{sPFA}")
        A("s_branch K1_PFY")
        A.label("K1_PFX")
        A(f"s_mov_b32 s{sT2}, {OOB}")
        A(f"buffer_load_dword v{VPFD}, off, s[{SPF}:{SPF+3}], s{sT2}")
        A.label("K1_PFY")
    A(f"v_add_u32 v{VX}, 128, v{VX}")
    A(f"v_add_u32 v{VW}, {64*6144}, v{VW}")
    adv(P1_STAGE)
    A(f"s_cmp_lt_u32 s{sCNT}, 16")
    A("s_cbranch_scc1 K1_YL")
    A(f"s_waitcnt vmcnt({n})")
    A.label("K1_LTAIL")
    A("s_barrier")
    build_srds_common()
    A("v_mov_b32 v119, 0")
    cnt_load(SDBG, "0 offen", 120, 119)
    A("s_waitcnt vmcnt(0)")
    A("s_barrier")
    cnt_check(SDBG, "0 offen", 1, 120, 119)
    A(f"s_and_b32 s92, s2, 63")
    A(f"s_lshl_b32 s92, s92, 7")
    A(f"s_add_u32 s92, s92, {WS_FL + FL_B}")
    A(f"s_lshl_b32 s93, s2, 7")
    A(f"s_add_u32 s93, s93, {WS_FL + FL_A}")
    cnt_load(SWS, "s92 offen", 120, 119)
    cnt_load(SWS, "s93 offen offset:4", 121, 119)
    A("s_barrier")
    stamp(1)

VSG = 172
sSG = 74
def p1_compute():
    A.label("K1_COMPUTE")
    XA, WA, EA = 16, 20, 22
    VPF, VINI, VZ = 24, 28, 29
    FB = [32, 60]
    FX = lambda b, t: FB[b] + 4 * t
    FW = lambda b, u: FB[b] + 16 + 4 * u
    FE = lambda b: FB[b] + 24
    XACC = 96
    ACC = lambda t, u: 112 + 16 * (2 * t + u)
    A(f"s_lshr_b32 s{sWM}, s{sWAVE}, 1")
    A(f"s_and_b32 s{sWN}, s{sWAVE}, 1")
    A("v_and_b32 v3, 31, v2")
    A("v_lshrrev_b32 v4, 5, v2")
    A("s_waitcnt lgkmcnt(0)")
    build_srds_common()
    stamp(0)
    A(f"s_cmp_eq_u32 s{sWAVE}, 0")
    A("s_cbranch_scc0 K1_NW0")
    lite(4, True); lite(5)
    A("v_and_b32 v10, 15, v2")
    A("v_lshlrev_b32 v10, 2, v10")
    A(f"v_add_u32 v10, {MISC}, v10")
    A("v_mov_b32 v12, 0")
    A("v_mov_b32 v13, 0")
    A("ds_write_b32 v10, v12")
    A("v_lshlrev_b32 v10, 7, v2")
    A("s_cmp_eq_u32 s2, 255")
    A("s_cbranch_scc1 K1_INIT")
    if OPT["pf1"]:
        A("s_bitcmp1_b32 s2, 0")
        A(f"s_cselect_b64 s[62:63], s[{pBWV}:{pBWV+1}], s[{pBWK}:{pBWK+1}]")
        srd(SPF, 62, 65536)
        A(f"s_lshr_b32 s{sT0}, s2, 1")
        A(f"s_lshl_b32 s{sT0}, s{sT0}, 13")
        A("s_cmp_lt_u32 s2, 16")
        A("s_cbranch_scc0 K1_WD")
        A(f"buffer_load_dword v{VPF}, v10, s[{SPF}:{SPF+3}], s{sT0} offen")
    A("s_branch K1_WD")
    A.label("K1_INIT")
    A(f"s_mov_b32 s{sT0}, {WS_FL}")
    for i in range(9):
        A(f"buffer_store_dwordx2 v[12:13], v10, s[{SWS}:{SWS+3}], s{sT0} offen sc1")
        A(f"s_add_u32 s{sT0}, s{sT0}, 8192")
    A("v_mov_b32 v14, 1")
    A("s_waitcnt vmcnt(0)")
    A(f"buffer_store_dword v14, v12, s[{SDBG}:{SDBG+3}], 0 offen sc1")
    A("s_branch K1_WD")
    A.label("K1_NW0")
    A(f"s_cmp_eq_u32 s{sWAVE}, 3")
    A("s_cbranch_scc1 K1_W3")
    if OPT["pf0"]:
        A(f"s_cmp_le_u32 s{sWAVE}, {OPT['pf0']}")
        A("s_cbranch_scc0 K1_WD")
        A(f"s_and_b32 s{sT0}, s{sIDX}, 3")
        A(f"s_lshr_b32 s{sT1}, s2, 5")
        A(f"s_lshl_b32 s{sT1}, s{sT1}, 3")
        A(f"s_add_u32 s{sT1}, s{sT1}, s{sXCD}")
        pf_setup(sT0, sT1)
        A(f"s_cmp_eq_u32 s{sWAVE}, 2")
        A(f"s_cselect_b32 s{sPFA}, s{sPFA}, 0")
        A(f"s_add_u32 s{sPFO}, s{sPFO}, s{sPFA}")
        A(f"buffer_load_dword v{VPF+1}, v{VPFA}, s[{SPF}:{SPF+3}], s{sPFO} offen")
    A("s_branch K1_WD")
    A.label("K1_W3")
    if OPT["pfc"]:
        A("s_getpc_b64 s[62:63]")
        A.label("K1_PC")
        A(f"s_sub_u32 s62, s62, K1_PC-{KNAME}_kernel")
        A("s_subb_u32 s63, s63, 0")
        A(f"s_cmp_lt_u32 s{sIDX}, 28")
        A("s_cbranch_scc1 K1_WD")
        A(f"s_and_b32 s{sT0}, s{sIDX}, 3")
        A(f"s_lshl_b32 s{sT0}, s{sT0}, 13")
        A(f"v_lshl_add_u32 v10, v2, 7, s{sT0}")
        A(f"v_min_u32 v10, K2_SLOW-{KNAME}_kernel, v10")
        A(f"global_load_dword v{VPF+2}, v10, s[62:63]")
    A.label("K1_WD")
    A(f"s_add_u32 s{sT0}, s{sTYPE}, 13")
    A(f"s_lshl_b32 s{sT0}, s{sWM}, s{sT0}")
    A("v_bfe_u32 v5, v2, 1, 3")
    A(f"v_lshl_add_u32 v6, v3, 7, s{sT0}")
    for ks in range(4):
        A(f"v_add_u32 v7, {2*ks}, v4")
        A("v_xor_b32 v7, v7, v5")
        A(f"v_lshl_add_u32 v{XA+ks}, v7, 4, v6")
    A("v_bfe_u32 v5, v2, 2, 2")
    A("v_lshl_add_u32 v6, v4, 3, v5")
    A("v_bfe_u32 v7, v2, 4, 1")
    A("v_bfe_u32 v8, v2, 1, 1")
    A("v_lshl_add_u32 v7, v7, 1, v8")
    A("v_and_b32 v8, 1, v2")
    A("v_lshlrev_b32 v8, 3, v8")
    A("v_lshl_add_u32 v8, v6, 8, v8")
    for u in range(2):
        A(f"s_lshl_b32 s{sT0}, s{sWN}, 1")
        A(f"s_add_u32 s{sT0}, s{sT0}, {u}")
        A(f"v_xor_b32 v9, s{sT0}, v5")
        A("v_lshl_add_u32 v9, v9, 2, v7")
        A(f"v_lshl_add_u32 v{WA+u}, v9, 4, v8")
    A("v_bfe_u32 v7, v2, 4, 1")
    A("v_lshlrev_b32 v7, 5, v7")
    A("v_and_b32 v8, 3, v2")
    A("v_lshl_add_u32 v7, v8, 3, v7")
    A(f"v_lshl_add_u32 v{EA}, v6, 6, v7")
    A(f"s_mov_b32 s{sBASE}, 0")
    A(f"s_mov_b32 s{sCNT}, 16")
    A("v_lshlrev_b32 v3, 4, v2")

    def reads(b, ks, extra, nt, woff):
        R = [f"ds_read_b128 {vr(FX(b,0),4)}, v{XA+ks} offset:0"]
        for u in range(2):
            R.append(f"ds_read_b64_tr_b16 {vr(FW(b,u),2)}, v{WA+u} offset:{woff+ks*4096}")
            R.append(f"ds_read_b64_tr_b16 {vr(FW(b,u)+2,2)}, v{WA+u} offset:{woff+ks*4096+1024}")
        for t in range(1, nt):
            R.append(f"ds_read_b128 {vr(FX(b,t),4)}, v{XA+ks} offset:{t*4096}")
        if extra:
            R.append(f"ds_read_b64_tr_b16 {vr(FE(b),2)}, v{EA} offset:{XEOFF+ks*1024}")
            R.append(f"ds_read_b64_tr_b16 {vr(FE(b)+2,2)}, v{EA} offset:{XEOFF+ks*1024+256}")
        return R
    def mainloop(tag, isX, extra, par=None):
        ex = lambda st: extra if (st & 1) == par else None
        nt, woff, nsl, stg = (2, XWOFF, 4, XS) if isX else (4, P1_WOFF, 3, P1_STAGE)
        A.label(f"K1_ML{tag}")
        A("s_barrier")
        stamp(1)
        for r in reads(0, 0, ex(0), nt, woff): A(r)
        A.label(f"K1_LOOP{tag}")
        start = len(A.lines)
        for s in range(4):
            b = s & 1
            mf = []
            for t in range(nt):
                for u in range(2):
                    mf.append(mfma32(ACC(t,u), FW(b,u), FX(b,t)) if isX else mfma32(ACC(t,u), FX(b,t), FW(b,u)))
            if ex(s) == "K": mf.append(mfma32(XACC, FE(b), FX(b,0)))
            if ex(s) == "V": mf.append(mfma32(XACC, FX(b,0), FE(b)))
            fill = reads(b ^ 1, (s + 1) & 3, ex(s + 1), nt, woff)
            post = []
            if s == 1:
                post = [f"s_add_u32 s{sBASE}, s{sBASE}, 1", f"s_cmp_eq_u32 s{sBASE}, {nsl}",
                        f"s_cselect_b32 s{sDELTA}, {-(nsl-1)*stg & 0xffffffff}, s{sSTG}", f"s_cselect_b32 s{sBASE}, 0, s{sBASE}"]
            if s == 2: post = [f"v_add_u32 v{XA+i}, s{sDELTA}, v{XA+i}" for i in range(7 if extra else 6)]
            if s == 3: post = [f"s_sub_u32 s{sCNT}, s{sCNT}, 1", f"s_cmp_lg_u32 s{sCNT}, 0"]
            A("s_waitcnt lgkmcnt(0)")
            per = 4 if isX else 2
            for k, m in enumerate(mf):
                if k == len(mf) - 1:
                    assert not fill
                    while post: A(post.pop(0))
                A(m)
                if s == 3 and k == 0: A("s_barrier")
                if fill:
                    for _ in range(per):
                        if fill: A(fill.pop(0))
                else:
                    for _ in range(4):
                        if post: A(post.pop(0))
        A(f"s_cbranch_scc1 K1_LOOP{tag}")
        body = A.lines[start:]
        chk(body + body, f"k1 loop {tag}")

    XF = lambda ks: [32, 52, 72, 176][ks]
    def xreads(ks, extra):
        o = XF(ks)
        R = [f"ds_read_b128 {vr(o,4)}, v{XA+ks}"]
        for u in range(2):
            R.append(f"ds_read_b64_tr_b16 {vr(o+8+4*u,2)}, v{WA+u} offset:{XWOFF+ks*4096}")
            R.append(f"ds_read_b64_tr_b16 {vr(o+10+4*u,2)}, v{WA+u} offset:{XWOFF+ks*4096+1024}")
        R.append(f"ds_read_b128 {vr(o+4,4)}, v{XA+ks} offset:4096")
        if extra:
            R.append(f"ds_read_b64_tr_b16 {vr(o+16,2)}, v{EA} offset:{XEOFF+ks*1024}")
            R.append(f"ds_read_b64_tr_b16 {vr(o+18,2)}, v{EA} offset:{XEOFF+ks*1024+256}")
        return R
    def xloop(tag, extra, par=None):
        ex = lambda st: extra if (st & 1) == par else None
        A.label(f"K1_ML{tag}")
        A("s_barrier")
        stamp(1)
        for ks in range(2):
            for r in xreads(ks, ex(ks)): A(r)
        A("s_waitcnt lgkmcnt(0)")
        body = []
        for s in range(4):
            o = XF(s)
            mf = [mfma32(ACC(t,u), o + 8 + 4 * u, o + 4 * t) for t in range(2) for u in range(2)]
            if ex(s) == "K": mf.append(mfma32(XACC, o + 16, o))
            if ex(s) == "V": mf.append(mfma32(XACC, o, o + 16))
            fill = xreads((s + 2) & 3, ex(s))
            post = []
            if s == 0:
                post = [f"s_add_u32 s{sBASE}, s{sBASE}, 1", f"s_cmp_eq_u32 s{sBASE}, 4",
                        f"s_cselect_b32 s{sDELTA}, {-3*XS & 0xffffffff}, s{sSTG}", f"s_cselect_b32 s{sBASE}, 0, s{sBASE}",
                        f"v_add_u32 v{XA}, s{sDELTA}, v{XA}", f"v_add_u32 v{XA+1}, s{sDELTA}, v{XA+1}", f"v_add_u32 v{XA+2}, s{sDELTA}, v{XA+2}"]
            if s == 1: post = [f"v_add_u32 v{XA+i}, s{sDELTA}, v{XA+i}" for i in range(3, 7 if extra else 6)]
            if s == 3: post = [f"s_sub_u32 s{sCNT}, s{sCNT}, 1", f"s_cmp_lg_u32 s{sCNT}, 0"]
            per = -(-len(fill) // (len(mf) - 1))
            for k, m in enumerate(mf):
                if k == len(mf) - 1:
                    assert not fill
                    body += post; post = []
                body.append(m)
                if s == 2 and k == 0: body.append("s_barrier")
                for _ in range(per):
                    if fill: body.append(fill.pop(0))
        body = auto_waits(body)
        A.label(f"K1_LOOP{tag}")
        for l in body: A(l)
        A(f"s_cbranch_scc1 K1_LOOP{tag}")
        chk(body + body, f"k1 loop {tag}")

    VC1, VC2, VEPS = 4, 6, 8
    def consts():
        A(f"v_mov_b32 v{VC1}, {hexf(LOG2E)}")
        A(f"v_mov_b32 v{VC1+1}, {hexf(LOG2E)}")
        A(f"v_mov_b32 v{VC2}, {hexf(-EPS*LOG2E)}")
        A(f"v_mov_b32 v{VC2+1}, {hexf(-EPS*LOG2E)}")
        A(f"v_mov_b32 v{VEPS}, {hexf(EPS)}")
    def pack_tile(base, dst=None):
        dst = base if dst is None else dst
        return [f"v_cvt_pk_bf16_f32 v{dst+i}, v{base+2*i}, v{base+2*i+1}" for i in range(8)]
    def phi_tile(base, TMP):
        L = [f"v_pk_fma_f32 {vr(TMP+2*i,2)}, {vr(base+2*i,2)}, {vr(VC1,2)}, {vr(VC2,2)}" for i in range(8)]
        for i in range(16):
            L += [f"v_exp_f32 v{TMP+i}, v{TMP+i} clamp", f"v_max_f32 v{base+i}, v{base+i}, v{VEPS}"]
        L += [f"v_pk_add_f32 {vr(base+2*i,2)}, {vr(base+2*i,2)}, {vr(TMP+2*i,2)}" for i in range(8)]
        return L + pack_tile(base)
    def q_store(t, u, src):
        for half in range(2):
            A(f"buffer_store_dwordx4 {vr(src+4*half,4)}, v3, s[{SWS}:{SWS+3}], s{sXO+t} offen offset:{u*2048+half*1024} sc1")
    sPH, sEXW = 33, 32

    A(f"s_cmp_eq_u32 s{sTYPE}, 1")
    A("s_cbranch_scc1 K1_Y")
    for r in range(80): A(f"v_mov_b32 v{XACC+r}, 0")
    A(f"s_mov_b32 s{sSTG}, {XS}")
    A(f"s_lshl_b32 s{sT1}, s{sCBG}, 1")
    A(f"s_add_u32 s{sT1}, s{sT1}, s{sWN}")
    A(f"s_lshl_b32 s{sSG}, s{sT1}, 8")
    A(f"s_lshl_b32 s{sT1}, s{sT1}, 12")
    A(f"s_add_u32 s{sT1}, s{sT1}, {WS_QB}")
    A(f"s_lshl_b32 s{sXO+4}, s{sRB}, 2")
    A(f"s_add_u32 s{sXO+5}, s{sXO+4}, s{sROT}")
    for t in range(2):
        A(f"s_lshl_b32 s{sT0}, s{sWM}, 1")
        A(f"s_add_u32 s{sT0}, s{sT0}, s{sROT}")
        A(f"s_add_u32 s{sT0}, s{sT0}, {t}")
        A(f"s_and_b32 s{sT0}, s{sT0}, 3")
        A(f"s_add_u32 s{sT0}, s{sT0}, s{sXO+4}")
        A(f"s_lshl_b32 s{sT0}, s{sT0}, 16")
        A(f"s_add_u32 s{sXO+t}, s{sT0}, s{sT1}")
    A(f"s_lshr_b32 s{sT0}, s{sRB}, 1")
    A(f"s_lshl_b32 s{sT0}, s{sT0}, 12")
    A(f"s_add_u32 s{sSG}, s{sSG}, s{sT0}")
    A(f"s_add_u32 s{sSG}, s{sSG}, {WS_FL + FL_A}")
    A(f"v_lshlrev_b32 v{240}, 7, v2")
    A("s_mov_b64 s[92:93], 3")
    A(f"s_mov_b32 s{sPH}, 0")
    A(f"s_mov_b32 s{sEXW}, 0")
    A(f"v_mov_b32 v{VZ}, 0")
    A(f"v_add_u32 v30, {L_XX}, v3")
    A(f"s_mov_b32 s{sT1}, {L_XF}")
    A("s_waitcnt lgkmcnt(0)")
    A(f"s_cmp_eq_u32 s{sWM}, 1")
    A("s_cbranch_scc1 K1_MLX")
    A(f"s_cmp_eq_u32 s{sWN}, 1")
    A("s_cbranch_scc1 K1_X1")
    A(f"s_bitcmp1_b32 s{sCBG}, 2")
    A("s_cbranch_scc1 K1_MLV0")
    xloop("K0", "K", 0)
    A(f"s_mov_b32 s{sT0}, {WS_KV}")
    A(f"v_mov_b32 v{VC1}, {hexf(KSCALE)}")
    A("s_branch K1_EPX")
    xloop("V0", "V", 0)
    A(f"s_mov_b32 s{sT0}, {WS_KV + 2048}")
    A(f"v_mov_b32 v{VC1}, 1.0")
    A.label("K1_EPX")
    A(f"v_mov_b32 v{VC1+1}, v{VC1}")
    A(f"s_lshl_b32 s{sXO+5}, s{sXO+5}, 12")
    A(f"s_add_u32 s{sXO+5}, s{sXO+5}, s{sT0}")
    A(f"s_mov_b32 s{sEXW}, 1")
    lds_flag_wait(sT1, 8, 9)
    TX = 176
    for q in range(4):
        A(f"ds_read_b128 {vr(TX+4*q,4)}, v30 offset:{q*1024}")
    A("s_waitcnt lgkmcnt(0)")
    for i in range(8):
        A(f"v_pk_add_f32 {vr(XACC+2*i,2)}, {vr(XACC+2*i,2)}, {vr(TX+2*i,2)}")
    for i in range(8):
        A(f"v_pk_mul_f32 {vr(XACC+2*i,2)}, {vr(XACC+2*i,2)}, {vr(VC1,2)}")
    for ins in pack_tile(XACC): A(ins)
    for half in range(2):
        A(f"buffer_store_dwordx4 {vr(XACC+4*half,4)}, v3, s[{SWS}:{SWS+3}], s{sXO+5} offen offset:{half*1024} sc1")
    A("s_branch K1_EPB")
    A.label("K1_X1")
    A(f"s_bitcmp1_b32 s{sCBG}, 2")
    A("s_cbranch_scc1 K1_MLV1")
    xloop("K1", "K", 1)
    A("s_branch K1_EPX1")
    xloop("V1", "V", 1)
    A.label("K1_EPX1")
    A("s_nop 11")
    for q in range(4):
        A(f"ds_write_b128 v30, {vr(XACC+4*q,4)} offset:{q*1024}")
    lds_flag_set(sT1, 8, 9)
    A("s_branch K1_EPB")
    xloop("X", None)
    A(f"s_cmp_eq_u32 s{sPH}, 1")
    A("s_cbranch_scc1 K1_XDEF")
    A(f"s_cmp_eq_u32 s{sPH}, 2")
    A("s_cbranch_scc1 K1_EPA")
    A("s_nop 7")
    A.label("K1_EPB")
    stamp(2)
    A(f"s_mov_b32 s{sT0}, {hexf(EPS)}")
    for t in range(2):
        for u in range(2):
            d = 196 + 8 * (2 * t + u)
            for ins in pack_tile(ACC(t,u), d): A(ins)
            q_store(t, u, d)
    cnt_load(SDBG, "0 offen", VINI, VZ)
    for r in range(64): A(f"v_mov_b32 v{ACC(0,0)+r}, s{sT0}")
    for t in range(2): A(f"s_sub_u32 s{sXO+t}, s{sXO+t}, {WS_QB - WS_QA}")
    A(f"s_mov_b32 s{sPH}, 1")
    A(f"s_mov_b32 s{sCNT}, {OPT['defat']}")
    A("s_waitcnt lgkmcnt(0)")
    A("s_branch K1_LOOPX")
    A.label("K1_XDEF")
    A("s_waitcnt vmcnt(0)")
    cnt_check(SDBG, "0 offen", 1, VINI, VZ)
    A(f"v_mov_b32 v{VINI}, 1")
    A(f"s_mov_b32 s{sPH}, 2")
    A(f"s_mov_b32 s{sCNT}, {16 - OPT['defat']}")
    A(f"s_cmp_eq_u32 s{sEXW}, 0")
    A("s_cbranch_scc1 K1_XDE2")
    A(f"s_mov_b32 s{sT0}, {WS_FL + FL_B}")
    A(f"buffer_atomic_add v{VINI}, v240, s[{SWS}:{SWS+3}], s{sT0} offen sc1")
    A.label("K1_XDE2")
    A("s_mov_b64 exec, 3")
    A(f"buffer_atomic_add v{VINI}, v240, s[{SWS}:{SWS+3}], s{sSG} offen offset:4 sc1")
    A("s_mov_b64 exec, -1")
    A("s_branch K1_LOOPX")
    A.label("K1_EPA")
    stamp(3)
    consts()
    A("s_nop 3")
    for t in range(2):
        for u in range(2):
            for ins in phi_tile(ACC(t,u), 176): A(ins)
            q_store(t, u, ACC(t,u))
    A(f"v_mov_b32 v{VSG}, v240")
    A("s_branch K1_DONE")
    A.label("K1_Y")
    A(f"s_mov_b32 s{sSTG}, {P1_STAGE}")
    A(f"s_mov_b32 s{sT0}, {hexf(EPS)}")
    for t in range(4):
        for r in range(16):
            A(f"v_mov_b32 v{ACC(t,0)+r}, s{sT0}")
            A(f"v_mov_b32 v{ACC(t,1)+r}, 0")
    A("s_waitcnt lgkmcnt(0)")
    mainloop("Y", False, None)
    stamp(2)
    stamp(3)
    consts()
    ONES, TMP, KVD, ZD = 12, 32, 64, 80
    for i in range(4): A(f"v_mov_b32 v{ONES+i}, 0x3f803f80")
    A("s_waitcnt vmcnt(0) lgkmcnt(0)")
    TMP = 96
    def kvm(t):
        M = []
        for half in range(2):
            first = (t == 0 and half == 0)
            M.append(mfma32(KVD, ACC(t,0)+4*half, ACC(t,1)+4*half, "0" if first else None))
            M.append(mfma32(ZD, ONES, ACC(t,0)+4*half, "0" if first else None))
        return M
    pend = []
    for t in range(4):
        V = phi_tile(ACC(t,0), TMP) + pack_tile(ACC(t,1))
        for i, v in enumerate(V):
            if pend and i % 8 == 2 and i >= 10: A(pend.pop(0))
            A(v)
        assert not pend
        pend = kvm(t)
    A(f"s_lshl_b32 s{sT0}, s{sWN}, 13")
    A(f"v_add_u32 v5, s{sT0}, v3")
    for m in pend: A(m)
    A(f"s_lshl_b32 s{sT0}, s{sCBG}, 1")
    A(f"s_add_u32 s{sT0}, s{sT0}, s{sWN}")
    A(f"s_lshl_b32 s{sSG}, s{sT0}, 7")
    A(f"s_add_u32 s{sSG}, s{sSG}, {WS_FL + FL_A}")
    A(f"s_lshl_b32 s{sXO}, s{sT0}, 3")
    A(f"s_add_u32 s{sXO}, s{sXO}, s{sRB}")
    A(f"s_lshl_b32 s{sXO+1}, s{sXO}, 7")
    A(f"s_add_u32 s{sXO+1}, s{sXO+1}, {WS_ZP}")
    A(f"s_lshl_b32 s{sXO}, s{sXO}, 12")
    A(f"s_add_u32 s{sXO}, s{sXO}, {WS_KVP}")
    A("v_and_b32 v4, 31, v2")
    A("v_lshlrev_b32 v4, 2, v4")
    A(f"v_lshlrev_b32 v{VSG}, 12, v2")
    A(f"s_lshl_b32 s{sT0}, s{sWN}, 2")
    A(f"s_add_u32 s{sT0}, s{sT0}, {L_XF}")
    A(f"s_cmp_eq_u32 s{sWM}, 0")
    A("s_cbranch_scc1 K1_KVR")
    for q in range(4):
        A(f"ds_write_b128 v5, {vr(KVD+4*q,4)} offset:{q*1024}")
    A(f"ds_write_b32 v5, v{ZD} offset:4096")
    lds_flag_set(sT0, 8, 9)
    A("s_mov_b64 s[92:93], 0")
    A("s_branch K1_DONE")
    A.label("K1_KVR")
    lds_flag_wait(sT0, 8, 9)
    TMP = 32
    for q in range(4):
        A(f"ds_read_b128 {vr(TMP+4*q,4)}, v5 offset:{q*1024}")
    A(f"ds_read_b32 v{TMP+16}, v5 offset:4096")
    A("s_mov_b64 s[92:93], 0xff")
    A("s_waitcnt lgkmcnt(0)")
    for i in range(8):
        A(f"v_pk_add_f32 {vr(KVD+2*i,2)}, {vr(KVD+2*i,2)}, {vr(TMP+2*i,2)}")
    A(f"v_add_f32 v{ZD}, v{ZD}, v{TMP+16}")
    for q in range(4):
        A(f"buffer_store_dwordx4 {vr(KVD+4*q,4)}, v3, s[{SWS}:{SWS+3}], s{sXO} offen offset:{q*1024} sc1")
    A(f"buffer_store_dword v{ZD}, v4, s[{SWS}:{SWS+3}], s{sXO+1} offen sc1")
    A.label("K1_DONE")
    A("s_waitcnt lgkmcnt(0)")
    return None

sH, sRB8, sQO, sHW, sM0, sGO, sNB = 23, 24, 29, 26, 30, 31, 32
VL16 = 1
def p2_common():
    A(f"s_and_b32 s{sH}, s2, 31")
    A(f"s_lshr_b32 s{sRB8}, s2, 5")
    A(f"v_lshlrev_b32 v{VL16}, 4, v2")
    A("v_lshrrev_b32 v7, 5, v2")
    A(f"s_and_b32 s{sHW}, s{sWAVE}, 3")
    A(f"s_lshl_b32 s{sQO}, s{sRB8}, 2")
    A(f"s_add_u32 s{sQO}, s{sQO}, s{sHW}")
    A(f"s_lshl_b32 s{sQO}, s{sQO}, 17")
    A(f"s_lshl_b32 s{sT0}, s{sH}, 11")
    A(f"s_add_u32 s{sQO}, s{sQO}, s{sT0}")

AT = dict(Q=[16, 128], ONES=24, KF=28, VF=36, P=44, L=[52, 56], S=[64, 80], O=[96, 140], NEGM=[112, 156], T=60, VCUR=3, VNXT=4)
def p2_attn(sFL1):
    VCUR, VNXT = 3, 4
    Q, ONES, KF, VF, P, L, S, O, NEGM = (AT[k] for k in ("Q", "ONES", "KF", "VF", "P", "L", "S", "O", "NEGM"))
    p2_common()
    stamp(4)
    A("v_bfe_u32 v8, v2, 2, 1")
    A("v_bfe_u32 v9, v2, 4, 1")
    A("v_cmp_eq_u32 vcc, v8, v9")
    A("v_mov_b32 v8, 0x3f803f80")
    A(f"v_add_u32 v{VCUR}, {L_R}, v{VL16}")
    A(f"v_cndmask_b32 v{ONES}, 0, v8, vcc")
    if OPT["sumv"] == 3: A(f"v_mov_b32 v{ONES}, v8")
    for i in range(1, 4):
        A(f"v_mov_b32 v{ONES+i}, v{ONES}")
    for x in range(2):
        for i in range(16):
            A(f"v_mov_b32 v{O[x]+i}, 0")
        for i in range(4):
            A(f"v_mov_b32 v{L[x]+i}, 0")
    for i in range(4):
        A(f"v_mov_b32 v{VF+4+i}, 0")
        A(f"v_mov_b32 v{P+4+i}, 0")
    A(f"v_mov_b32 v{AT['T']}, 0")
    A(f"v_mov_b32 v{AT['T']+1}, 0")
    A(f"v_add_u32 v{VNXT}, 16384, v{VCUR}")
    A(f"s_lshl_b32 s{sT0}, s{sHW}, 12")
    A(f"v_add_u32 v5, s{sT0}, v{VL16}")
    A(f"s_mov_b32 s{sCNT}, 0")
    A("s_barrier")
    stamp(5)
    A(f"ds_read_b128 {vr(KF,4)}, v{VCUR}")
    A(f"ds_read_b128 {vr(Q[0],4)}, v5 offset:{L_QS}")
    A(f"ds_read_b128 {vr(Q[1],4)}, v5 offset:{L_QS+2048}")
    A(f"ds_read_b128 {vr(KF+4,4)}, v{VCUR} offset:1024")
    A(f"ds_read_b128 {vr(Q[0]+4,4)}, v5 offset:{L_QS+1024}")
    A(f"ds_read_b128 {vr(Q[1]+4,4)}, v5 offset:{L_QS+3072}")
    A(f"ds_read_b128 {vr(VF,4)}, v{VCUR} offset:2048")
    A("s_waitcnt lgkmcnt(4)")
    A(mfma32(S[0], KF, Q[0], "0"))
    A(mfma32(S[1], KF, Q[1], "0"))
    A("s_waitcnt lgkmcnt(1)")
    A(mfma32(S[0], KF+4, Q[0]+4))
    A(mfma32(S[1], KF+4, Q[1]+4))
    A("s_nop 10")
    for x in range(2):
        m = 8 + 2 * x
        A(f"v_max3_f32 v{m}, v{S[x]}, v{S[x]+1}, v{S[x]+2}")
        A(f"v_max3_f32 v{m+1}, v{S[x]+3}, v{S[x]+4}, v{S[x]+5}")
        for i in range(6, 14, 4):
            A(f"v_max3_f32 v{m}, v{m}, v{S[x]+i}, v{S[x]+i+1}")
            A(f"v_max3_f32 v{m+1}, v{m+1}, v{S[x]+i+2}, v{S[x]+i+3}")
        A(f"v_max3_f32 v{m}, v{m}, v{S[x]+14}, v{S[x]+15}")
        A(f"v_max_f32 v{m}, v{m}, v{m+1}")
        A(f"v_mov_b32 v{m+1}, v{m}")
    A("s_nop 0")
    A("v_permlane32_swap_b32 v8, v9")
    A("v_permlane32_swap_b32 v10, v11")
    A("v_max_f32 v8, v8, v9")
    A("v_max_f32 v10, v10, v11")
    for x, m in ((1, 10), (0, 8)):
        A(f"v_sub_f32 v{NEGM[x]}, 0, v{m}")
        A(f"v_sub_f32 v{NEGM[x]+1}, 0, v{m}")
        for i in range(1, 8):
            A(f"v_pk_mov_b32 {vr(NEGM[x]+2*i,2)}, {vr(NEGM[x],2)}, {vr(NEGM[x],2)}")
    for i in range(8):
        A(f"v_pk_add_f32 {vr(S[0]+2*i,2)}, {vr(S[0]+2*i,2)}, {vr(NEGM[0],2)}")
    stamp(6)
    lite(6)
    nb = [f"s_add_u32 s{sNB}, s{sCNT}, 2", f"s_and_b32 s{sNB}, s{sNB}, 3", f"s_lshl_b32 s{sNB}, s{sNB}, 14", f"s_add_u32 s{sNB}, s{sNB}, {L_R}"]
    sEND = 33
    A(f"s_mov_b32 s{sEND}, 1")
    cn = [f"s_add_u32 s{sCNT}, s{sCNT}, 1", f"s_cmp_lt_u32 s{sCNT}, s{sEND}"]
    B = attn_body(AT, False, {3: nb, 7: cn}, sumv=OPT['sumv']) + [f"v_mov_b32 v{VCUR}, v{VNXT}", f"v_add_u32 v{VNXT}, s{sNB}, v{VL16}"]
    A("s_waitcnt lgkmcnt(0)")
    A(B[0])
    A.label("K2_LOOP")
    for l in B[1:]: A(l)
    A(B[0])
    A("s_cbranch_scc1 K2_LOOP")
    chk(B + B, "k2 loop")
    A(f"s_cmp_eq_u32 s{sCNT}, 16")
    A("s_cbranch_scc1 K2_DONE")
    A(f"s_mov_b32 s{sEND}, 16")
    A("s_cmp_eq_u64 s[92:93], 0")
    A("s_cbranch_scc1 K2_LOOP")
    A(f"v_mov_b32 v{VSG+1}, 1")
    A("s_mov_b64 exec, s[92:93]")
    A("s_waitcnt vmcnt(0)")
    A(f"buffer_atomic_add v{VSG+1}, v{VSG}, s[{SWS}:{SWS+3}], s{sSG} offen sc1")
    A("s_mov_b64 exec, -1")
    A("s_branch K2_LOOP")
    A.label("K2_DONE")
    A(f"v_cvt_pk_bf16_f32 v{P+7}, v{AT['T']}, v{AT['T']+1}")
    A("s_nop 1")
    stamp(7)
    lite(7)
    A(mfma32(O[1], VF+4, P+4))
    if OPT["sumv"] == 3:
        A(f"v_mfma_f32_4x4x4_16b_bf16 {vr(L[1],4)}, {vr(ONES,2)}, {vr(P+4,2)}, {vr(L[1],4)}")
        A("s_nop 1")
        A(f"v_mfma_f32_4x4x4_16b_bf16 {vr(L[1],4)}, {vr(ONES,2)}, {vr(P+6,2)}, {vr(L[1],4)}")
        A("s_nop 7")
        for x in range(2):
            A(f"v_permlane32_swap_b32 v{L[x]}, v{L[x]+1}")
            A(f"v_add_f32 v{L[x]}, v{L[x]}, v{L[x]+1}")
    elif OPT["sumv"]:
        A(f"v_pk_add_f32 {vr(L[1]+2,2)}, {vr(L[1]+2,2)}, {vr(AT['T'],2)}")
        for x in range(2):
            A(f"v_pk_add_f32 {vr(L[x],2)}, {vr(L[x],2)}, {vr(L[x]+2,2)}")
            A(f"v_add_f32 v{L[x]}, v{L[x]}, v{L[x]+1}")
            A(f"v_mov_b32 v{L[x]+1}, v{L[x]}")
            A("s_nop 1")
            A(f"v_permlane32_swap_b32 v{L[x]}, v{L[x]+1}")
            A(f"v_add_f32 v{L[x]}, v{L[x]}, v{L[x]+1}")
            if OPT["sumv"] == 2: A(f"v_mov_b32 v{L[x]}, 1.0")
    else:
        A(mfma16(L[1], ONES, P+4))
    sO0, sO1, sFL = 68, 69, 70
    A(f"s_add_u32 s{sO0}, s{sQO}, {WS_OB}")
    A(f"s_add_u32 s{sO1}, s{sO0}, 65536")
    A(f"v_mov_b32 v10, {hexf(2.0**120)}")
    A(f"v_mov_b32 v11, {hexf(2.0**60)}")
    first = True
    for x in range(2):
        for i in range(0, 16, 2):
            if first:
                A(f"v_add_f32 v8, |v{O[x]}|, |v{O[x]+1}|"); A(f"v_mov_b32 v9, 0"); first = False
            else:
                A(f"v_add_f32 v8, v8, |v{O[x]+i}|")
                A(f"v_add_f32 v9, v9, |v{O[x]+i+1}|")
    A(f"v_cmp_nlt_f32 vcc, v{L[0]}, v11")
    A(f"v_cmp_nlt_f32 s[72:73], v{L[1]}, v11")
    A("v_add_f32 v8, v8, v9")
    A("v_cmp_nlt_f32 s[74:75], v8, v10")
    A("s_or_b64 vcc, vcc, s[72:73]")
    A("s_nop 1")
    A("s_or_b64 vcc, vcc, s[74:75]")
    A("s_cbranch_vccnz K2_SLOW")
    A.label("K2_FIN")
    A(f"v_rcp_f32 v8, v{L[0]}")
    A(f"v_rcp_f32 v10, v{L[1]}")
    A("v_mov_b32 v9, v8")
    A("v_mov_b32 v11, v10")
    for x in range(2):
        for i in range(8):
            A(f"v_pk_mul_f32 {vr(O[x]+2*i,2)}, {vr(O[x]+2*i,2)}, v[{8+2*x}:{9+2*x}]")
        for i in range(8):
            A(f"v_cvt_pk_bf16_f32 v{O[x]+i}, v{O[x]+2*i}, v{O[x]+2*i+1}")
        for half in range(2):
            A(f"buffer_store_dwordx4 {vr(O[x]+4*half,4)}, v{VL16}, s[{SWS}:{SWS+3}], s{sO0+x} offen offset:{half*1024} sc1")
    A(f"s_lshl_b32 s{sFL}, s{sRB8}, 11")
    A(f"s_add_u32 s{sFL}, s{sFL}, {WS_FL + FL_O + 128 * 128}")
    stamp(8)
    return sFL

def p2_slow():
    Q, ONES, KF, VF, P, L, S, O, NEGM = (AT[k] for k in ("Q", "ONES", "KF", "VF", "P", "L", "S", "O", "NEGM"))
    A.label("K2_SLOW")
    sK = 33
    for x in range(2):
        A(f"v_mov_b32 v8, 0xff800000")
        A(f"s_mov_b32 s{sK}, {WS_KV}")
        A(f"s_mov_b32 s{sCNT}, 0")
        A("s_waitcnt lgkmcnt(0)")
        A.label(f"K2_SLOW1{x}")
        A(f"buffer_load_dwordx4 {vr(KF,4)}, v{VL16}, s[{SWS}:{SWS+3}], s{sK} offen sc1")
        A(f"buffer_load_dwordx4 {vr(KF+4,4)}, v{VL16}, s[{SWS}:{SWS+3}], s{sK} offen offset:1024 sc1")
        A("s_waitcnt vmcnt(0)")
        A(mfma32(S[0], KF, Q[x], "0"))
        A(mfma32(S[0], KF+4, Q[x]+4))
        A("s_nop 15")
        for i in range(0, 16, 2):
            A(f"v_max3_f32 v8, v8, v{S[0]+i}, v{S[0]+i+1}")
        A(f"s_add_u32 s{sK}, s{sK}, 4096")
        A(f"s_add_u32 s{sCNT}, s{sCNT}, 1")
        A(f"s_cmp_lt_u32 s{sCNT}, 64")
        A(f"s_cbranch_scc1 K2_SLOW1{x}")
        A("v_mov_b32 v9, v8")
        A("s_nop 1")
        A("v_permlane32_swap_b32 v8, v9")
        A("v_max_f32 v8, v8, v9")
        for i in range(16):
            A(f"v_sub_f32 v{NEGM[0]+i}, 0, v8")
            A(f"v_mov_b32 v{O[x]+i}, 0")
        for i in range(4):
            A(f"v_mov_b32 v{L[x]+i}, 0")
        A(f"s_mov_b32 s{sK}, {WS_KV}")
        A(f"s_mov_b32 s{sCNT}, 0")
        A.label(f"K2_SLOW2{x}")
        for i in range(2):
            A(f"buffer_load_dwordx4 {vr(KF+4*i,4)}, v{VL16}, s[{SWS}:{SWS+3}], s{sK} offen offset:{1024*i} sc1")
            A(f"buffer_load_dwordx4 {vr(VF+4*i,4)}, v{VL16}, s[{SWS}:{SWS+3}], s{sK} offen offset:{2048+1024*i} sc1")
        A("s_waitcnt vmcnt(0)")
        A(mfma32(S[0], KF, Q[x], NEGM[0]))
        A(mfma32(S[0], KF+4, Q[x]+4))
        A("s_nop 15")
        for i in range(16):
            A(f"v_exp_f32 v{S[0]+i}, v{S[0]+i}")
        A("s_nop 0")
        for i in range(8):
            A(f"v_cvt_pk_bf16_f32 v{P+i}, v{S[0]+2*i}, v{S[0]+2*i+1}")
        A("s_nop 1")
        A(mfma32(O[x], VF, P))
        A(mfma16(L[x], ONES, P))
        A(mfma32(O[x], VF+4, P+4))
        A(mfma16(L[x], ONES, P+4))
        A("s_nop 15")
        A(f"s_add_u32 s{sK}, s{sK}, 4096")
        A(f"s_add_u32 s{sCNT}, s{sCNT}, 1")
        A(f"s_cmp_lt_u32 s{sCNT}, 64")
        A(f"s_cbranch_scc1 K2_SLOW2{x}")
    A("s_branch K2_FIN")

sBR, sRB16, sCB = 88, 89, 90
def p3_decode():
    A(f"s_lshr_b32 s{sBR}, s{sXCD}, 2")
    A(f"s_and_b32 s{sRB16}, s{sXCD}, 1")
    A(f"s_lshl_b32 s{sRB16}, s{sRB16}, 3")
    A(f"s_and_b32 s{sT0}, s{sIDX}, 7")
    A(f"s_add_u32 s{sRB16}, s{sRB16}, s{sT0}")
    A(f"s_bfe_u32 s{sCB}, s{sXCD}, 0x10001")
    A(f"s_lshl_b32 s{sCB}, s{sCB}, 2")
    A(f"s_lshr_b32 s{sT0}, s{sIDX}, 3")
    A(f"s_add_u32 s{sCB}, s{sCB}, s{sT0}")

def p23_helper():
    KVP, ZP, PQ, KVA, ZA, NUM, DEN, VPF, VW, VFL, VT = 16, 48, 52, 68, 76, 84, 100, 116, 117, 118, 120
    sA0, sA1, sFL, sAO = 68, 69, 70, 71
    vm = VM()
    A(f"s_setprio {OPT['hprio']}")
    p2_common()
    p3_decode()
    A(f"s_lshl_b32 s{sM0}, s{sHW}, 12")
    A(f"s_add_u32 s{sGO}, s{sM0}, {WS_KV}")
    A(f"s_add_u32 s{sA0}, s{sQO}, {WS_QB}")
    A(f"s_add_u32 s{sA1}, s{sA0}, {65536 - 2048}")
    A("s_waitcnt vmcnt(0)")
    cnt_check(SWS, "s92 offen", 128, 120, 119)
    cnt_check(SWS, "s93 offen offset:4", 4, 121, 119)
    stamp(2)
    nxt = [0]
    def dma_chunk():
        c = nxt[0]
        if c >= 16: return
        A(f"s_add_u32 m0, s{sM0}, {L_R + (c % 4) * 16384}")
        A("s_nop 0")
        for n in range(4):
            A(f"buffer_load_dwordx4 v{VL16}, s[{SWS}:{SWS+3}], s{sGO} offen offset:{n*1024} {OPT['ld']} lds")
        A(f"s_add_u32 s{sGO}, s{sGO}, 16384")
        vm.add(("c", c), 4)
        nxt[0] += 1
    A(f"s_add_u32 m0, s{sM0}, {L_QS}")
    A("s_nop 0")
    for n in range(4):
        A(f"buffer_load_dwordx4 v{VL16}, s[{SWS}:{SWS+3}], s{sA0 + (n >> 1)} offen offset:{n*1024} sc1 lds")
    vm.add("q", 4)
    dma_chunk()
    A(f"s_cmp_eq_u32 s{sBR}, 1")
    A(f"s_cselect_b64 s[62:63], s[{pBWO}:{pBWO+1}], s[{pAWO}:{pAWO+1}]")
    srd(SWO, 62, 2 << 20)
    A("v_lshrrev_b32 v4, 4, v2")
    A("v_and_b32 v5, 15, v2")
    A("v_lshlrev_b32 v8, 2, v4")
    A("v_xor_b32 v5, v5, v8")
    A("v_lshlrev_b32 v4, 11, v4")
    A(f"v_lshl_add_u32 v{VW}, v5, 4, v4")
    A(f"s_lshl_b32 s{sT0}, s{sCB}, 8")
    A(f"v_add_u32 v{VW}, s{sT0}, v{VW}")
    A(f"s_lshl_b32 s{sWO}, s{sHW}, 13")
    for n in range(1, 4):
        A(f"s_add_u32 s{sWO+n}, s{sWO}, {n*16*2048}")
    sWD = 80
    A(f"s_lshl_b32 s{sWD}, s{sHW}, 10")
    nw = [0]
    def dma_w():
        s_ = nw[0]
        if s_ >= 16: return
        for n in range(4):
            A(f"s_add_u32 m0, s{sWD}, {L_WR + (s_ % 5) * 16384 + n * 4096}")
            A("s_nop 0")
            A(f"buffer_load_dwordx4 v{VW}, s[{SWO}:{SWO+3}], s{sWO+n} offen lds")
        A(f"v_add_u32 v{VW}, {64*2048}, v{VW}")
        vm.add(("w", s_), 4)
        nw[0] += 1
    no = [0]
    def dma_o():
        s_ = no[0]
        if s_ >= 16: return
        A(f"s_add_u32 m0, s{sM0}, {L_R + (s_ % 4) * 16384}")
        A("s_nop 0")
        for n in range(4):
            A(f"buffer_load_dwordx4 v{VL16}, s[{SWS}:{SWS+3}], s{sAO} offen offset:{n*1024} {OPT['ld']} lds")
        A(f"s_add_u32 s{sAO}, s{sAO}, 4096")
        vm.add(("o", s_), 4)
        no[0] += 1
    def side_loads():
        A(f"s_lshl_b32 s{sT0}, s2, 7")
        A(f"s_add_u32 s{sT0}, s{sT0}, {WS_FL + FL_A}")
        poll_shared(f"s{sT0}", 12, L_GOA, VT)
        A(f"s_lshl_b32 s{sT0}, s{sH}, 15")
        A(f"s_lshl_b32 s{sT1}, s{sHW}, 10")
        A(f"s_add_u32 s{sT0}, s{sT0}, s{sT1}")
        A(f"s_add_u32 s{sT0}, s{sT0}, {WS_KVP}")
        for p in range(8):
            A(f"buffer_load_dwordx4 {vr(KVP+4*p,4)}, v{VL16}, s[{SWS}:{SWS+3}], s{sT0} offen sc1")
            if p < 7: A(f"s_add_u32 s{sT0}, s{sT0}, 4096")
        A("v_and_b32 v6, 31, v2")
        A("v_lshlrev_b32 v6, 2, v6")
        A("v_lshl_add_u32 v6, v7, 9, v6")
        A(f"s_lshl_b32 s{sT0}, s{sH}, 10")
        A(f"s_add_u32 s{sT0}, s{sT0}, {WS_ZP}")
        for i in range(4):
            A(f"buffer_load_dword v{ZP+i}, v6, s[{SWS}:{SWS+3}], s{sT0} offen offset:{i*128} sc1")
        A(f"s_add_u32 s{sA0}, s{sQO}, {WS_QA}")
        A(f"s_add_u32 s{sA1}, s{sA0}, 65536")
        for r in range(2):
            for half in range(2):
                A(f"buffer_load_dwordx4 {vr(PQ+8*r+4*half,4)}, v{VL16}, s[{SWS}:{SWS+3}], s{sA0+r} offen offset:{half*1024} sc1")
        vm.add("side", 16)
    def step_a():
        vm.wait(A, "side")
        n = 8
        while n > 1:
            n //= 2
            for i in range(n):
                for hf in range(2):
                    A(f"v_pk_add_f32 {vr(KVP+4*i+2*hf,2)}, {vr(KVP+4*i+2*hf,2)}, {vr(KVP+4*(i+n)+2*hf,2)}")
        A(f"s_lshr_b32 s{sT0}, s{sHW}, 1")
        A(f"s_lshl_b32 s{sT0}, s{sT0}, 10")
        A(f"s_and_b32 s{sT1}, s{sHW}, 1")
        A(f"s_lshl_b32 s{sT1}, s{sT1}, 3")
        A(f"s_add_u32 s{sT0}, s{sT0}, s{sT1}")
        A(f"s_add_u32 s{sT0}, s{sT0}, {L_KVX}")
        A(f"v_add_u32 v8, s{sT0}, v{VL16}")
        A(f"v_cvt_pk_bf16_f32 v{KVP}, v{KVP}, v{KVP+1}")
        A(f"v_cvt_pk_bf16_f32 v{KVP+1}, v{KVP+2}, v{KVP+3}")
        A(f"ds_write_b64 v8, {vr(KVP,2)}")
        A(f"s_cmp_eq_u32 s{sHW}, 0")
        A("s_cbranch_scc0 K2_NOZ")
        A(f"v_pk_add_f32 {vr(ZP,2)}, {vr(ZP,2)}, {vr(ZP+2,2)}")
        A("v_and_b32 v9, 31, v2")
        A(f"v_add_f32 v{ZP}, v{ZP}, v{ZP+1}")
        A("v_lshlrev_b32 v9, 1, v9")
        A(f"v_mov_b32 v{ZP+1}, v{ZP}")
        A(f"v_add_u32 v9, {L_ZX}, v9")
        A("s_nop 0")
        A(f"v_permlane32_swap_b32 v{ZP}, v{ZP+1}")
        A(f"v_add_f32 v{ZP}, v{ZP}, v{ZP+1}")
        A(f"v_cvt_pk_bf16_f32 v{ZP}, v{ZP}, v{ZP}")
        A(f"ds_write_b16 v9, v{ZP}")
        A.label("K2_NOZ")
        A("s_waitcnt lgkmcnt(0)")
    def step_b():
        A("v_lshlrev_b32 v10, 3, v7")
        A(f"v_add_u32 v10, {L_ZX}, v10")
        A(f"v_add_u32 v11, {L_KVX}, v{VL16}")
        A(f"ds_read2_b64 {vr(ZA,4)}, v10 offset0:0 offset1:2")
        A(f"ds_read2_b64 {vr(ZA+4,4)}, v10 offset0:4 offset1:6")
        A(f"ds_read_b128 {vr(KVA,4)}, v11")
        A(f"ds_read_b128 {vr(KVA+4,4)}, v11 offset:1024")
        A(f"s_add_u32 s{sA0}, s{sQO}, {WS_OA}")
        A(f"s_add_u32 s{sA1}, s{sA0}, 65536")
        A("s_waitcnt lgkmcnt(0)")
        NUMS, DENS = [NUM, 16], [DEN, 32]
        for r in range(2):
            A(mfma32(DENS[r], ZA, PQ+8*r, "0"))
            A(mfma32(DENS[r], ZA+4, PQ+8*r+4))
            A(mfma32(NUMS[r], KVA, PQ+8*r, "0"))
            A(mfma32(NUMS[r], KVA+4, PQ+8*r+4))
        A("s_nop 7")
        for r in range(2):
            N_ = NUMS[r]
            A(f"v_add_f32 v8, {hexf(EPS)}, v{DENS[r]}")
            A("v_rcp_f32 v8, v8")
            A("s_nop 0")
            A("v_mov_b32 v9, v8")
            for i in range(8):
                A(f"v_pk_mul_f32 {vr(N_+2*i,2)}, {vr(N_+2*i,2)}, v[8:9]")
            for i in range(8):
                A(f"v_cvt_pk_bf16_f32 v{N_+i}, v{N_+2*i}, v{N_+2*i+1}")
            for half in range(2):
                A(f"buffer_store_dwordx4 {vr(N_+4*half,4)}, v{VL16}, s[{SWS}:{SWS+3}], s{sA0+r} offen offset:{half*1024} sc1")
        vm.add("st", 4)
    def sig_oa():
        A(f"s_lshl_b32 s{sFL}, s{sRB8}, 11")
        A(f"s_add_u32 s{sFL}, s{sFL}, {WS_FL + FL_O}")
        A("v_lshlrev_b32 v10, 7, v2")
        signal(L_CNTA, sFL, 10, "0xffff", 8, 9)
        vm.clear()
        vm.add("flagst")
    def pf_wo():
        A("s_cmp_ge_u32 s2, 128")
        A(f"s_cselect_b64 s[62:63], s[{pBWO}:{pBWO+1}], s[{pAWO}:{pAWO+1}]")
        srd(SPF, 62, 2 << 20)
        A("v_lshlrev_b32 v8, 7, v2")
        A(f"s_and_b32 s{sT0}, s2, 127")
        A(f"s_lshl_b32 s{sT0}, s{sT0}, 1")
        A(f"s_add_u32 s{sT0}, s{sT0}, s{sHW}")
        A(f"s_lshl_b32 s{sT0}, s{sT0}, 13")
        A(f"s_cmp_lt_u32 s{sHW}, {2 if OPT['pf2'] else 0}")
        A(f"s_cselect_b32 s{sT0}, s{sT0}, {OOB}")
        A(f"buffer_load_dword v{VPF}, v8, s[{SPF}:{SPF+3}], s{sT0} offen")
        vm.add("pf")
    vm.wait(A, "q", ("c", 0))
    stamp(3)
    A("s_barrier")
    for c in range(1, 17):
        if c == 8: sig_oa()
        if c == 4 and not OPT["nosp"] & 1: side_loads()
        lim = min(15, c + 1) if c >= 3 else 3
        k = 0
        while nxt[0] <= lim and k < 2:
            dma_chunk(); k += 1
        if c == 5 and not OPT["nosp"] & 2: pf_wo()
        if c == 6 and not OPT["nosp"] & 1: step_a()
        if c == 7 and not OPT["nosp"] & 1: step_b()
        if 10 <= c < 10 + OPT["wpre"]: dma_w()
        vm.wait(A, ("c", c))
        A("s_barrier")
    stamp(4)
    A(f"s_lshl_b32 s{sAO}, s{sRB16}, 2")
    A(f"s_add_u32 s{sAO}, s{sAO}, s{sHW}")
    A(f"s_lshl_b32 s{sAO}, s{sAO}, 16")
    A(f"s_lshl_b32 s{sT0}, s{sBR}, 22")
    A(f"s_add_u32 s{sAO}, s{sAO}, s{sT0}")
    A(f"s_add_u32 s{sAO}, s{sAO}, {WS_OA}")
    A(f"s_lshl_b32 s{sT0}, s{sBR}, 4")
    A(f"s_add_u32 s{sT0}, s{sT0}, s{sRB16}")
    A(f"s_lshl_b32 s{sT0}, s{sT0}, 3")
    A(f"s_add_u32 s{sT0}, s{sT0}, s{sCB}")
    A(f"s_lshl_b32 s{sT0}, s{sT0}, 7")
    A(f"s_add_u32 s{sT0}, s{sT0}, {WS_FL + FL_O}")
    while nw[0] < 5: dma_w()
    poll_shared(f"s{sT0}", 32, L_GOO, VT)
    stamp(5)
    dma_o(); dma_o(); dma_o()
    for i in range(16):
        vm.wait(A, ("o", i), ("w", i))
        if i == 0: stamp(6)
        A("s_barrier")
        if no[0] <= i + 3: dma_o()
        if i >= 1 and nw[0] <= i + 4: dma_w()
    stamp(7)
    stamp_out()
    A("s_endpgm")

def p3_compute(sFL2):
    AA, WA = 16, 17
    FB = [32, 48]
    FA = lambda b, t: FB[b] + 4 * t
    FW = lambda b, u: FB[b] + 8 + 4 * u
    ACC = lambda t, u: 176 + 16 * (2 * t + u)
    sBO, sBW, sDO, sDW, sOUT = 30, 31, 32, 33, 71
    p3_decode()
    srd(SOUT, pOUT, 8 << 20)
    A(f"s_lshl_b32 s{sT0}, s{sWM}, 13")
    A(f"s_add_u32 s{sT0}, s{sT0}, {L_R}")
    A(f"v_lshl_add_u32 v{AA}, v2, 4, s{sT0}")
    A("v_lshrrev_b32 v4, 5, v2")
    A("v_bfe_u32 v5, v2, 2, 2")
    A("v_lshl_add_u32 v6, v4, 2, v5")
    A("v_bfe_u32 v7, v2, 4, 1")
    A("v_bfe_u32 v8, v2, 1, 1")
    A("v_lshl_add_u32 v7, v7, 1, v8")
    A("v_and_b32 v8, 1, v2")
    A("v_lshlrev_b32 v8, 3, v8")
    A("v_lshl_add_u32 v8, v6, 8, v8")
    for u in range(2):
        A(f"s_lshl_b32 s{sT0}, s{sWN}, 1")
        A(f"s_add_u32 s{sT0}, s{sT0}, {u}")
        A(f"v_xor_b32 v9, s{sT0}, v5")
        A("v_lshl_add_u32 v9, v9, 2, v7")
        A(f"v_lshl_add_u32 v{WA+u}, v9, 4, v8")
    for r in range(64):
        A(f"v_mov_b32 v{176+r}, 0")
    A(f"s_mov_b32 s{sSTG}, 16384")
    A(f"s_mov_b32 s{sBO}, 0")
    A(f"s_mov_b32 s{sBW}, 0")
    A(f"s_mov_b32 s{sCNT}, 16")
    RS = 144
    VEW, VER, VEG = 24, 25, 26
    A(f"s_mul_i32 s{sT0}, s{sWAVE}, {64*RS}")
    A("v_and_b32 v3, 31, v2")
    A(f"v_mul_u32_u24 v3, {RS}, v3")
    A("v_lshl_add_u32 v3, v4, 3, v3")
    A(f"v_add_u32 v{VEW}, s{sT0}, v3")
    A("v_lshrrev_b32 v3, 3, v2")
    A("v_and_b32 v5, 7, v2")
    A(f"v_mul_u32_u24 v6, {RS}, v3")
    A("v_lshl_add_u32 v6, v5, 4, v6")
    A(f"v_add_u32 v{VER}, s{sT0}, v6")
    A("v_lshlrev_b32 v3, 12, v3")
    A(f"v_lshl_add_u32 v{VEG}, v5, 4, v3")
    A(f"s_lshl_b32 s{sT0}, s{sRB16}, 1")
    A(f"s_add_u32 s{sT0}, s{sT0}, s{sWM}")
    A(f"s_lshl_b32 s{sT0}, s{sT0}, 18")
    A(f"s_lshl_b32 s{sT1}, s{sBR}, 3")
    A(f"s_add_u32 s{sT1}, s{sT1}, s{sCB}")
    A(f"s_lshl_b32 s{sT1}, s{sT1}, 1")
    A(f"s_add_u32 s{sT1}, s{sT1}, s{sWN}")
    A(f"s_lshl_b32 s{sT1}, s{sT1}, 7")
    A(f"s_add_u32 s{sOUT}, s{sT0}, s{sT1}")
    A("v_lshlrev_b32 v10, 7, v2")
    signal(L_CNTB, sFL2, 10, "0xffff", 8, 9)
    stamp(9)
    def reads(b, ks):
        R = [f"ds_read_b128 {vr(FA(b,0),4)}, v{AA} offset:{ks*1024}"]
        for u in range(2):
            R.append(f"ds_read_b64_tr_b16 {vr(FW(b,u),2)}, v{WA+u} offset:{L_WR+ks*4096}")
            R.append(f"ds_read_b64_tr_b16 {vr(FW(b,u)+2,2)}, v{WA+u} offset:{L_WR+ks*4096+2048}")
        R.append(f"ds_read_b128 {vr(FA(b,1),4)}, v{AA} offset:{4096+ks*1024}")
        return R
    A("s_waitcnt lgkmcnt(0)")
    A("s_barrier")
    stamp(10)
    for r in reads(0, 0): A(r)
    A.label("K3_LOOP")
    start = len(A.lines)
    for s in range(4):
        b = s & 1
        mf = [mfma32(ACC(t,u), FW(b,u), FA(b,t)) for t in range(2) for u in range(2)]
        fill = reads(b ^ 1, (s + 1) & 3)
        post = []
        if s == 0:
            post = [f"s_add_u32 s{sBO}, s{sBO}, 1", f"s_cmp_eq_u32 s{sBO}, 4",
                    f"s_cselect_b32 s{sDO}, {-3*16384 & 0xffffffff}, s{sSTG}", f"s_cselect_b32 s{sBO}, 0, s{sBO}"]
        if s == 1:
            post = [f"s_add_u32 s{sBW}, s{sBW}, 1", f"s_cmp_eq_u32 s{sBW}, 5",
                    f"s_cselect_b32 s{sDW}, {-4*16384 & 0xffffffff}, s{sSTG}", f"s_cselect_b32 s{sBW}, 0, s{sBW}"]
        if s == 2:
            post = [f"v_add_u32 v{AA}, s{sDO}, v{AA}", f"v_add_u32 v{WA}, s{sDW}, v{WA}", f"v_add_u32 v{WA+1}, s{sDW}, v{WA+1}"]
        if s == 3:
            post = [f"s_sub_u32 s{sCNT}, s{sCNT}, 1", f"s_cmp_lg_u32 s{sCNT}, 0"]
        A("s_waitcnt lgkmcnt(0)")
        for k, m in enumerate(mf):
            A(m)
            if s == 3 and k == 0: A("s_barrier")
            n = 3
            while n and fill:
                A(fill.pop(0)); n -= 1
            if n == 3:
                while post: A(post.pop(0))
    A("s_cbranch_scc1 K3_LOOP")
    body = A.lines[start:]
    chk(body + body, "k3 loop")
    stamp(11)
    A("s_waitcnt lgkmcnt(0)")
    A("s_nop 7")
    for t in range(2):
        for u in range(2):
            b = ACC(t,u)
            for g in range(4):
                A(f"v_cvt_pk_bf16_f32 v{b+4*g}, v{b+4*g}, v{b+4*g+1}")
                A(f"v_cvt_pk_bf16_f32 v{b+4*g+1}, v{b+4*g+2}, v{b+4*g+3}")
                A(f"ds_write_b64 v{VEW}, {vr(b+4*g,2)} offset:{t*32*RS + u*64 + g*16}")
    A("s_waitcnt lgkmcnt(0)")
    for i in range(8):
        A(f"ds_read_b128 {vr(32+4*i,4)}, v{VER} offset:{i*8*RS}")
    for i in range(8):
        A(f"s_waitcnt lgkmcnt({7-i})")
        A(f"buffer_store_dwordx4 {vr(32+4*i,4)}, v{VEG}, s[{SOUT}:{SOUT+3}], s{sOUT} offen sc1")
        if i < 7: A(f"s_add_u32 s{sOUT}, s{sOUT}, {8*4096}")
    stamp(12)
    if DIAG or OPT["lite"]: A("s_waitcnt vmcnt(0)")
    lite(8)
    stamp(13)
    stamp_out()
    A.label("K_END")
    A("s_endpgm")

def main():
    pos = [a for a in sys.argv[1:] if not a.startswith("--") and "=" not in a]
    out = pos[0] if pos else f"cdna_kernels/{KNAME}.s"
    entry()
    p1_loader()
    p23_helper()
    f1 = p1_compute()
    f2 = p2_attn(f1)
    p3_compute(f2)
    p2_slow()
    chk(A.lines, "all")
    name = f"{KNAME}_kernel"
    ref = open(f"cdna_kernels/{KNAME}.s.ref").read().split("\n")
    head = [l for l in ref if l.startswith(";") and "@launch" not in l and "Override" not in l and "grid=ceil" not in l]
    if OPT["aslist"]: head.append(f"; @launch kernel={name} grid=(256,1,1) block=(512,1,1) lds={LDS_TOTAL}")
    else: head.append(f"; @launch grid=(256,1,1) block=(512,1,1) lds={LDS_TOTAL}")
    nv = 256 if DIAG else 248
    txt = "\n".join(head) + f'''
.amdgcn_target "amdgcn-amd-amdhsa--gfx950"
.text
.globl {name}
.p2align 8
.type {name},@function
{name}:
''' + A.text() + f'''
.section .rodata,"a"
.p2align 6
.amdhsa_kernel {name}
  .amdhsa_next_free_vgpr {nv}
  .amdhsa_next_free_sgpr 102
  .amdhsa_accum_offset {nv}
  .amdhsa_group_segment_fixed_size 0
  .amdhsa_kernarg_size 88
  .amdhsa_user_sgpr_count 2
  .amdhsa_user_sgpr_kernarg_segment_ptr 1
  .amdhsa_system_sgpr_workgroup_id_x 1
.end_amdhsa_kernel
'''
    open(out, "w").write(txt)
    seen = set()
    for p in PROBS:
        if p not in seen:
            print("HAZARD", p); seen.add(p)
    print("written", out, len(txt))
main()
```

```python
import sys, math, os
from asmlib import *
from attn_body import attn_body, auto_waits

KNAME = "concat_heads__linear_attn_block__grouped_kv_mqa__prompt"
OPT = dict(pf1=1, pfs="x012345", pf0=2, defat=3, pf2=1, hprio=2, aslist=0, wpre=5, slp=1, ld="", pfc=1, sumv=0, nosp=0, lite=0, lw0=5, lw1=130, lw2=254)
for a in sys.argv[1:]:
    if "=" in a:
        k, v = a.lstrip("-").split("=", 1)
        OPT[k] = int(v) if v.lstrip("-").isdigit() else v.replace("+", " ")
DIAG = "--diag" in sys.argv

WS_QA = 0
WS_QB = 4 << 20
WS_OA = 8 << 20
WS_OB = 12 << 20
WS_KV = 16 << 20
WS_KVP = WS_KV + (256 << 10)
WS_ZP = WS_KVP + (1 << 20)
WS_FL = WS_ZP + (32 << 10)
FL_A, FL_O, FL_B = 0, 256 * 128, 512 * 128
WS_USED = WS_FL + (576 * 128)
WS_DIAG = 24 << 20
if DIAG: WS_USED = WS_DIAG + (2 << 20)

LOG2E = 1.4426950408889634
KSCALE = (32 ** -0.5) * LOG2E
EPS = 1e-6
OOB = 0x40000000

P1_STAGE, P1_WOFF, P1_EOFF = 53248, 32768, 49152
MISC = 3 * P1_STAGE
L_CNT1, L_CNTA, L_CNTB, L_XF = MISC, MISC + 4, MISC + 8, MISC + 16
L_GOB, L_GOA, L_GOO = MISC + 32, MISC + 36, MISC + 40
L_ZX = MISC + 64
L_KVX = MISC + 2048
L_WR = 0
L_QS = 16384
L_R = 81920
LDS_TOTAL = 163840

PROBS = []
def chk(lines, name):
    PROBS.extend(check_hazards(lines, name))
def mfma32(d, a, b, c=None):
    cs = vr(d, 16) if c is None else (vr(c, 16) if isinstance(c, int) else c)
    return f"v_mfma_f32_32x32x16_bf16 {vr(d,16)}, {vr(a,4)}, {vr(b,4)}, {cs}"
def mfma16(d, a, b, c=None):
    cs = vr(d, 4) if c is None else (vr(c, 4) if isinstance(c, int) else c)
    return f"v_mfma_f32_16x16x32_bf16 {vr(d,4)}, {vr(a,4)}, {vr(b,4)}, {cs}"

class VM:
    def __init__(self): self.q = []
    def add(self, tag, n=1): self.q += [tag] * n
    def has(self, tag): return tag in self.q
    def wait(self, A, *tags):
        idxs = [i for i, t in enumerate(self.q) if t in tags]
        if not idxs: return
        idx = max(idxs)
        n = len(self.q) - 1 - idx
        assert n <= 63
        A(f"s_waitcnt vmcnt({n})")
        self.q = self.q[idx + 1:]
    def clear(self): self.q = []

A = Asm()
pAX, pAW, pAWO, pBX, pBWQ, pBWK, pBWV, pBWO, pOUT, pDBG, pWS = 40, 42, 44, 46, 48, 50, 52, 54, 56, 58, 60
SX, SW, SE, SWS, SPF, SDBG = 4, 8, 12, 16, 64, 84
SWO, SOUT = 4, 8
sXCD, sIDX, sWAVE, sRB, sCBG, sT0, sW4, sT1 = 20, 21, 22, 23, 24, 25, 26, 27
sTYPE, sCOL, sS1, sS2, sWSTR, sROT, sBASE, sCNT, sDELTA, sWADV = 28, 29, 30, 31, 32, 33, 34, 35, 36, 37
sWM, sWN = 38, 39
sXO, sWO, sSTG = 68, 76, 80
sPOLL = 96

def srd(dst, lo, nbytes):
    A(f"s_mov_b32 s{dst}, s{lo}")
    A(f"s_and_b32 s{dst+1}, s{lo+1}, 0xffff")
    if isinstance(nbytes, int): A(f"s_mov_b32 s{dst+2}, {nbytes}")
    else: A(nbytes)
    A(f"s_mov_b32 s{dst+3}, 0x20000")

def stamp(i):
    if not DIAG: return
    A("s_memtime s[98:99]")
    A("s_memrealtime s[100:101]")
    A("s_waitcnt lgkmcnt(0)")
    A(f"v_writelane_b32 v255, s98, {i}")
    A(f"v_writelane_b32 v255, s100, {32+i}")
def stamp_out():
    if not DIAG: return
    A("s_getreg_b32 s98, hwreg(HW_REG_XCC_ID)")
    A("s_and_b32 s98, s98, 15")
    A("v_writelane_b32 v255, s98, 30")
    A(f"v_writelane_b32 v255, s{sTYPE}, 31")
    A("v_and_b32 v254, 63, v0")
    A("v_lshlrev_b32 v254, 2, v254")
    A("s_lshl_b32 s98, s2, 3")
    A(f"s_add_u32 s98, s98, s{sWAVE}")
    A("s_lshl_b32 s98, s98, 8")
    A(f"s_add_u32 s98, s98, {WS_DIAG}")
    A(f"buffer_store_dword v255, v254, s[{SWS}:{SWS+3}], s98 offen")

def lite(i, inv=False):
    if not OPT["lite"]: return
    A("s_memrealtime s[100:101]")
    A("s_waitcnt lgkmcnt(0)")
    if i == 0:
        A("s_mov_b32 s99, s100"); A("v_mov_b32 v245, 0"); return
    A("s_sub_u32 s100, s100, s99")
    A(f"v_writelane_b32 v245, s100, {i-1}")
def lite_out():
    if not OPT["lite"]: return
    D = U("LO")
    A(f"s_cmp_eq_u32 s{sWAVE}, 0")
    A(f"s_cbranch_scc0 {D}")
    A("s_mov_b32 s98, 0x40000000")
    for k, w in enumerate((OPT["lw0"], OPT["lw1"], OPT["lw2"])):
        A(f"s_cmp_eq_u32 s2, {w}")
        A(f"s_cselect_b32 s98, {4 + 20*k}, s98")
    A("v_lshlrev_b32 v246, 2, v2")
    A("s_mov_b64 exec, 31")
    A(f"buffer_store_dword v245, v246, s[{SDBG}:{SDBG+3}], s98 offen")
    A.label(D)
uid = [0]
def U(p):
    uid[0] += 1
    return f"{p}_{uid[0]}"

def poll(srdreg, soff, need, vtmp):
    L, D = U("POLL"), U("POLLD")
    A(f"s_mov_b32 s{sPOLL}, 300000")
    A(f"v_mov_b32 v{vtmp+1}, 0")
    A.label(L)
    A(f"buffer_load_dword v{vtmp}, v{vtmp+1}, s[{srdreg}:{srdreg+3}], {soff} offen sc1")
    A("s_waitcnt vmcnt(0)")
    A(f"v_cmp_gt_u32 vcc, {need}, v{vtmp}")
    A(f"s_sub_u32 s{sPOLL}, s{sPOLL}, 1")
    A(f"s_cbranch_vccz {D}")
    if OPT["slp"]: A(f"s_sleep {OPT['slp']}")
    A(f"s_cmp_lg_u32 s{sPOLL}, 0")
    A(f"s_cbranch_scc1 {L}")
    A.label(D)

def poll_shared(soff, need, lgo, vtmp):
    O_, D = U("PSO"), U("PSD")
    A(f"s_mov_b32 s{sPOLL+1}, {lgo}")
    A(f"s_cmp_eq_u32 s{sW4}, 0")
    A(f"s_cbranch_scc0 {O_}")
    poll(SWS, soff, need, vtmp)
    lds_flag_set(sPOLL + 1, vtmp, vtmp + 1)
    A(f"s_branch {D}")
    A.label(O_)
    lds_flag_wait(sPOLL + 1, vtmp, vtmp + 1, sleep=1)
    A.label(D)

def signal(lcnt, sfl, voff, smask, va, vb):
    D = U("SIG")
    A(f"v_mov_b32 v{va}, {lcnt}")
    A(f"v_mov_b32 v{vb}, 1")
    A("s_mov_b64 exec, 1")
    A("s_waitcnt vmcnt(0)")
    A(f"ds_add_rtn_u32 v{va}, v{va}, v{vb}")
    A("s_waitcnt lgkmcnt(0)")
    A(f"v_readfirstlane_b32 s{sPOLL}, v{va}")
    A(f"s_mov_b64 exec, {smask}")
    A(f"s_cmp_eq_u32 s{sPOLL}, 3")
    A(f"s_cbranch_scc0 {D}")
    A(f"buffer_atomic_add v{vb}, v{voff}, s[{SWS}:{SWS+3}], s{sfl} offen sc1")
    A.label(D)
    A("s_mov_b64 exec, -1")

def lds_flag_set(addr_sgpr, va, vb):
    A(f"v_mov_b32 v{va}, s{addr_sgpr}")
    A(f"v_mov_b32 v{vb}, 1")
    A("s_waitcnt lgkmcnt(0)")
    A(f"ds_write_b32 v{va}, v{vb}")
def lds_flag_wait(addr_sgpr, va, vb, sleep=0):
    L = U("LFW")
    A(f"v_mov_b32 v{va}, s{addr_sgpr}")
    A.label(L)
    if sleep: A(f"s_sleep {sleep}")
    A(f"ds_read_b32 v{vb}, v{va}")
    A("s_waitcnt lgkmcnt(0)")
    A(f"v_cmp_eq_u32 vcc, 0, v{vb}")
    A("s_nop 0")
    A(f"s_cbranch_vccnz {L}")

XS, XWOFF, XEOFF = 36864, 16384, 32768
L_XX = 147456
def cnt_load(srdreg, soff, vdst, vzero):
    A(f"buffer_load_dword v{vdst}, v{vzero}, s[{srdreg}:{srdreg+3}], {soff} sc1")
def cnt_check(srdreg, soff, need, vdst, vzero):
    L, D = U("POLL"), U("POLLD")
    A(f"s_mov_b32 s{sPOLL}, 300000")
    A.label(L)
    A(f"v_cmp_gt_u32 vcc, {need}, v{vdst}")
    A(f"s_sub_u32 s{sPOLL}, s{sPOLL}, 1")
    A(f"s_cbranch_vccz {D}")
    A("s_sleep 2")
    cnt_load(srdreg, soff, vdst, vzero)
    A("s_waitcnt vmcnt(0)")
    A(f"s_cmp_lg_u32 s{sPOLL}, 0")
    A(f"s_cbranch_scc1 {L}")
    A.label(D)

def entry():
    A("s_cmp_ge_u32 s2, 256")
    A("s_cbranch_scc1 K_END")
    A("s_load_dwordx16 s[40:55], s[0:1], 0")
    A("s_load_dwordx4 s[56:59], s[0:1], 64")
    A("s_load_dwordx2 s[60:61], s[0:1], 80")
    if DIAG: A("v_mov_b32 v255, 0")
    A("v_lshrrev_b32 v1, 6, v0")
    A("v_and_b32 v2, 63, v0")
    A(f"s_and_b32 s{sXCD}, s2, 7")
    A(f"s_lshr_b32 s{sIDX}, s2, 3")
    A(f"v_readfirstlane_b32 s{sWAVE}, v1")
    A(f"s_and_b32 s{sT1}, s{sXCD}, 3")
    A(f"s_lshr_b32 s{sW4}, s{sXCD}, 2")
    A(f"s_cmp_lt_u32 s{sIDX}, 16")
    A("s_cbranch_scc0 K1_MAPY")
    A(f"s_lshl_b32 s{sRB}, s{sT1}, 2")
    A(f"s_and_b32 s{sT0}, s{sIDX}, 3")
    A(f"s_add_u32 s{sRB}, s{sRB}, s{sT0}")
    A(f"s_lshl_b32 s{sCBG}, s{sW4}, 2")
    A(f"s_lshr_b32 s{sT0}, s{sIDX}, 2")
    A(f"s_add_u32 s{sCBG}, s{sCBG}, s{sT0}")
    A(f"s_mov_b32 s{sTYPE}, 0")
    A(f"s_and_b32 s{sROT}, s{sCBG}, 3")
    A("s_branch K1_MAPD")
    A.label("K1_MAPY")
    A(f"s_lshl_b32 s{sRB}, s{sT1}, 1")
    A(f"s_and_b32 s{sT0}, s{sIDX}, 1")
    A(f"s_add_u32 s{sRB}, s{sRB}, s{sT0}")
    A(f"s_lshl_b32 s{sCBG}, s{sW4}, 3")
    A(f"s_bfe_u32 s{sT0}, s{sIDX}, 0x30001")
    A(f"s_add_u32 s{sCBG}, s{sCBG}, s{sT0}")
    A(f"s_mov_b32 s{sTYPE}, 1")
    A(f"s_mov_b32 s{sROT}, 0")
    A.label("K1_MAPD")
    A(f"s_and_b32 s{sW4}, s{sWAVE}, 3")
    A(f"s_cmp_lt_u32 s{sWAVE}, 4")
    A("s_cbranch_scc1 K1_COMPUTE")

def srd_e():
    A(f"s_bitcmp1_b32 s{sCBG}, 2")
    A(f"s_cselect_b64 s[62:63], s[{pBWV}:{pBWV+1}], s[{pBWK}:{pBWK+1}]")
    srd(SE, 62, 65536)
def build_srds_common():
    srd(SWS, pWS, WS_USED)
    srd(SDBG, pDBG, 256)

VPFA, VPFD = 10, 11
sPFO, sPFA, sT2, sT3 = 82, 83, 30, 31
def pf_setup(role, member):
    W, D = U("PFW"), U("PFD")
    A(f"s_cmp_lt_u32 s{role}, 2")
    A(f"s_cbranch_scc0 {W}")
    A("v_lshrrev_b32 v12, 1, v2")
    A(f"v_lshlrev_b32 v{VPFA}, 11, v12")
    A("v_and_b32 v12, 1, v2")
    A(f"v_lshl_add_u32 v{VPFA}, v12, 7, v{VPFA}")
    A(f"s_lshl_b32 s{sPFO}, s{member}, 16")
    A(f"s_mov_b32 s{sPFA}, 256")
    A(f"s_cmp_eq_u32 s{role}, 1")
    A(f"s_cselect_b64 s[62:63], s[{pBX}:{pBX+1}], s[{pAX}:{pAX+1}]")
    A(f"s_mov_b32 s{sT2}, 4")
    A(f"s_branch {D}")
    A.label(W)
    A(f"v_lshlrev_b32 v{VPFA}, 7, v2")
    A(f"s_lshl_b32 s{sT2}, s{member}, 1")
    A(f"s_add_u32 s{sT2}, s{sT2}, s{role}")
    A(f"s_sub_u32 s{sT2}, s{sT2}, 2")
    A(f"s_sub_u32 s{sT3}, s{sT2}, 96")
    A(f"s_cmp_lt_u32 s{sT2}, 96")
    A(f"s_cselect_b32 s{sPFO}, s{sT2}, s{sT3}")
    A(f"s_cselect_b64 s[62:63], s[{pAW}:{pAW+1}], s[{pBWQ}:{pBWQ+1}]")
    A(f"s_cselect_b32 s{sT2}, 6, 2")
    A(f"s_lshl_b32 s{sPFA}, s{sT2}, 17")
    A(f"s_lshl_b32 s{sPFO}, s{sPFO}, 13")
    A.label(D)
    srd(SPF, 62, f"s_lshl_b32 s{SPF+2}, s{sT2}, 20")

def p1_loader():
    VX, VW, VE, VW2 = 3, 6, 7, 9
    sLIM, sB0 = 29, 37
    A("v_lshrrev_b32 v4, 4, v2")
    A(f"s_lshl_b32 s{sT0}, s{sW4}, 2")
    A(f"v_add_u32 v4, s{sT0}, v4")
    A("v_and_b32 v4, 7, v4")
    A("v_and_b32 v5, 7, v2")
    A("v_xor_b32 v4, v4, v5")
    A("v_lshlrev_b32 v4, 4, v4")
    A("v_lshrrev_b32 v5, 3, v2")
    A(f"v_lshl_add_u32 v{VX}, v5, 11, v4")
    A("v_lshrrev_b32 v4, 4, v2")
    A("v_and_b32 v5, 15, v2")
    A("v_lshlrev_b32 v8, 2, v4")
    A("v_xor_b32 v5, v5, v8")
    A(f"s_lshl_b32 s{sB0}, s{sW4}, 10")
    A(f"s_mov_b32 s{sBASE}, s{sB0}")
    A(f"s_mov_b32 s{sCNT}, 0")
    def dma(off, ins):
        A(f"s_add_u32 m0, s{sBASE}, {off}")
        A("s_nop 0")
        A(ins)
    def adv(stage):
        A(f"s_add_u32 s{sBASE}, s{sBASE}, {stage}")
        A(f"s_cmp_ge_u32 s{sBASE}, s{sLIM}")
        A(f"s_cselect_b32 s{sBASE}, s{sB0}, s{sBASE}")
        A(f"s_add_u32 s{sCNT}, s{sCNT}, 1")
    xl = lambda n: (n * 4096, f"buffer_load_dwordx4 v{VX}, s[{SX}:{SX+3}], s{sXO+n} offen lds")
    A(f"s_cmp_eq_u32 s{sTYPE}, 1")
    A("s_cbranch_scc1 K1_LY")
    A(f"s_lshl_b32 s{sT1}, s{sRB}, 4")
    A(f"s_add_u32 s{sT1}, s{sT1}, s{sW4}")
    A(f"s_lshl_b32 s{sT1}, s{sT1}, 14")
    for n in range(4):
        A(f"s_add_u32 s{sT0}, s{sROT}, {n}")
        A(f"s_and_b32 s{sT0}, s{sT0}, 3")
        A(f"s_lshl_b32 s{sT0}, s{sT0}, 16")
        A(f"s_add_u32 s{sXO+n}, s{sT0}, s{sT1}")
    A(f"s_lshl_b32 s{sT0}, s{sCBG}, 8")
    A(f"v_lshl_add_u32 v8, v5, 4, s{sT0}")
    A(f"v_lshl_add_u32 v{VW}, v4, 11, v8")
    A(f"s_lshl_b32 s{sWO}, s{sW4}, 13")
    for n in range(1, 4):
        A(f"s_add_u32 s{sWO+n}, s{sWO}, {n*16*2048}")
    A(f"v_lshl_add_u32 v{VE}, v2, 4, s{sB0}")
    A(f"s_add_u32 s{sLIM}, s{sB0}, {4*XS}")
    A("s_waitcnt lgkmcnt(0)")
    srd(SX, pBX, 4 << 20)
    srd(SW, pBWQ, 2 << 20)
    srd_e()
    stamp(0)
    A("s_branch K1_XINB")
    A.label("K1_XLB")
    A(f"s_cmp_lt_u32 s{sCNT}, 2")
    A("s_cbranch_scc1 K1_XINB")
    A("s_waitcnt vmcnt(9)")
    A("s_barrier")
    A.label("K1_XINB")
    wl = lambda n, v: (XWOFF + n * 4096, f"buffer_load_dwordx4 v{v}, s[{SW}:{SW+3}], s{sWO+n} offen lds")
    for off, ins in (xl(0), wl(0, VW), (XEOFF, f"buffer_load_dwordx4 v{VE}, s[{SE}:{SE+3}], 0 offen lds"), xl(1), wl(1, VW), xl(2), wl(2, VW), xl(3), wl(3, VW)):
        dma(off, ins)
    A(f"v_add_u32 v{VX}, 128, v{VX}")
    A(f"v_add_u32 v{VW}, {64*2048}, v{VW}")
    A(f"v_add_u32 v{VE}, 4096, v{VE}")
    adv(XS)
    A(f"s_cmp_lt_u32 s{sCNT}, 16")
    A("s_cbranch_scc1 K1_XLB")
    srd(SX, pAX, 4 << 20)
    srd(SW, pAW, 6 << 20)
    A(f"v_subrev_u32 v{VX}, 2048, v{VX}")
    A(f"v_mul_u32_u24 v{VW2}, 6144, v4")
    A(f"v_add_u32 v{VW2}, v{VW2}, v8")
    A(f"s_mul_i32 s{sWO}, s{sW4}, {4*6144}")
    for n in range(1, 4):
        A(f"s_add_u32 s{sWO+n}, s{sWO}, {n*16*6144}")
    A.label("K1_XLA")
    A("s_waitcnt vmcnt(8)")
    A("s_barrier")
    for off, ins in (xl(0), wl(0, VW2), xl(1), wl(1, VW2), xl(2), wl(2, VW2), xl(3), wl(3, VW2)):
        dma(off, ins)
    A(f"v_add_u32 v{VX}, 128, v{VX}")
    A(f"v_add_u32 v{VW2}, {64*6144}, v{VW2}")
    adv(XS)
    A(f"s_cmp_lt_u32 s{sCNT}, 32")
    A("s_cbranch_scc1 K1_XLA")
    A("s_waitcnt vmcnt(8)")
    A("s_branch K1_LTAIL")
    A.label("K1_LY")
    A(f"s_lshl_b32 s{sT1}, s{sRB}, 5")
    A(f"s_add_u32 s{sT1}, s{sT1}, s{sW4}")
    A(f"s_lshl_b32 s{sXO}, s{sT1}, 14")
    for n in range(1, 8):
        A(f"s_add_u32 s{sXO+n}, s{sXO}, {n<<16}")
    A(f"v_mul_u32_u24 v{VW}, 6144, v4")
    A("v_and_b32 v8, 3, v5")
    A(f"v_lshl_add_u32 v{VW}, v8, 4, v{VW}")
    A("v_bfe_u32 v8, v5, 2, 1")
    A(f"v_lshl_add_u32 v{VW}, v8, 11, v{VW}")
    A("v_bfe_u32 v8, v5, 3, 1")
    A(f"v_lshl_add_u32 v{VW}, v8, 6, v{VW}")
    A(f"s_lshl_b32 s{sT0}, s{sCBG}, 7")
    A(f"s_add_u32 s{sT0}, s{sT0}, 2048")
    A(f"v_add_u32 v{VW}, s{sT0}, v{VW}")
    A(f"s_mul_i32 s{sWO}, s{sW4}, {4*6144}")
    for n in range(1, 4):
        A(f"s_add_u32 s{sWO+n}, s{sWO}, {n*16*6144}")
    A(f"s_add_u32 s{sLIM}, s{sB0}, {3*P1_STAGE}")
    A("s_waitcnt lgkmcnt(0)")
    srd(SX, pAX, 4 << 20)
    srd(SW, pAW, 6 << 20)
    stamp(0)
    PF = 1 if OPT["pf1"] else 0
    n = 12 + 2 * PF
    sI, sO, sG, sM = 88, 92, 38, 39
    A("s_branch K1_YIN")
    A.label("K1_YL")
    A(f"s_cmp_lt_u32 s{sCNT}, 2")
    A("s_cbranch_scc1 K1_YIN")
    A(f"s_waitcnt vmcnt({n})")
    A("s_barrier")
    A.label("K1_YIN")
    seq = [xl(i) for i in range(8)] + [(P1_WOFF + i * 4096, f"buffer_load_dwordx4 v{VW}, s[{SW}:{SW+3}], s{sWO+i} offen lds") for i in range(4)]
    for i in [0, 8, 1, 2, 9, 3, 4, 10, 5, 6, 11, 7]:
        dma(*seq[i])
    if PF:
        A(f"s_cmp_eq_u32 s{sCNT}, 0")
        A("s_cbranch_scc0 K1_PFS")
        A(f"s_bfe_u32 s{sG}, s{sIDX}, 0x10003")
        A(f"s_and_b32 s{sM}, s{sIDX}, 7")
        A(f"s_lshl_b32 s{sM}, s{sM}, 3")
        A(f"s_add_u32 s{sM}, s{sM}, s{sXCD}")
        pf_setup(sW4, sM)
        A(f"s_add_u32 s{sM}, s{sG}, {OPT['pf0']}")
        A(f"s_mul_i32 s{sM}, s{sM}, s{sPFA}")
        A(f"s_add_u32 s{sPFO}, s{sPFO}, s{sM}")
        A(f"s_lshl_b32 s{sPFA}, s{sPFA}, 1")
        sched = [int(c, 16) for c in str(OPT["pfs"])[1:]][:8 - OPT["pf0"]]
        masks = [sum(1 << it for it in sched[g::2]) for g in range(2)]
        A(f"s_cmp_eq_u32 s{sG}, 0")
        A(f"s_mov_b32 s{sI}, {masks[1]}")
        A(f"s_cselect_b32 s{sI}, {masks[0]}, s{sI}")
        A.label("K1_PFS")
        A(f"s_bitcmp1_b32 s{sI}, s{sCNT}")
        A("s_cbranch_scc0 K1_PFX")
        A(f"buffer_load_dword v{VPFD}, v{VPFA}, s[{SPF}:{SPF+3}], s{sPFO} offen")
        A(f"s_add_u32 s{sPFO}, s{sPFO}, s{sPFA}")
        A("s_branch K1_PFY")
        A.label("K1_PFX")
        A(f"s_mov_b32 s{sT2}, {OOB}")
        A(f"buffer_load_dword v{VPFD}, off, s[{SPF}:{SPF+3}], s{sT2}")
        A.label("K1_PFY")
    A(f"v_add_u32 v{VX}, 128, v{VX}")
    A(f"v_add_u32 v{VW}, {64*6144}, v{VW}")
    adv(P1_STAGE)
    A(f"s_cmp_lt_u32 s{sCNT}, 16")
    A("s_cbranch_scc1 K1_YL")
    A(f"s_waitcnt vmcnt({n})")
    A.label("K1_LTAIL")
    A("s_barrier")
    build_srds_common()
    A("v_mov_b32 v119, 0")
    cnt_load(SDBG, "0 offen", 120, 119)
    A("s_waitcnt vmcnt(0)")
    A("s_barrier")
    cnt_check(SDBG, "0 offen", 1, 120, 119)
    A(f"s_and_b32 s92, s2, 63")
    A(f"s_lshl_b32 s92, s92, 7")
    A(f"s_add_u32 s92, s92, {WS_FL + FL_B}")
    A(f"s_lshl_b32 s93, s2, 7")
    A(f"s_add_u32 s93, s93, {WS_FL + FL_A}")
    cnt_load(SWS, "s92 offen", 120, 119)
    cnt_load(SWS, "s93 offen offset:4", 121, 119)
    A("s_barrier")
    stamp(1)

VSG = 172
sSG = 74
def p1_compute():
    A.label("K1_COMPUTE")
    XA, WA, EA = 16, 20, 22
    VPF, VINI, VZ = 24, 28, 29
    FB = [32, 60]
    FX = lambda b, t: FB[b] + 4 * t
    FW = lambda b, u: FB[b] + 16 + 4 * u
    FE = lambda b: FB[b] + 24
    XACC = 96
    ACC = lambda t, u: 112 + 16 * (2 * t + u)
    A(f"s_lshr_b32 s{sWM}, s{sWAVE}, 1")
    A(f"s_and_b32 s{sWN}, s{sWAVE}, 1")
    A("v_and_b32 v3, 31, v2")
    A("v_lshrrev_b32 v4, 5, v2")
    A("s_waitcnt lgkmcnt(0)")
    build_srds_common()
    stamp(0)
    lite(0)
    A(f"s_cmp_eq_u32 s{sWAVE}, 0")
    A("s_cbranch_scc0 K1_NW0")
    A("v_and_b32 v10, 15, v2")
    A("v_lshlrev_b32 v10, 2, v10")
    A(f"v_add_u32 v10, {MISC}, v10")
    A("v_mov_b32 v12, 0")
    A("v_mov_b32 v13, 0")
    A("ds_write_b32 v10, v12")
    A("v_lshlrev_b32 v10, 7, v2")
    A("s_cmp_eq_u32 s2, 255")
    A("s_cbranch_scc1 K1_INIT")
    if OPT["pf1"]:
        A("s_bitcmp1_b32 s2, 0")
        A(f"s_cselect_b64 s[62:63], s[{pBWV}:{pBWV+1}], s[{pBWK}:{pBWK+1}]")
        srd(SPF, 62, 65536)
        A(f"s_lshr_b32 s{sT0}, s2, 1")
        A(f"s_lshl_b32 s{sT0}, s{sT0}, 13")
        A("s_cmp_lt_u32 s2, 16")
        A("s_cbranch_scc0 K1_WD")
        A(f"buffer_load_dword v{VPF}, v10, s[{SPF}:{SPF+3}], s{sT0} offen")
    A("s_branch K1_WD")
    A.label("K1_INIT")
    A(f"s_mov_b32 s{sT0}, {WS_FL}")
    for i in range(9):
        A(f"buffer_store_dwordx2 v[12:13], v10, s[{SWS}:{SWS+3}], s{sT0} offen sc1")
        A(f"s_add_u32 s{sT0}, s{sT0}, 8192")
    A("v_mov_b32 v14, 1")
    A("s_waitcnt vmcnt(0)")
    A(f"buffer_store_dword v14, v12, s[{SDBG}:{SDBG+3}], 0 offen sc1")
    A("s_branch K1_WD")
    A.label("K1_NW0")
    A(f"s_cmp_eq_u32 s{sWAVE}, 3")
    A("s_cbranch_scc1 K1_W3")
    if OPT["pf0"]:
        A(f"s_cmp_le_u32 s{sWAVE}, {OPT['pf0']}")
        A("s_cbranch_scc0 K1_WD")
        A(f"s_and_b32 s{sT0}, s{sIDX}, 3")
        A(f"s_lshr_b32 s{sT1}, s2, 5")
        A(f"s_lshl_b32 s{sT1}, s{sT1}, 3")
        A(f"s_add_u32 s{sT1}, s{sT1}, s{sXCD}")
        pf_setup(sT0, sT1)
        A(f"s_cmp_eq_u32 s{sWAVE}, 2")
        A(f"s_cselect_b32 s{sPFA}, s{sPFA}, 0")
        A(f"s_add_u32 s{sPFO}, s{sPFO}, s{sPFA}")
        A(f"buffer_load_dword v{VPF+1}, v{VPFA}, s[{SPF}:{SPF+3}], s{sPFO} offen")
    A("s_branch K1_WD")
    A.label("K1_W3")
    if OPT["pfc"]:
        A("s_getpc_b64 s[62:63]")
        A.label("K1_PC")
        A(f"s_sub_u32 s62, s62, K1_PC-{KNAME}_kernel")
        A("s_subb_u32 s63, s63, 0")
        A(f"s_cmp_lt_u32 s{sIDX}, 28")
        A("s_cbranch_scc1 K1_WD")
        A(f"s_and_b32 s{sT0}, s{sIDX}, 3")
        A(f"s_lshl_b32 s{sT0}, s{sT0}, 13")
        A(f"v_lshl_add_u32 v10, v2, 7, s{sT0}")
        A(f"v_min_u32 v10, K2_SLOW-{KNAME}_kernel, v10")
        A(f"global_load_dword v{VPF+2}, v10, s[62:63]")
    A.label("K1_WD")
    A(f"s_add_u32 s{sT0}, s{sTYPE}, 13")
    A(f"s_lshl_b32 s{sT0}, s{sWM}, s{sT0}")
    A("v_bfe_u32 v5, v2, 1, 3")
    A(f"v_lshl_add_u32 v6, v3, 7, s{sT0}")
    for ks in range(4):
        A(f"v_add_u32 v7, {2*ks}, v4")
        A("v_xor_b32 v7, v7, v5")
        A(f"v_lshl_add_u32 v{XA+ks}, v7, 4, v6")
    A("v_bfe_u32 v5, v2, 2, 2")
    A("v_lshl_add_u32 v6, v4, 3, v5")
    A("v_bfe_u32 v7, v2, 4, 1")
    A("v_bfe_u32 v8, v2, 1, 1")
    A("v_lshl_add_u32 v7, v7, 1, v8")
    A("v_and_b32 v8, 1, v2")
    A("v_lshlrev_b32 v8, 3, v8")
    A("v_lshl_add_u32 v8, v6, 8, v8")
    for u in range(2):
        A(f"s_lshl_b32 s{sT0}, s{sWN}, 1")
        A(f"s_add_u32 s{sT0}, s{sT0}, {u}")
        A(f"v_xor_b32 v9, s{sT0}, v5")
        A("v_lshl_add_u32 v9, v9, 2, v7")
        A(f"v_lshl_add_u32 v{WA+u}, v9, 4, v8")
    A("v_bfe_u32 v7, v2, 4, 1")
    A("v_lshlrev_b32 v7, 5, v7")
    A("v_and_b32 v8, 3, v2")
    A("v_lshl_add_u32 v7, v8, 3, v7")
    A(f"v_lshl_add_u32 v{EA}, v6, 6, v7")
    A(f"s_mov_b32 s{sBASE}, 0")
    A(f"s_mov_b32 s{sCNT}, 16")
    A("v_lshlrev_b32 v3, 4, v2")

    def reads(b, ks, extra, nt, woff):
        R = [f"ds_read_b128 {vr(FX(b,0),4)}, v{XA+ks} offset:0"]
        for u in range(2):
            R.append(f"ds_read_b64_tr_b16 {vr(FW(b,u),2)}, v{WA+u} offset:{woff+ks*4096}")
            R.append(f"ds_read_b64_tr_b16 {vr(FW(b,u)+2,2)}, v{WA+u} offset:{woff+ks*4096+1024}")
        for t in range(1, nt):
            R.append(f"ds_read_b128 {vr(FX(b,t),4)}, v{XA+ks} offset:{t*4096}")
        if extra:
            R.append(f"ds_read_b64_tr_b16 {vr(FE(b),2)}, v{EA} offset:{XEOFF+ks*1024}")
            R.append(f"ds_read_b64_tr_b16 {vr(FE(b)+2,2)}, v{EA} offset:{XEOFF+ks*1024+256}")
        return R
    def mainloop(tag, isX, extra, par=None):
        ex = lambda st: extra if (st & 1) == par else None
        nt, woff, nsl, stg = (2, XWOFF, 4, XS) if isX else (4, P1_WOFF, 3, P1_STAGE)
        A.label(f"K1_ML{tag}")
        A("s_barrier")
        stamp(1)
        lite(1)
        for r in reads(0, 0, ex(0), nt, woff): A(r)
        A.label(f"K1_LOOP{tag}")
        start = len(A.lines)
        for s in range(4):
            b = s & 1
            mf = []
            for t in range(nt):
                for u in range(2):
                    mf.append(mfma32(ACC(t,u), FW(b,u), FX(b,t)) if isX else mfma32(ACC(t,u), FX(b,t), FW(b,u)))
            if ex(s) == "K": mf.append(mfma32(XACC, FE(b), FX(b,0)))
            if ex(s) == "V": mf.append(mfma32(XACC, FX(b,0), FE(b)))
            fill = reads(b ^ 1, (s + 1) & 3, ex(s + 1), nt, woff)
            post = []
            if s == 1:
                post = [f"s_add_u32 s{sBASE}, s{sBASE}, 1", f"s_cmp_eq_u32 s{sBASE}, {nsl}",
                        f"s_cselect_b32 s{sDELTA}, {-(nsl-1)*stg & 0xffffffff}, s{sSTG}", f"s_cselect_b32 s{sBASE}, 0, s{sBASE}"]
            if s == 2: post = [f"v_add_u32 v{XA+i}, s{sDELTA}, v{XA+i}" for i in range(7 if extra else 6)]
            if s == 3: post = [f"s_sub_u32 s{sCNT}, s{sCNT}, 1", f"s_cmp_lg_u32 s{sCNT}, 0"]
            A("s_waitcnt lgkmcnt(0)")
            per = 4 if isX else 2
            for k, m in enumerate(mf):
                if k == len(mf) - 1:
                    assert not fill
                    while post: A(post.pop(0))
                A(m)
                if s == 3 and k == 0: A("s_barrier")
                if fill:
                    for _ in range(per):
                        if fill: A(fill.pop(0))
                else:
                    for _ in range(4):
                        if post: A(post.pop(0))
        A(f"s_cbranch_scc1 K1_LOOP{tag}")
        body = A.lines[start:]
        chk(body + body, f"k1 loop {tag}")

    XF = lambda ks: [32, 52, 72, 176][ks]
    def xreads(ks, extra):
        o = XF(ks)
        R = [f"ds_read_b128 {vr(o,4)}, v{XA+ks}"]
        for u in range(2):
            R.append(f"ds_read_b64_tr_b16 {vr(o+8+4*u,2)}, v{WA+u} offset:{XWOFF+ks*4096}")
            R.append(f"ds_read_b64_tr_b16 {vr(o+10+4*u,2)}, v{WA+u} offset:{XWOFF+ks*4096+1024}")
        R.append(f"ds_read_b128 {vr(o+4,4)}, v{XA+ks} offset:4096")
        if extra:
            R.append(f"ds_read_b64_tr_b16 {vr(o+16,2)}, v{EA} offset:{XEOFF+ks*1024}")
            R.append(f"ds_read_b64_tr_b16 {vr(o+18,2)}, v{EA} offset:{XEOFF+ks*1024+256}")
        return R
    def xloop(tag, extra, par=None):
        ex = lambda st: extra if (st & 1) == par else None
        A.label(f"K1_ML{tag}")
        A("s_barrier")
        stamp(1)
        lite(1)
        for ks in range(2):
            for r in xreads(ks, ex(ks)): A(r)
        A("s_waitcnt lgkmcnt(0)")
        body = []
        for s in range(4):
            o = XF(s)
            mf = [mfma32(ACC(t,u), o + 8 + 4 * u, o + 4 * t) for t in range(2) for u in range(2)]
            if ex(s) == "K": mf.append(mfma32(XACC, o + 16, o))
            if ex(s) == "V": mf.append(mfma32(XACC, o, o + 16))
            fill = xreads((s + 2) & 3, ex(s))
            post = []
            if s == 0:
                post = [f"s_add_u32 s{sBASE}, s{sBASE}, 1", f"s_cmp_eq_u32 s{sBASE}, 4",
                        f"s_cselect_b32 s{sDELTA}, {-3*XS & 0xffffffff}, s{sSTG}", f"s_cselect_b32 s{sBASE}, 0, s{sBASE}",
                        f"v_add_u32 v{XA}, s{sDELTA}, v{XA}", f"v_add_u32 v{XA+1}, s{sDELTA}, v{XA+1}", f"v_add_u32 v{XA+2}, s{sDELTA}, v{XA+2}"]
            if s == 1: post = [f"v_add_u32 v{XA+i}, s{sDELTA}, v{XA+i}" for i in range(3, 7 if extra else 6)]
            if s == 3: post = [f"s_sub_u32 s{sCNT}, s{sCNT}, 1", f"s_cmp_lg_u32 s{sCNT}, 0"]
            per = -(-len(fill) // (len(mf) - 1))
            for k, m in enumerate(mf):
                if k == len(mf) - 1:
                    assert not fill
                    body += post; post = []
                body.append(m)
                if s == 2 and k == 0: body.append("s_barrier")
                for _ in range(per):
                    if fill: body.append(fill.pop(0))
        body = auto_waits(body)
        A.label(f"K1_LOOP{tag}")
        for l in body: A(l)
        A(f"s_cbranch_scc1 K1_LOOP{tag}")
        chk(body + body, f"k1 loop {tag}")

    VC1, VC2, VEPS = 4, 6, 8
    def consts():
        A(f"v_mov_b32 v{VC1}, {hexf(LOG2E)}")
        A(f"v_mov_b32 v{VC1+1}, {hexf(LOG2E)}")
        A(f"v_mov_b32 v{VC2}, {hexf(-EPS*LOG2E)}")
        A(f"v_mov_b32 v{VC2+1}, {hexf(-EPS*LOG2E)}")
        A(f"v_mov_b32 v{VEPS}, {hexf(EPS)}")
    def pack_tile(base, dst=None):
        dst = base if dst is None else dst
        return [f"v_cvt_pk_bf16_f32 v{dst+i}, v{base+2*i}, v{base+2*i+1}" for i in range(8)]
    def phi_tile(base, TMP):
        L = [f"v_pk_fma_f32 {vr(TMP+2*i,2)}, {vr(base+2*i,2)}, {vr(VC1,2)}, {vr(VC2,2)}" for i in range(8)]
        for i in range(16):
            L += [f"v_exp_f32 v{TMP+i}, v{TMP+i} clamp", f"v_max_f32 v{base+i}, v{base+i}, v{VEPS}"]
        L += [f"v_pk_add_f32 {vr(base+2*i,2)}, {vr(base+2*i,2)}, {vr(TMP+2*i,2)}" for i in range(8)]
        return L + pack_tile(base)
    def q_store(t, u, src):
        for half in range(2):
            A(f"buffer_store_dwordx4 {vr(src+4*half,4)}, v3, s[{SWS}:{SWS+3}], s{sXO+t} offen offset:{u*2048+half*1024} sc1")
    sPH, sEXW = 33, 32

    A(f"s_cmp_eq_u32 s{sTYPE}, 1")
    A("s_cbranch_scc1 K1_Y")
    for r in range(80): A(f"v_mov_b32 v{XACC+r}, 0")
    A(f"s_mov_b32 s{sSTG}, {XS}")
    A(f"s_lshl_b32 s{sT1}, s{sCBG}, 1")
    A(f"s_add_u32 s{sT1}, s{sT1}, s{sWN}")
    A(f"s_lshl_b32 s{sSG}, s{sT1}, 8")
    A(f"s_lshl_b32 s{sT1}, s{sT1}, 12")
    A(f"s_add_u32 s{sT1}, s{sT1}, {WS_QB}")
    A(f"s_lshl_b32 s{sXO+4}, s{sRB}, 2")
    A(f"s_add_u32 s{sXO+5}, s{sXO+4}, s{sROT}")
    for t in range(2):
        A(f"s_lshl_b32 s{sT0}, s{sWM}, 1")
        A(f"s_add_u32 s{sT0}, s{sT0}, s{sROT}")
        A(f"s_add_u32 s{sT0}, s{sT0}, {t}")
        A(f"s_and_b32 s{sT0}, s{sT0}, 3")
        A(f"s_add_u32 s{sT0}, s{sT0}, s{sXO+4}")
        A(f"s_lshl_b32 s{sT0}, s{sT0}, 16")
        A(f"s_add_u32 s{sXO+t}, s{sT0}, s{sT1}")
    A(f"s_lshr_b32 s{sT0}, s{sRB}, 1")
    A(f"s_lshl_b32 s{sT0}, s{sT0}, 12")
    A(f"s_add_u32 s{sSG}, s{sSG}, s{sT0}")
    A(f"s_add_u32 s{sSG}, s{sSG}, {WS_FL + FL_A}")
    A(f"v_lshlrev_b32 v{240}, 7, v2")
    A("s_mov_b64 s[92:93], 3")
    A(f"s_mov_b32 s{sPH}, 0")
    A(f"s_mov_b32 s{sEXW}, 0")
    A(f"v_mov_b32 v{VZ}, 0")
    A(f"v_add_u32 v30, {L_XX}, v3")
    A(f"s_mov_b32 s{sT1}, {L_XF}")
    A("s_waitcnt lgkmcnt(0)")
    A(f"s_cmp_eq_u32 s{sWM}, 1")
    A("s_cbranch_scc1 K1_MLX")
    A(f"s_cmp_eq_u32 s{sWN}, 1")
    A("s_cbranch_scc1 K1_X1")
    A(f"s_bitcmp1_b32 s{sCBG}, 2")
    A("s_cbranch_scc1 K1_MLV0")
    xloop("K0", "K", 0)
    A(f"s_mov_b32 s{sT0}, {WS_KV}")
    A(f"v_mov_b32 v{VC1}, {hexf(KSCALE)}")
    A("s_branch K1_EPX")
    xloop("V0", "V", 0)
    A(f"s_mov_b32 s{sT0}, {WS_KV + 2048}")
    A(f"v_mov_b32 v{VC1}, 1.0")
    A.label("K1_EPX")
    A(f"v_mov_b32 v{VC1+1}, v{VC1}")
    A(f"s_lshl_b32 s{sXO+5}, s{sXO+5}, 12")
    A(f"s_add_u32 s{sXO+5}, s{sXO+5}, s{sT0}")
    A(f"s_mov_b32 s{sEXW}, 1")
    lds_flag_wait(sT1, 8, 9)
    TX = 176
    for q in range(4):
        A(f"ds_read_b128 {vr(TX+4*q,4)}, v30 offset:{q*1024}")
    A("s_waitcnt lgkmcnt(0)")
    for i in range(8):
        A(f"v_pk_add_f32 {vr(XACC+2*i,2)}, {vr(XACC+2*i,2)}, {vr(TX+2*i,2)}")
    for i in range(8):
        A(f"v_pk_mul_f32 {vr(XACC+2*i,2)}, {vr(XACC+2*i,2)}, {vr(VC1,2)}")
    for ins in pack_tile(XACC): A(ins)
    for half in range(2):
        A(f"buffer_store_dwordx4 {vr(XACC+4*half,4)}, v3, s[{SWS}:{SWS+3}], s{sXO+5} offen offset:{half*1024} sc1")
    A("s_branch K1_EPB")
    A.label("K1_X1")
    A(f"s_bitcmp1_b32 s{sCBG}, 2")
    A("s_cbranch_scc1 K1_MLV1")
    xloop("K1", "K", 1)
    A("s_branch K1_EPX1")
    xloop("V1", "V", 1)
    A.label("K1_EPX1")
    A("s_nop 11")
    for q in range(4):
        A(f"ds_write_b128 v30, {vr(XACC+4*q,4)} offset:{q*1024}")
    lds_flag_set(sT1, 8, 9)
    A("s_branch K1_EPB")
    xloop("X", None)
    A(f"s_cmp_eq_u32 s{sPH}, 1")
    A("s_cbranch_scc1 K1_XDEF")
    A(f"s_cmp_eq_u32 s{sPH}, 2")
    A("s_cbranch_scc1 K1_EPA")
    A("s_nop 7")
    A.label("K1_EPB")
    stamp(2)
    A(f"s_mov_b32 s{sT0}, {hexf(EPS)}")
    for t in range(2):
        for u in range(2):
            d = 196 + 8 * (2 * t + u)
            for ins in pack_tile(ACC(t,u), d): A(ins)
            q_store(t, u, d)
    cnt_load(SDBG, "0 offen", VINI, VZ)
    for r in range(64): A(f"v_mov_b32 v{ACC(0,0)+r}, s{sT0}")
    for t in range(2): A(f"s_sub_u32 s{sXO+t}, s{sXO+t}, {WS_QB - WS_QA}")
    A(f"s_mov_b32 s{sPH}, 1")
    A(f"s_mov_b32 s{sCNT}, {OPT['defat']}")
    A("s_waitcnt lgkmcnt(0)")
    A("s_branch K1_LOOPX")
    A.label("K1_XDEF")
    A("s_waitcnt vmcnt(0)")
    cnt_check(SDBG, "0 offen", 1, VINI, VZ)
    A(f"v_mov_b32 v{VINI}, 1")
    A(f"s_mov_b32 s{sPH}, 2")
    A(f"s_mov_b32 s{sCNT}, {16 - OPT['defat']}")
    A(f"s_cmp_eq_u32 s{sEXW}, 0")
    A("s_cbranch_scc1 K1_XDE2")
    A(f"s_mov_b32 s{sT0}, {WS_FL + FL_B}")
    A(f"buffer_atomic_add v{VINI}, v240, s[{SWS}:{SWS+3}], s{sT0} offen sc1")
    A.label("K1_XDE2")
    A("s_mov_b64 exec, 3")
    A(f"buffer_atomic_add v{VINI}, v240, s[{SWS}:{SWS+3}], s{sSG} offen offset:4 sc1")
    A("s_mov_b64 exec, -1")
    A("s_branch K1_LOOPX")
    A.label("K1_EPA")
    stamp(3)
    consts()
    A("s_nop 3")
    for t in range(2):
        for u in range(2):
            for ins in phi_tile(ACC(t,u), 176): A(ins)
            q_store(t, u, ACC(t,u))
    A(f"v_mov_b32 v{VSG}, v240")
    A("s_branch K1_DONE")
    A.label("K1_Y")
    A(f"s_mov_b32 s{sSTG}, {P1_STAGE}")
    A(f"s_mov_b32 s{sT0}, {hexf(EPS)}")
    for t in range(4):
        for r in range(16):
            A(f"v_mov_b32 v{ACC(t,0)+r}, s{sT0}")
            A(f"v_mov_b32 v{ACC(t,1)+r}, 0")
    A("s_waitcnt lgkmcnt(0)")
    mainloop("Y", False, None)
    stamp(2)
    stamp(3)
    consts()
    ONES, TMP, KVD, ZD = 12, 32, 64, 80
    for i in range(4): A(f"v_mov_b32 v{ONES+i}, 0x3f803f80")
    A("s_waitcnt vmcnt(0) lgkmcnt(0)")
    TMP = 96
    def kvm(t):
        M = []
        for half in range(2):
            first = (t == 0 and half == 0)
            M.append(mfma32(KVD, ACC(t,0)+4*half, ACC(t,1)+4*half, "0" if first else None))
            M.append(mfma32(ZD, ONES, ACC(t,0)+4*half, "0" if first else None))
        return M
    pend = []
    for t in range(4):
        V = phi_tile(ACC(t,0), TMP) + pack_tile(ACC(t,1))
        for i, v in enumerate(V):
            if pend and i % 8 == 2 and i >= 10: A(pend.pop(0))
            A(v)
        assert not pend
        pend = kvm(t)
    A(f"s_lshl_b32 s{sT0}, s{sWN}, 13")
    A(f"v_add_u32 v5, s{sT0}, v3")
    for m in pend: A(m)
    A(f"s_lshl_b32 s{sT0}, s{sCBG}, 1")
    A(f"s_add_u32 s{sT0}, s{sT0}, s{sWN}")
    A(f"s_lshl_b32 s{sSG}, s{sT0}, 7")
    A(f"s_add_u32 s{sSG}, s{sSG}, {WS_FL + FL_A}")
    A(f"s_lshl_b32 s{sXO}, s{sT0}, 3")
    A(f"s_add_u32 s{sXO}, s{sXO}, s{sRB}")
    A(f"s_lshl_b32 s{sXO+1}, s{sXO}, 7")
    A(f"s_add_u32 s{sXO+1}, s{sXO+1}, {WS_ZP}")
    A(f"s_lshl_b32 s{sXO}, s{sXO}, 12")
    A(f"s_add_u32 s{sXO}, s{sXO}, {WS_KVP}")
    A("v_and_b32 v4, 31, v2")
    A("v_lshlrev_b32 v4, 2, v4")
    A(f"v_lshlrev_b32 v{VSG}, 12, v2")
    A(f"s_lshl_b32 s{sT0}, s{sWN}, 2")
    A(f"s_add_u32 s{sT0}, s{sT0}, {L_XF}")
    A(f"s_cmp_eq_u32 s{sWM}, 0")
    A("s_cbranch_scc1 K1_KVR")
    for q in range(4):
        A(f"ds_write_b128 v5, {vr(KVD+4*q,4)} offset:{q*1024}")
    A(f"ds_write_b32 v5, v{ZD} offset:4096")
    lds_flag_set(sT0, 8, 9)
    A("s_mov_b64 s[92:93], 0")
    A("s_branch K1_DONE")
    A.label("K1_KVR")
    lds_flag_wait(sT0, 8, 9)
    TMP = 32
    for q in range(4):
        A(f"ds_read_b128 {vr(TMP+4*q,4)}, v5 offset:{q*1024}")
    A(f"ds_read_b32 v{TMP+16}, v5 offset:4096")
    A("s_mov_b64 s[92:93], 0xff")
    A("s_waitcnt lgkmcnt(0)")
    for i in range(8):
        A(f"v_pk_add_f32 {vr(KVD+2*i,2)}, {vr(KVD+2*i,2)}, {vr(TMP+2*i,2)}")
    A(f"v_add_f32 v{ZD}, v{ZD}, v{TMP+16}")
    for q in range(4):
        A(f"buffer_store_dwordx4 {vr(KVD+4*q,4)}, v3, s[{SWS}:{SWS+3}], s{sXO} offen offset:{q*1024} sc1")
    A(f"buffer_store_dword v{ZD}, v4, s[{SWS}:{SWS+3}], s{sXO+1} offen sc1")
    A.label("K1_DONE")
    A("s_waitcnt lgkmcnt(0)")
    return None

sH, sRB8, sQO, sHW, sM0, sGO, sNB = 23, 24, 29, 26, 30, 31, 32
VL16 = 1
def p2_common():
    A(f"s_and_b32 s{sH}, s2, 31")
    A(f"s_lshr_b32 s{sRB8}, s2, 5")
    A(f"v_lshlrev_b32 v{VL16}, 4, v2")
    A("v_lshrrev_b32 v7, 5, v2")
    A(f"s_and_b32 s{sHW}, s{sWAVE}, 3")
    A(f"s_lshl_b32 s{sQO}, s{sRB8}, 2")
    A(f"s_add_u32 s{sQO}, s{sQO}, s{sHW}")
    A(f"s_lshl_b32 s{sQO}, s{sQO}, 17")
    A(f"s_lshl_b32 s{sT0}, s{sH}, 11")
    A(f"s_add_u32 s{sQO}, s{sQO}, s{sT0}")

AT = dict(Q=[16, 128], ONES=24, KF=28, VF=36, P=44, L=[52, 56], S=[64, 80], O=[96, 140], NEGM=[112, 156], T=60, VCUR=3, VNXT=4)
def p2_attn(sFL1):
    VCUR, VNXT = 3, 4
    Q, ONES, KF, VF, P, L, S, O, NEGM = (AT[k] for k in ("Q", "ONES", "KF", "VF", "P", "L", "S", "O", "NEGM"))
    p2_common()
    stamp(4)
    A("v_bfe_u32 v8, v2, 2, 1")
    A("v_bfe_u32 v9, v2, 4, 1")
    A("v_cmp_eq_u32 vcc, v8, v9")
    A("v_mov_b32 v8, 0x3f803f80")
    A(f"v_add_u32 v{VCUR}, {L_R}, v{VL16}")
    A(f"v_cndmask_b32 v{ONES}, 0, v8, vcc")
    if OPT["sumv"] == 3: A(f"v_mov_b32 v{ONES}, v8")
    for i in range(1, 4):
        A(f"v_mov_b32 v{ONES+i}, v{ONES}")
    for x in range(2):
        for i in range(16):
            A(f"v_mov_b32 v{O[x]+i}, 0")
        for i in range(4):
            A(f"v_mov_b32 v{L[x]+i}, 0")
    for i in range(4):
        A(f"v_mov_b32 v{VF+4+i}, 0")
        A(f"v_mov_b32 v{P+4+i}, 0")
    A(f"v_mov_b32 v{AT['T']}, 0")
    A(f"v_mov_b32 v{AT['T']+1}, 0")
    A(f"v_add_u32 v{VNXT}, 16384, v{VCUR}")
    A(f"s_lshl_b32 s{sT0}, s{sHW}, 12")
    A(f"v_add_u32 v5, s{sT0}, v{VL16}")
    A(f"s_mov_b32 s{sCNT}, 0")
    A("s_barrier")
    stamp(5)
    A(f"ds_read_b128 {vr(KF,4)}, v{VCUR}")
    A(f"ds_read_b128 {vr(Q[0],4)}, v5 offset:{L_QS}")
    A(f"ds_read_b128 {vr(Q[1],4)}, v5 offset:{L_QS+2048}")
    A(f"ds_read_b128 {vr(KF+4,4)}, v{VCUR} offset:1024")
    A(f"ds_read_b128 {vr(Q[0]+4,4)}, v5 offset:{L_QS+1024}")
    A(f"ds_read_b128 {vr(Q[1]+4,4)}, v5 offset:{L_QS+3072}")
    A(f"ds_read_b128 {vr(VF,4)}, v{VCUR} offset:2048")
    A("s_waitcnt lgkmcnt(4)")
    A(mfma32(S[0], KF, Q[0], "0"))
    A(mfma32(S[1], KF, Q[1], "0"))
    A("s_waitcnt lgkmcnt(1)")
    A(mfma32(S[0], KF+4, Q[0]+4))
    A(mfma32(S[1], KF+4, Q[1]+4))
    A("s_nop 10")
    for x in range(2):
        m = 8 + 2 * x
        A(f"v_max3_f32 v{m}, v{S[x]}, v{S[x]+1}, v{S[x]+2}")
        A(f"v_max3_f32 v{m+1}, v{S[x]+3}, v{S[x]+4}, v{S[x]+5}")
        for i in range(6, 14, 4):
            A(f"v_max3_f32 v{m}, v{m}, v{S[x]+i}, v{S[x]+i+1}")
            A(f"v_max3_f32 v{m+1}, v{m+1}, v{S[x]+i+2}, v{S[x]+i+3}")
        A(f"v_max3_f32 v{m}, v{m}, v{S[x]+14}, v{S[x]+15}")
        A(f"v_max_f32 v{m}, v{m}, v{m+1}")
        A(f"v_mov_b32 v{m+1}, v{m}")
    A("s_nop 0")
    A("v_permlane32_swap_b32 v8, v9")
    A("v_permlane32_swap_b32 v10, v11")
    A("v_max_f32 v8, v8, v9")
    A("v_max_f32 v10, v10, v11")
    for x, m in ((1, 10), (0, 8)):
        A(f"v_sub_f32 v{NEGM[x]}, 0, v{m}")
        A(f"v_sub_f32 v{NEGM[x]+1}, 0, v{m}")
        for i in range(1, 8):
            A(f"v_pk_mov_b32 {vr(NEGM[x]+2*i,2)}, {vr(NEGM[x],2)}, {vr(NEGM[x],2)}")
    for i in range(8):
        A(f"v_pk_add_f32 {vr(S[0]+2*i,2)}, {vr(S[0]+2*i,2)}, {vr(NEGM[0],2)}")
    stamp(6)
    lite(2)
    nb = [f"s_add_u32 s{sNB}, s{sCNT}, 2", f"s_and_b32 s{sNB}, s{sNB}, 3", f"s_lshl_b32 s{sNB}, s{sNB}, 14", f"s_add_u32 s{sNB}, s{sNB}, {L_R}"]
    sEND = 33
    A(f"s_mov_b32 s{sEND}, 1")
    cn = [f"s_add_u32 s{sCNT}, s{sCNT}, 1", f"s_cmp_lt_u32 s{sCNT}, s{sEND}"]
    B = attn_body(AT, False, {3: nb, 7: cn}, sumv=OPT['sumv']) + [f"v_mov_b32 v{VCUR}, v{VNXT}", f"v_add_u32 v{VNXT}, s{sNB}, v{VL16}"]
    A("s_waitcnt lgkmcnt(0)")
    A(B[0])
    A.label("K2_LOOP")
    for l in B[1:]: A(l)
    A(B[0])
    A("s_cbranch_scc1 K2_LOOP")
    chk(B + B, "k2 loop")
    A(f"s_cmp_eq_u32 s{sCNT}, 16")
    A("s_cbranch_scc1 K2_DONE")
    A(f"s_mov_b32 s{sEND}, 16")
    A("s_cmp_eq_u64 s[92:93], 0")
    A("s_cbranch_scc1 K2_LOOP")
    A(f"v_mov_b32 v{VSG+1}, 1")
    A("s_mov_b64 exec, s[92:93]")
    A("s_waitcnt vmcnt(0)")
    A(f"buffer_atomic_add v{VSG+1}, v{VSG}, s[{SWS}:{SWS+3}], s{sSG} offen sc1")
    A("s_mov_b64 exec, -1")
    A("s_branch K2_LOOP")
    A.label("K2_DONE")
    A(f"v_cvt_pk_bf16_f32 v{P+7}, v{AT['T']}, v{AT['T']+1}")
    A("s_nop 1")
    stamp(7)
    lite(3)
    A(mfma32(O[1], VF+4, P+4))
    if OPT["sumv"] == 3:
        A(f"v_mfma_f32_4x4x4_16b_bf16 {vr(L[1],4)}, {vr(ONES,2)}, {vr(P+4,2)}, {vr(L[1],4)}")
        A("s_nop 1")
        A(f"v_mfma_f32_4x4x4_16b_bf16 {vr(L[1],4)}, {vr(ONES,2)}, {vr(P+6,2)}, {vr(L[1],4)}")
        A("s_nop 7")
        for x in range(2):
            A(f"v_permlane32_swap_b32 v{L[x]}, v{L[x]+1}")
            A(f"v_add_f32 v{L[x]}, v{L[x]}, v{L[x]+1}")
    elif OPT["sumv"]:
        A(f"v_pk_add_f32 {vr(L[1]+2,2)}, {vr(L[1]+2,2)}, {vr(AT['T'],2)}")
        for x in range(2):
            A(f"v_pk_add_f32 {vr(L[x],2)}, {vr(L[x],2)}, {vr(L[x]+2,2)}")
            A(f"v_add_f32 v{L[x]}, v{L[x]}, v{L[x]+1}")
            A(f"v_mov_b32 v{L[x]+1}, v{L[x]}")
            A("s_nop 1")
            A(f"v_permlane32_swap_b32 v{L[x]}, v{L[x]+1}")
            A(f"v_add_f32 v{L[x]}, v{L[x]}, v{L[x]+1}")
            if OPT["sumv"] == 2: A(f"v_mov_b32 v{L[x]}, 1.0")
    else:
        A(mfma16(L[1], ONES, P+4))
    sO0, sO1, sFL = 68, 69, 70
    A(f"s_add_u32 s{sO0}, s{sQO}, {WS_OB}")
    A(f"s_add_u32 s{sO1}, s{sO0}, 65536")
    A(f"v_mov_b32 v10, {hexf(2.0**120)}")
    A(f"v_mov_b32 v11, {hexf(2.0**60)}")
    first = True
    for x in range(2):
        for i in range(0, 16, 2):
            if first:
                A(f"v_add_f32 v8, |v{O[x]}|, |v{O[x]+1}|"); A(f"v_mov_b32 v9, 0"); first = False
            else:
                A(f"v_add_f32 v8, v8, |v{O[x]+i}|")
                A(f"v_add_f32 v9, v9, |v{O[x]+i+1}|")
    A(f"v_cmp_nlt_f32 vcc, v{L[0]}, v11")
    A(f"v_cmp_nlt_f32 s[72:73], v{L[1]}, v11")
    A("v_add_f32 v8, v8, v9")
    A("v_cmp_nlt_f32 s[74:75], v8, v10")
    A("s_or_b64 vcc, vcc, s[72:73]")
    A("s_nop 1")
    A("s_or_b64 vcc, vcc, s[74:75]")
    A("s_cbranch_vccnz K2_SLOW")
    A.label("K2_FIN")
    A(f"v_rcp_f32 v8, v{L[0]}")
    A(f"v_rcp_f32 v10, v{L[1]}")
    A("v_mov_b32 v9, v8")
    A("v_mov_b32 v11, v10")
    for x in range(2):
        for i in range(8):
            A(f"v_pk_mul_f32 {vr(O[x]+2*i,2)}, {vr(O[x]+2*i,2)}, v[{8+2*x}:{9+2*x}]")
        for i in range(8):
            A(f"v_cvt_pk_bf16_f32 v{O[x]+i}, v{O[x]+2*i}, v{O[x]+2*i+1}")
        for half in range(2):
            A(f"buffer_store_dwordx4 {vr(O[x]+4*half,4)}, v{VL16}, s[{SWS}:{SWS+3}], s{sO0+x} offen offset:{half*1024} sc1")
    A(f"s_lshl_b32 s{sFL}, s{sRB8}, 11")
    A(f"s_add_u32 s{sFL}, s{sFL}, {WS_FL + FL_O + 128 * 128}")
    stamp(8)
    return sFL

def p2_slow():
    Q, ONES, KF, VF, P, L, S, O, NEGM = (AT[k] for k in ("Q", "ONES", "KF", "VF", "P", "L", "S", "O", "NEGM"))
    A.label("K2_SLOW")
    sK = 33
    for x in range(2):
        A(f"v_mov_b32 v8, 0xff800000")
        A(f"s_mov_b32 s{sK}, {WS_KV}")
        A(f"s_mov_b32 s{sCNT}, 0")
        A("s_waitcnt lgkmcnt(0)")
        A.label(f"K2_SLOW1{x}")
        A(f"buffer_load_dwordx4 {vr(KF,4)}, v{VL16}, s[{SWS}:{SWS+3}], s{sK} offen sc1")
        A(f"buffer_load_dwordx4 {vr(KF+4,4)}, v{VL16}, s[{SWS}:{SWS+3}], s{sK} offen offset:1024 sc1")
        A("s_waitcnt vmcnt(0)")
        A(mfma32(S[0], KF, Q[x], "0"))
        A(mfma32(S[0], KF+4, Q[x]+4))
        A("s_nop 15")
        for i in range(0, 16, 2):
            A(f"v_max3_f32 v8, v8, v{S[0]+i}, v{S[0]+i+1}")
        A(f"s_add_u32 s{sK}, s{sK}, 4096")
        A(f"s_add_u32 s{sCNT}, s{sCNT}, 1")
        A(f"s_cmp_lt_u32 s{sCNT}, 64")
        A(f"s_cbranch_scc1 K2_SLOW1{x}")
        A("v_mov_b32 v9, v8")
        A("s_nop 1")
        A("v_permlane32_swap_b32 v8, v9")
        A("v_max_f32 v8, v8, v9")
        for i in range(16):
            A(f"v_sub_f32 v{NEGM[0]+i}, 0, v8")
            A(f"v_mov_b32 v{O[x]+i}, 0")
        for i in range(4):
            A(f"v_mov_b32 v{L[x]+i}, 0")
        A(f"s_mov_b32 s{sK}, {WS_KV}")
        A(f"s_mov_b32 s{sCNT}, 0")
        A.label(f"K2_SLOW2{x}")
        for i in range(2):
            A(f"buffer_load_dwordx4 {vr(KF+4*i,4)}, v{VL16}, s[{SWS}:{SWS+3}], s{sK} offen offset:{1024*i} sc1")
            A(f"buffer_load_dwordx4 {vr(VF+4*i,4)}, v{VL16}, s[{SWS}:{SWS+3}], s{sK} offen offset:{2048+1024*i} sc1")
        A("s_waitcnt vmcnt(0)")
        A(mfma32(S[0], KF, Q[x], NEGM[0]))
        A(mfma32(S[0], KF+4, Q[x]+4))
        A("s_nop 15")
        for i in range(16):
            A(f"v_exp_f32 v{S[0]+i}, v{S[0]+i}")
        A("s_nop 0")
        for i in range(8):
            A(f"v_cvt_pk_bf16_f32 v{P+i}, v{S[0]+2*i}, v{S[0]+2*i+1}")
        A("s_nop 1")
        A(mfma32(O[x], VF, P))
        A(mfma16(L[x], ONES, P))
        A(mfma32(O[x], VF+4, P+4))
        A(mfma16(L[x], ONES, P+4))
        A("s_nop 15")
        A(f"s_add_u32 s{sK}, s{sK}, 4096")
        A(f"s_add_u32 s{sCNT}, s{sCNT}, 1")
        A(f"s_cmp_lt_u32 s{sCNT}, 64")
        A(f"s_cbranch_scc1 K2_SLOW2{x}")
    A("s_branch K2_FIN")

sBR, sRB16, sCB = 88, 89, 90
def p3_decode():
    A(f"s_lshr_b32 s{sBR}, s{sXCD}, 2")
    A(f"s_and_b32 s{sRB16}, s{sXCD}, 1")
    A(f"s_lshl_b32 s{sRB16}, s{sRB16}, 3")
    A(f"s_and_b32 s{sT0}, s{sIDX}, 7")
    A(f"s_add_u32 s{sRB16}, s{sRB16}, s{sT0}")
    A(f"s_bfe_u32 s{sCB}, s{sXCD}, 0x10001")
    A(f"s_lshl_b32 s{sCB}, s{sCB}, 2")
    A(f"s_lshr_b32 s{sT0}, s{sIDX}, 3")
    A(f"s_add_u32 s{sCB}, s{sCB}, s{sT0}")

def p23_helper():
    KVP, ZP, PQ, KVA, ZA, NUM, DEN, VPF, VW, VFL, VT = 16, 48, 52, 68, 76, 84, 100, 116, 117, 118, 120
    sA0, sA1, sFL, sAO = 68, 69, 70, 71
    vm = VM()
    A(f"s_setprio {OPT['hprio']}")
    p2_common()
    p3_decode()
    A(f"s_lshl_b32 s{sM0}, s{sHW}, 12")
    A(f"s_add_u32 s{sGO}, s{sM0}, {WS_KV}")
    A(f"s_add_u32 s{sA0}, s{sQO}, {WS_QB}")
    A(f"s_add_u32 s{sA1}, s{sA0}, {65536 - 2048}")
    A("s_waitcnt vmcnt(0)")
    cnt_check(SWS, "s92 offen", 128, 120, 119)
    cnt_check(SWS, "s93 offen offset:4", 4, 121, 119)
    stamp(2)
    nxt = [0]
    def dma_chunk():
        c = nxt[0]
        if c >= 16: return
        A(f"s_add_u32 m0, s{sM0}, {L_R + (c % 4) * 16384}")
        A("s_nop 0")
        for n in range(4):
            A(f"buffer_load_dwordx4 v{VL16}, s[{SWS}:{SWS+3}], s{sGO} offen offset:{n*1024} {OPT['ld']} lds")
        A(f"s_add_u32 s{sGO}, s{sGO}, 16384")
        vm.add(("c", c), 4)
        nxt[0] += 1
    A(f"s_add_u32 m0, s{sM0}, {L_QS}")
    A("s_nop 0")
    for n in range(4):
        A(f"buffer_load_dwordx4 v{VL16}, s[{SWS}:{SWS+3}], s{sA0 + (n >> 1)} offen offset:{n*1024} sc1 lds")
    vm.add("q", 4)
    dma_chunk()
    A(f"s_cmp_eq_u32 s{sBR}, 1")
    A(f"s_cselect_b64 s[62:63], s[{pBWO}:{pBWO+1}], s[{pAWO}:{pAWO+1}]")
    srd(SWO, 62, 2 << 20)
    A("v_lshrrev_b32 v4, 4, v2")
    A("v_and_b32 v5, 15, v2")
    A("v_lshlrev_b32 v8, 2, v4")
    A("v_xor_b32 v5, v5, v8")
    A("v_lshlrev_b32 v4, 11, v4")
    A(f"v_lshl_add_u32 v{VW}, v5, 4, v4")
    A(f"s_lshl_b32 s{sT0}, s{sCB}, 8")
    A(f"v_add_u32 v{VW}, s{sT0}, v{VW}")
    A(f"s_lshl_b32 s{sWO}, s{sHW}, 13")
    for n in range(1, 4):
        A(f"s_add_u32 s{sWO+n}, s{sWO}, {n*16*2048}")
    sWD = 80
    A(f"s_lshl_b32 s{sWD}, s{sHW}, 10")
    nw = [0]
    def dma_w():
        s_ = nw[0]
        if s_ >= 16: return
        for n in range(4):
            A(f"s_add_u32 m0, s{sWD}, {L_WR + (s_ % 5) * 16384 + n * 4096}")
            A("s_nop 0")
            A(f"buffer_load_dwordx4 v{VW}, s[{SWO}:{SWO+3}], s{sWO+n} offen lds")
        A(f"v_add_u32 v{VW}, {64*2048}, v{VW}")
        vm.add(("w", s_), 4)
        nw[0] += 1
    no = [0]
    def dma_o():
        s_ = no[0]
        if s_ >= 16: return
        A(f"s_add_u32 m0, s{sM0}, {L_R + (s_ % 4) * 16384}")
        A("s_nop 0")
        for n in range(4):
            A(f"buffer_load_dwordx4 v{VL16}, s[{SWS}:{SWS+3}], s{sAO} offen offset:{n*1024} {OPT['ld']} lds")
        A(f"s_add_u32 s{sAO}, s{sAO}, 4096")
        vm.add(("o", s_), 4)
        no[0] += 1
    def side_loads():
        A(f"s_lshl_b32 s{sT0}, s2, 7")
        A(f"s_add_u32 s{sT0}, s{sT0}, {WS_FL + FL_A}")
        poll_shared(f"s{sT0}", 12, L_GOA, VT)
        A(f"s_lshl_b32 s{sT0}, s{sH}, 15")
        A(f"s_lshl_b32 s{sT1}, s{sHW}, 10")
        A(f"s_add_u32 s{sT0}, s{sT0}, s{sT1}")
        A(f"s_add_u32 s{sT0}, s{sT0}, {WS_KVP}")
        for p in range(8):
            A(f"buffer_load_dwordx4 {vr(KVP+4*p,4)}, v{VL16}, s[{SWS}:{SWS+3}], s{sT0} offen sc1")
            if p < 7: A(f"s_add_u32 s{sT0}, s{sT0}, 4096")
        A("v_and_b32 v6, 31, v2")
        A("v_lshlrev_b32 v6, 2, v6")
        A("v_lshl_add_u32 v6, v7, 9, v6")
        A(f"s_lshl_b32 s{sT0}, s{sH}, 10")
        A(f"s_add_u32 s{sT0}, s{sT0}, {WS_ZP}")
        for i in range(4):
            A(f"buffer_load_dword v{ZP+i}, v6, s[{SWS}:{SWS+3}], s{sT0} offen offset:{i*128} sc1")
        A(f"s_add_u32 s{sA0}, s{sQO}, {WS_QA}")
        A(f"s_add_u32 s{sA1}, s{sA0}, 65536")
        for r in range(2):
            for half in range(2):
                A(f"buffer_load_dwordx4 {vr(PQ+8*r+4*half,4)}, v{VL16}, s[{SWS}:{SWS+3}], s{sA0+r} offen offset:{half*1024} sc1")
        vm.add("side", 16)
    def step_a():
        vm.wait(A, "side")
        n = 8
        while n > 1:
            n //= 2
            for i in range(n):
                for hf in range(2):
                    A(f"v_pk_add_f32 {vr(KVP+4*i+2*hf,2)}, {vr(KVP+4*i+2*hf,2)}, {vr(KVP+4*(i+n)+2*hf,2)}")
        A(f"s_lshr_b32 s{sT0}, s{sHW}, 1")
        A(f"s_lshl_b32 s{sT0}, s{sT0}, 10")
        A(f"s_and_b32 s{sT1}, s{sHW}, 1")
        A(f"s_lshl_b32 s{sT1}, s{sT1}, 3")
        A(f"s_add_u32 s{sT0}, s{sT0}, s{sT1}")
        A(f"s_add_u32 s{sT0}, s{sT0}, {L_KVX}")
        A(f"v_add_u32 v8, s{sT0}, v{VL16}")
        A(f"v_cvt_pk_bf16_f32 v{KVP}, v{KVP}, v{KVP+1}")
        A(f"v_cvt_pk_bf16_f32 v{KVP+1}, v{KVP+2}, v{KVP+3}")
        A(f"ds_write_b64 v8, {vr(KVP,2)}")
        A(f"s_cmp_eq_u32 s{sHW}, 0")
        A("s_cbranch_scc0 K2_NOZ")
        A(f"v_pk_add_f32 {vr(ZP,2)}, {vr(ZP,2)}, {vr(ZP+2,2)}")
        A("v_and_b32 v9, 31, v2")
        A(f"v_add_f32 v{ZP}, v{ZP}, v{ZP+1}")
        A("v_lshlrev_b32 v9, 1, v9")
        A(f"v_mov_b32 v{ZP+1}, v{ZP}")
        A(f"v_add_u32 v9, {L_ZX}, v9")
        A("s_nop 0")
        A(f"v_permlane32_swap_b32 v{ZP}, v{ZP+1}")
        A(f"v_add_f32 v{ZP}, v{ZP}, v{ZP+1}")
        A(f"v_cvt_pk_bf16_f32 v{ZP}, v{ZP}, v{ZP}")
        A(f"ds_write_b16 v9, v{ZP}")
        A.label("K2_NOZ")
        A("s_waitcnt lgkmcnt(0)")
    def step_b():
        A("v_lshlrev_b32 v10, 3, v7")
        A(f"v_add_u32 v10, {L_ZX}, v10")
        A(f"v_add_u32 v11, {L_KVX}, v{VL16}")
        A(f"ds_read2_b64 {vr(ZA,4)}, v10 offset0:0 offset1:2")
        A(f"ds_read2_b64 {vr(ZA+4,4)}, v10 offset0:4 offset1:6")
        A(f"ds_read_b128 {vr(KVA,4)}, v11")
        A(f"ds_read_b128 {vr(KVA+4,4)}, v11 offset:1024")
        A(f"s_add_u32 s{sA0}, s{sQO}, {WS_OA}")
        A(f"s_add_u32 s{sA1}, s{sA0}, 65536")
        A("s_waitcnt lgkmcnt(0)")
        NUMS, DENS = [NUM, 16], [DEN, 32]
        for r in range(2):
            A(mfma32(DENS[r], ZA, PQ+8*r, "0"))
            A(mfma32(DENS[r], ZA+4, PQ+8*r+4))
            A(mfma32(NUMS[r], KVA, PQ+8*r, "0"))
            A(mfma32(NUMS[r], KVA+4, PQ+8*r+4))
        A("s_nop 7")
        for r in range(2):
            N_ = NUMS[r]
            A(f"v_add_f32 v8, {hexf(EPS)}, v{DENS[r]}")
            A("v_rcp_f32 v8, v8")
            A("s_nop 0")
            A("v_mov_b32 v9, v8")
            for i in range(8):
                A(f"v_pk_mul_f32 {vr(N_+2*i,2)}, {vr(N_+2*i,2)}, v[8:9]")
            for i in range(8):
                A(f"v_cvt_pk_bf16_f32 v{N_+i}, v{N_+2*i}, v{N_+2*i+1}")
            for half in range(2):
                A(f"buffer_store_dwordx4 {vr(N_+4*half,4)}, v{VL16}, s[{SWS}:{SWS+3}], s{sA0+r} offen offset:{half*1024} sc1")
        vm.add("st", 4)
    def sig_oa():
        A(f"s_lshl_b32 s{sFL}, s{sRB8}, 11")
        A(f"s_add_u32 s{sFL}, s{sFL}, {WS_FL + FL_O}")
        A("v_lshlrev_b32 v10, 7, v2")
        signal(L_CNTA, sFL, 10, "0xffff", 8, 9)
        vm.clear()
        vm.add("flagst")
    def pf_wo():
        A("s_cmp_ge_u32 s2, 128")
        A(f"s_cselect_b64 s[62:63], s[{pBWO}:{pBWO+1}], s[{pAWO}:{pAWO+1}]")
        srd(SPF, 62, 2 << 20)
        A("v_lshlrev_b32 v8, 7, v2")
        A(f"s_and_b32 s{sT0}, s2, 127")
        A(f"s_lshl_b32 s{sT0}, s{sT0}, 1")
        A(f"s_add_u32 s{sT0}, s{sT0}, s{sHW}")
        A(f"s_lshl_b32 s{sT0}, s{sT0}, 13")
        A(f"s_cmp_lt_u32 s{sHW}, {2 if OPT['pf2'] else 0}")
        A(f"s_cselect_b32 s{sT0}, s{sT0}, {OOB}")
        A(f"buffer_load_dword v{VPF}, v8, s[{SPF}:{SPF+3}], s{sT0} offen")
        vm.add("pf")
    vm.wait(A, "q", ("c", 0))
    stamp(3)
    A("s_barrier")
    for c in range(1, 17):
        if c == 8: sig_oa()
        if c == 4 and not OPT["nosp"] & 1: side_loads()
        lim = min(15, c + 1) if c >= 3 else 3
        k = 0
        while nxt[0] <= lim and k < 2:
            dma_chunk(); k += 1
        if c == 5 and not OPT["nosp"] & 2: pf_wo()
        if c == 6 and not OPT["nosp"] & 1: step_a()
        if c == 7 and not OPT["nosp"] & 1: step_b()
        if 10 <= c < 10 + OPT["wpre"]: dma_w()
        vm.wait(A, ("c", c))
        A("s_barrier")
    stamp(4)
    A(f"s_lshl_b32 s{sAO}, s{sRB16}, 2")
    A(f"s_add_u32 s{sAO}, s{sAO}, s{sHW}")
    A(f"s_lshl_b32 s{sAO}, s{sAO}, 16")
    A(f"s_lshl_b32 s{sT0}, s{sBR}, 22")
    A(f"s_add_u32 s{sAO}, s{sAO}, s{sT0}")
    A(f"s_add_u32 s{sAO}, s{sAO}, {WS_OA}")
    A(f"s_lshl_b32 s{sT0}, s{sBR}, 4")
    A(f"s_add_u32 s{sT0}, s{sT0}, s{sRB16}")
    A(f"s_lshl_b32 s{sT0}, s{sT0}, 3")
    A(f"s_add_u32 s{sT0}, s{sT0}, s{sCB}")
    A(f"s_lshl_b32 s{sT0}, s{sT0}, 7")
    A(f"s_add_u32 s{sT0}, s{sT0}, {WS_FL + FL_O}")
    while nw[0] < 5: dma_w()
    poll_shared(f"s{sT0}", 32, L_GOO, VT)
    stamp(5)
    dma_o(); dma_o(); dma_o()
    for i in range(16):
        vm.wait(A, ("o", i), ("w", i))
        if i == 0: stamp(6)
        A("s_barrier")
        if no[0] <= i + 3: dma_o()
        if i >= 1 and nw[0] <= i + 4: dma_w()
    stamp(7)
    stamp_out()
    A("s_endpgm")

def p3_compute(sFL2):
    AA, WA = 16, 17
    FB = [32, 48]
    FA = lambda b, t: FB[b] + 4 * t
    FW = lambda b, u: FB[b] + 8 + 4 * u
    ACC = lambda t, u: 176 + 16 * (2 * t + u)
    sBO, sBW, sDO, sDW, sOUT = 30, 31, 32, 33, 71
    p3_decode()
    srd(SOUT, pOUT, 8 << 20)
    A(f"s_lshl_b32 s{sT0}, s{sWM}, 13")
    A(f"s_add_u32 s{sT0}, s{sT0}, {L_R}")
    A(f"v_lshl_add_u32 v{AA}, v2, 4, s{sT0}")
    A("v_lshrrev_b32 v4, 5, v2")
    A("v_bfe_u32 v5, v2, 2, 2")
    A("v_lshl_add_u32 v6, v4, 2, v5")
    A("v_bfe_u32 v7, v2, 4, 1")
    A("v_bfe_u32 v8, v2, 1, 1")
    A("v_lshl_add_u32 v7, v7, 1, v8")
    A("v_and_b32 v8, 1, v2")
    A("v_lshlrev_b32 v8, 3, v8")
    A("v_lshl_add_u32 v8, v6, 8, v8")
    for u in range(2):
        A(f"s_lshl_b32 s{sT0}, s{sWN}, 1")
        A(f"s_add_u32 s{sT0}, s{sT0}, {u}")
        A(f"v_xor_b32 v9, s{sT0}, v5")
        A("v_lshl_add_u32 v9, v9, 2, v7")
        A(f"v_lshl_add_u32 v{WA+u}, v9, 4, v8")
    for r in range(64):
        A(f"v_mov_b32 v{176+r}, 0")
    A(f"s_mov_b32 s{sSTG}, 16384")
    A(f"s_mov_b32 s{sBO}, 0")
    A(f"s_mov_b32 s{sBW}, 0")
    A(f"s_mov_b32 s{sCNT}, 16")
    RS = 144
    VEW, VER, VEG = 24, 25, 26
    A(f"s_mul_i32 s{sT0}, s{sWAVE}, {64*RS}")
    A("v_and_b32 v3, 31, v2")
    A(f"v_mul_u32_u24 v3, {RS}, v3")
    A("v_lshl_add_u32 v3, v4, 3, v3")
    A(f"v_add_u32 v{VEW}, s{sT0}, v3")
    A("v_lshrrev_b32 v3, 3, v2")
    A("v_and_b32 v5, 7, v2")
    A(f"v_mul_u32_u24 v6, {RS}, v3")
    A("v_lshl_add_u32 v6, v5, 4, v6")
    A(f"v_add_u32 v{VER}, s{sT0}, v6")
    A("v_lshlrev_b32 v3, 12, v3")
    A(f"v_lshl_add_u32 v{VEG}, v5, 4, v3")
    A(f"s_lshl_b32 s{sT0}, s{sRB16}, 1")
    A(f"s_add_u32 s{sT0}, s{sT0}, s{sWM}")
    A(f"s_lshl_b32 s{sT0}, s{sT0}, 18")
    A(f"s_lshl_b32 s{sT1}, s{sBR}, 3")
    A(f"s_add_u32 s{sT1}, s{sT1}, s{sCB}")
    A(f"s_lshl_b32 s{sT1}, s{sT1}, 1")
    A(f"s_add_u32 s{sT1}, s{sT1}, s{sWN}")
    A(f"s_lshl_b32 s{sT1}, s{sT1}, 7")
    A(f"s_add_u32 s{sOUT}, s{sT0}, s{sT1}")
    A("v_lshlrev_b32 v10, 7, v2")
    signal(L_CNTB, sFL2, 10, "0xffff", 8, 9)
    stamp(9)
    def reads(b, ks):
        R = [f"ds_read_b128 {vr(FA(b,0),4)}, v{AA} offset:{ks*1024}"]
        for u in range(2):
            R.append(f"ds_read_b64_tr_b16 {vr(FW(b,u),2)}, v{WA+u} offset:{L_WR+ks*4096}")
            R.append(f"ds_read_b64_tr_b16 {vr(FW(b,u)+2,2)}, v{WA+u} offset:{L_WR+ks*4096+2048}")
        R.append(f"ds_read_b128 {vr(FA(b,1),4)}, v{AA} offset:{4096+ks*1024}")
        return R
    A("s_waitcnt lgkmcnt(0)")
    A("s_barrier")
    stamp(10)
    lite(4)
    for r in reads(0, 0): A(r)
    A.label("K3_LOOP")
    start = len(A.lines)
    for s in range(4):
        b = s & 1
        mf = [mfma32(ACC(t,u), FW(b,u), FA(b,t)) for t in range(2) for u in range(2)]
        fill = reads(b ^ 1, (s + 1) & 3)
        post = []
        if s == 0:
            post = [f"s_add_u32 s{sBO}, s{sBO}, 1", f"s_cmp_eq_u32 s{sBO}, 4",
                    f"s_cselect_b32 s{sDO}, {-3*16384 & 0xffffffff}, s{sSTG}", f"s_cselect_b32 s{sBO}, 0, s{sBO}"]
        if s == 1:
            post = [f"s_add_u32 s{sBW}, s{sBW}, 1", f"s_cmp_eq_u32 s{sBW}, 5",
                    f"s_cselect_b32 s{sDW}, {-4*16384 & 0xffffffff}, s{sSTG}", f"s_cselect_b32 s{sBW}, 0, s{sBW}"]
        if s == 2:
            post = [f"v_add_u32 v{AA}, s{sDO}, v{AA}", f"v_add_u32 v{WA}, s{sDW}, v{WA}", f"v_add_u32 v{WA+1}, s{sDW}, v{WA+1}"]
        if s == 3:
            post = [f"s_sub_u32 s{sCNT}, s{sCNT}, 1", f"s_cmp_lg_u32 s{sCNT}, 0"]
        A("s_waitcnt lgkmcnt(0)")
        for k, m in enumerate(mf):
            A(m)
            if s == 3 and k == 0: A("s_barrier")
            n = 3
            while n and fill:
                A(fill.pop(0)); n -= 1
            if n == 3:
                while post: A(post.pop(0))
    A("s_cbranch_scc1 K3_LOOP")
    body = A.lines[start:]
    chk(body + body, "k3 loop")
    stamp(11)
    A("s_waitcnt lgkmcnt(0)")
    A("s_nop 7")
    for t in range(2):
        for u in range(2):
            b = ACC(t,u)
            for g in range(4):
                A(f"v_cvt_pk_bf16_f32 v{b+4*g}, v{b+4*g}, v{b+4*g+1}")
                A(f"v_cvt_pk_bf16_f32 v{b+4*g+1}, v{b+4*g+2}, v{b+4*g+3}")
                A(f"ds_write_b64 v{VEW}, {vr(b+4*g,2)} offset:{t*32*RS + u*64 + g*16}")
    A("s_waitcnt lgkmcnt(0)")
    for i in range(8):
        A(f"ds_read_b128 {vr(32+4*i,4)}, v{VER} offset:{i*8*RS}")
    for i in range(8):
        A(f"s_waitcnt lgkmcnt({7-i})")
        A(f"buffer_store_dwordx4 {vr(32+4*i,4)}, v{VEG}, s[{SOUT}:{SOUT+3}], s{sOUT} offen sc1")
        if i < 7: A(f"s_add_u32 s{sOUT}, s{sOUT}, {8*4096}")
    stamp(12)
    if DIAG or OPT["lite"]: A("s_waitcnt vmcnt(0)")
    lite(5)
    lite_out()
    stamp(13)
    stamp_out()
    A.label("K_END")
    A("s_endpgm")

def main():
    pos = [a for a in sys.argv[1:] if not a.startswith("--") and "=" not in a]
    out = pos[0] if pos else f"cdna_kernels/{KNAME}.s"
    entry()
    p1_loader()
    p23_helper()
    f1 = p1_compute()
    f2 = p2_attn(f1)
    p3_compute(f2)
    p2_slow()
    chk(A.lines, "all")
    name = f"{KNAME}_kernel"
    ref = open(f"cdna_kernels/{KNAME}.s.ref").read().split("\n")
    head = [l for l in ref if l.startswith(";") and "@launch" not in l and "Override" not in l and "grid=ceil" not in l]
    if OPT["aslist"]: head.append(f"; @launch kernel={name} grid=(256,1,1) block=(512,1,1) lds={LDS_TOTAL}")
    else: head.append(f"; @launch grid=(256,1,1) block=(512,1,1) lds={LDS_TOTAL}")
    nv = 256 if DIAG else 248
    txt = "\n".join(head) + f'''
.amdgcn_target "amdgcn-amd-amdhsa--gfx950"
.text
.globl {name}
.p2align 8
.type {name},@function
{name}:
''' + A.text() + f'''
.section .rodata,"a"
.p2align 6
.amdhsa_kernel {name}
  .amdhsa_next_free_vgpr {nv}
  .amdhsa_next_free_sgpr 102
  .amdhsa_accum_offset {nv}
  .amdhsa_group_segment_fixed_size 0
  .amdhsa_kernarg_size 88
  .amdhsa_user_sgpr_count 2
  .amdhsa_user_sgpr_kernarg_segment_ptr 1
  .amdhsa_system_sgpr_workgroup_id_x 1
.end_amdhsa_kernel
'''
    open(out, "w").write(txt)
    seen = set()
    for p in PROBS:
        if p not in seen:
            print("HAZARD", p); seen.add(p)
    print("written", out, len(txt))
main()
```

```python
import sys, math, os
from asmlib import *
from attn_body import attn_body, auto_waits

KNAME = "concat_heads__linear_attn_block__grouped_kv_mqa__prompt"
OPT = dict(pf1=1, pfs="x012345", pf0=2, defat=3, pf2=1, hprio=2, aslist=0, wpre=5, slp=1, ld="", pfc=1, sumv=0, nosp=0, lite=0, tlb=1, lw0=5, lw1=130, lw2=254)
for a in sys.argv[1:]:
    if "=" in a:
        k, v = a.lstrip("-").split("=", 1)
        OPT[k] = int(v) if v.lstrip("-").isdigit() else v.replace("+", " ")
DIAG = "--diag" in sys.argv

RTS = 65536 + 256
REG = 64 * RTS
WS_QA = 0
WS_QB = REG
WS_OA = 2 * REG
WS_OB = 3 * REG
WS_KV = 4 * REG
WS_KVP = WS_KV + (256 << 10)
WS_ZP = WS_KVP + (1 << 20)
WS_FL = WS_ZP + (32 << 10)
FL_A, FL_O, FL_B = 0, 256 * 128, 512 * 128
WS_USED = WS_FL + (576 * 128)
WS_DIAG = 24 << 20
if DIAG: WS_USED = WS_DIAG + (2 << 20)

LOG2E = 1.4426950408889634
KSCALE = (32 ** -0.5) * LOG2E
EPS = 1e-6
OOB = 0x40000000

P1_STAGE, P1_WOFF, P1_EOFF = 53248, 32768, 49152
MISC = 3 * P1_STAGE
L_CNT1, L_CNTA, L_CNTB, L_XF = MISC, MISC + 4, MISC + 8, MISC + 16
L_GOB, L_GOA, L_GOO = MISC + 32, MISC + 36, MISC + 40
L_ZX = MISC + 64
L_KVX = MISC + 2048
L_WR = 0
L_QS = 16384
L_R = 81920
LDS_TOTAL = 163840

PROBS = []
def chk(lines, name):
    PROBS.extend(check_hazards(lines, name))
def mfma32(d, a, b, c=None):
    cs = vr(d, 16) if c is None else (vr(c, 16) if isinstance(c, int) else c)
    return f"v_mfma_f32_32x32x16_bf16 {vr(d,16)}, {vr(a,4)}, {vr(b,4)}, {cs}"
def mfma16(d, a, b, c=None):
    cs = vr(d, 4) if c is None else (vr(c, 4) if isinstance(c, int) else c)
    return f"v_mfma_f32_16x16x32_bf16 {vr(d,4)}, {vr(a,4)}, {vr(b,4)}, {cs}"

class VM:
    def __init__(self): self.q = []
    def add(self, tag, n=1): self.q += [tag] * n
    def has(self, tag): return tag in self.q
    def wait(self, A, *tags):
        idxs = [i for i, t in enumerate(self.q) if t in tags]
        if not idxs: return
        idx = max(idxs)
        n = len(self.q) - 1 - idx
        assert n <= 63
        A(f"s_waitcnt vmcnt({n})")
        self.q = self.q[idx + 1:]
    def clear(self): self.q = []

A = Asm()
pAX, pAW, pAWO, pBX, pBWQ, pBWK, pBWV, pBWO, pOUT, pDBG, pWS = 40, 42, 44, 46, 48, 50, 52, 54, 56, 58, 60
SX, SW, SE, SWS, SPF, SDBG = 4, 8, 12, 16, 64, 84
SWO, SOUT = 4, 8
sXCD, sIDX, sWAVE, sRB, sCBG, sT0, sW4, sT1 = 20, 21, 22, 23, 24, 25, 26, 27
sTYPE, sCOL, sS1, sS2, sWSTR, sROT, sBASE, sCNT, sDELTA, sWADV = 28, 29, 30, 31, 32, 33, 34, 35, 36, 37
sWM, sWN = 38, 39
sXO, sWO, sSTG = 68, 76, 80
sPOLL = 96

def srd(dst, lo, nbytes):
    A(f"s_mov_b32 s{dst}, s{lo}")
    A(f"s_and_b32 s{dst+1}, s{lo+1}, 0xffff")
    if isinstance(nbytes, int): A(f"s_mov_b32 s{dst+2}, {nbytes}")
    else: A(nbytes)
    A(f"s_mov_b32 s{dst+3}, 0x20000")

def stamp(i):
    if not DIAG: return
    A("s_memtime s[98:99]")
    A("s_memrealtime s[100:101]")
    A("s_waitcnt lgkmcnt(0)")
    A(f"v_writelane_b32 v255, s98, {i}")
    A(f"v_writelane_b32 v255, s100, {32+i}")
def stamp_out():
    if not DIAG: return
    A("s_getreg_b32 s98, hwreg(HW_REG_XCC_ID)")
    A("s_and_b32 s98, s98, 15")
    A("v_writelane_b32 v255, s98, 30")
    A(f"v_writelane_b32 v255, s{sTYPE}, 31")
    A("v_and_b32 v254, 63, v0")
    A("v_lshlrev_b32 v254, 2, v254")
    A("s_lshl_b32 s98, s2, 3")
    A(f"s_add_u32 s98, s98, s{sWAVE}")
    A("s_lshl_b32 s98, s98, 8")
    A(f"s_add_u32 s98, s98, {WS_DIAG}")
    A(f"buffer_store_dword v255, v254, s[{SWS}:{SWS+3}], s98 offen")

def lite(i, inv=False):
    if not OPT["lite"]: return
    A("s_memrealtime s[100:101]")
    A("s_waitcnt lgkmcnt(0)")
    if i == 0:
        A("s_mov_b32 s99, s100"); A("v_mov_b32 v245, 0"); return
    A("s_sub_u32 s100, s100, s99")
    A(f"v_writelane_b32 v245, s100, {i-1}")
def lite_out():
    if not OPT["lite"]: return
    D = U("LO")
    A(f"s_cmp_eq_u32 s{sWAVE}, 0")
    A(f"s_cbranch_scc0 {D}")
    A("s_mov_b32 s98, 0x40000000")
    for k, w in enumerate((OPT["lw0"], OPT["lw1"], OPT["lw2"])):
        A(f"s_cmp_eq_u32 s2, {w}")
        A(f"s_cselect_b32 s98, {4 + 20*k}, s98")
    A("v_lshlrev_b32 v246, 2, v2")
    A("s_mov_b64 exec, 31")
    A(f"buffer_store_dword v245, v246, s[{SDBG}:{SDBG+3}], s98 offen")
    A.label(D)
uid = [0]
def U(p):
    uid[0] += 1
    return f"{p}_{uid[0]}"

def poll(srdreg, soff, need, vtmp):
    L, D = U("POLL"), U("POLLD")
    A(f"s_mov_b32 s{sPOLL}, 300000")
    A(f"v_mov_b32 v{vtmp+1}, 0")
    A.label(L)
    A(f"buffer_load_dword v{vtmp}, v{vtmp+1}, s[{srdreg}:{srdreg+3}], {soff} offen sc1")
    A("s_waitcnt vmcnt(0)")
    A(f"v_cmp_gt_u32 vcc, {need}, v{vtmp}")
    A(f"s_sub_u32 s{sPOLL}, s{sPOLL}, 1")
    A(f"s_cbranch_vccz {D}")
    if OPT["slp"]: A(f"s_sleep {OPT['slp']}")
    A(f"s_cmp_lg_u32 s{sPOLL}, 0")
    A(f"s_cbranch_scc1 {L}")
    A.label(D)

def poll_shared(soff, need, lgo, vtmp):
    O_, D = U("PSO"), U("PSD")
    A(f"s_mov_b32 s{sPOLL+1}, {lgo}")
    A(f"s_cmp_eq_u32 s{sW4}, 0")
    A(f"s_cbranch_scc0 {O_}")
    poll(SWS, soff, need, vtmp)
    lds_flag_set(sPOLL + 1, vtmp, vtmp + 1)
    A(f"s_branch {D}")
    A.label(O_)
    lds_flag_wait(sPOLL + 1, vtmp, vtmp + 1, sleep=1)
    A.label(D)

def signal(lcnt, sfl, voff, smask, va, vb):
    D = U("SIG")
    A(f"v_mov_b32 v{va}, {lcnt}")
    A(f"v_mov_b32 v{vb}, 1")
    A("s_mov_b64 exec, 1")
    A("s_waitcnt vmcnt(0)")
    A(f"ds_add_rtn_u32 v{va}, v{va}, v{vb}")
    A("s_waitcnt lgkmcnt(0)")
    A(f"v_readfirstlane_b32 s{sPOLL}, v{va}")
    A(f"s_mov_b64 exec, {smask}")
    A(f"s_cmp_eq_u32 s{sPOLL}, 3")
    A(f"s_cbranch_scc0 {D}")
    A(f"buffer_atomic_add v{vb}, v{voff}, s[{SWS}:{SWS+3}], s{sfl} offen sc1")
    A.label(D)
    A("s_mov_b64 exec, -1")

def lds_flag_set(addr_sgpr, va, vb):
    A(f"v_mov_b32 v{va}, s{addr_sgpr}")
    A(f"v_mov_b32 v{vb}, 1")
    A("s_waitcnt lgkmcnt(0)")
    A(f"ds_write_b32 v{va}, v{vb}")
def lds_flag_wait(addr_sgpr, va, vb, sleep=0):
    L = U("LFW")
    A(f"v_mov_b32 v{va}, s{addr_sgpr}")
    A.label(L)
    if sleep: A(f"s_sleep {sleep}")
    A(f"ds_read_b32 v{vb}, v{va}")
    A("s_waitcnt lgkmcnt(0)")
    A(f"v_cmp_eq_u32 vcc, 0, v{vb}")
    A("s_nop 0")
    A(f"s_cbranch_vccnz {L}")

XS, XWOFF, XEOFF = 36864, 16384, 32768
L_XX = 147456
def cnt_load(srdreg, soff, vdst, vzero):
    A(f"buffer_load_dword v{vdst}, v{vzero}, s[{srdreg}:{srdreg+3}], {soff} sc1")
def cnt_check(srdreg, soff, need, vdst, vzero):
    L, D = U("POLL"), U("POLLD")
    A(f"s_mov_b32 s{sPOLL}, 300000")
    A.label(L)
    A(f"v_cmp_gt_u32 vcc, {need}, v{vdst}")
    A(f"s_sub_u32 s{sPOLL}, s{sPOLL}, 1")
    A(f"s_cbranch_vccz {D}")
    A("s_sleep 2")
    cnt_load(srdreg, soff, vdst, vzero)
    A("s_waitcnt vmcnt(0)")
    A(f"s_cmp_lg_u32 s{sPOLL}, 0")
    A(f"s_cbranch_scc1 {L}")
    A.label(D)

def entry():
    A("s_cmp_ge_u32 s2, 256")
    A("s_cbranch_scc1 K_END")
    A("s_load_dwordx16 s[40:55], s[0:1], 0")
    A("s_load_dwordx4 s[56:59], s[0:1], 64")
    A("s_load_dwordx2 s[60:61], s[0:1], 80")
    if DIAG: A("v_mov_b32 v255, 0")
    A("v_lshrrev_b32 v1, 6, v0")
    A("v_and_b32 v2, 63, v0")
    A(f"s_and_b32 s{sXCD}, s2, 7")
    A(f"s_lshr_b32 s{sIDX}, s2, 3")
    A(f"v_readfirstlane_b32 s{sWAVE}, v1")
    A(f"s_and_b32 s{sT1}, s{sXCD}, 3")
    A(f"s_lshr_b32 s{sW4}, s{sXCD}, 2")
    A(f"s_cmp_lt_u32 s{sIDX}, 16")
    A("s_cbranch_scc0 K1_MAPY")
    A(f"s_lshl_b32 s{sRB}, s{sT1}, 2")
    A(f"s_and_b32 s{sT0}, s{sIDX}, 3")
    A(f"s_add_u32 s{sRB}, s{sRB}, s{sT0}")
    A(f"s_lshl_b32 s{sCBG}, s{sW4}, 2")
    A(f"s_lshr_b32 s{sT0}, s{sIDX}, 2")
    A(f"s_add_u32 s{sCBG}, s{sCBG}, s{sT0}")
    A(f"s_mov_b32 s{sTYPE}, 0")
    A(f"s_and_b32 s{sROT}, s{sCBG}, 3")
    A("s_branch K1_MAPD")
    A.label("K1_MAPY")
    A(f"s_lshl_b32 s{sRB}, s{sT1}, 1")
    A(f"s_and_b32 s{sT0}, s{sIDX}, 1")
    A(f"s_add_u32 s{sRB}, s{sRB}, s{sT0}")
    A(f"s_lshl_b32 s{sCBG}, s{sW4}, 3")
    A(f"s_bfe_u32 s{sT0}, s{sIDX}, 0x30001")
    A(f"s_add_u32 s{sCBG}, s{sCBG}, s{sT0}")
    A(f"s_mov_b32 s{sTYPE}, 1")
    A(f"s_mov_b32 s{sROT}, 0")
    A.label("K1_MAPD")
    A(f"s_and_b32 s{sW4}, s{sWAVE}, 3")
    A(f"s_cmp_lt_u32 s{sWAVE}, 4")
    A("s_cbranch_scc1 K1_COMPUTE")

def srd_e():
    A(f"s_bitcmp1_b32 s{sCBG}, 2")
    A(f"s_cselect_b64 s[62:63], s[{pBWV}:{pBWV+1}], s[{pBWK}:{pBWK+1}]")
    srd(SE, 62, 65536)
def build_srds_common():
    srd(SWS, pWS, WS_USED)
    srd(SDBG, pDBG, 256)

VPFA, VPFD = 10, 11
sPFO, sPFA, sT2, sT3 = 82, 83, 30, 31
def pf_setup(role, member):
    W, D = U("PFW"), U("PFD")
    A(f"s_cmp_lt_u32 s{role}, 2")
    A(f"s_cbranch_scc0 {W}")
    A("v_lshrrev_b32 v12, 1, v2")
    A(f"v_lshlrev_b32 v{VPFA}, 11, v12")
    A("v_and_b32 v12, 1, v2")
    A(f"v_lshl_add_u32 v{VPFA}, v12, 7, v{VPFA}")
    A(f"s_lshl_b32 s{sPFO}, s{member}, 16")
    A(f"s_mov_b32 s{sPFA}, 256")
    A(f"s_cmp_eq_u32 s{role}, 1")
    A(f"s_cselect_b64 s[62:63], s[{pBX}:{pBX+1}], s[{pAX}:{pAX+1}]")
    A(f"s_mov_b32 s{sT2}, 4")
    A(f"s_branch {D}")
    A.label(W)
    A(f"v_lshlrev_b32 v{VPFA}, 7, v2")
    A(f"s_lshl_b32 s{sT2}, s{member}, 1")
    A(f"s_add_u32 s{sT2}, s{sT2}, s{role}")
    A(f"s_sub_u32 s{sT2}, s{sT2}, 2")
    A(f"s_sub_u32 s{sT3}, s{sT2}, 96")
    A(f"s_cmp_lt_u32 s{sT2}, 96")
    A(f"s_cselect_b32 s{sPFO}, s{sT2}, s{sT3}")
    A(f"s_cselect_b64 s[62:63], s[{pAW}:{pAW+1}], s[{pBWQ}:{pBWQ+1}]")
    A(f"s_cselect_b32 s{sT2}, 6, 2")
    A(f"s_lshl_b32 s{sPFA}, s{sT2}, 17")
    A(f"s_lshl_b32 s{sPFO}, s{sPFO}, 13")
    A.label(D)
    srd(SPF, 62, f"s_lshl_b32 s{SPF+2}, s{sT2}, 20")

def p1_loader():
    VX, VW, VE, VW2 = 3, 6, 7, 9
    sLIM, sB0 = 29, 37
    A("v_lshrrev_b32 v4, 4, v2")
    A(f"s_lshl_b32 s{sT0}, s{sW4}, 2")
    A(f"v_add_u32 v4, s{sT0}, v4")
    A("v_and_b32 v4, 7, v4")
    A("v_and_b32 v5, 7, v2")
    A("v_xor_b32 v4, v4, v5")
    A("v_lshlrev_b32 v4, 4, v4")
    A("v_lshrrev_b32 v5, 3, v2")
    A(f"v_lshl_add_u32 v{VX}, v5, 11, v4")
    A("v_lshrrev_b32 v4, 4, v2")
    A("v_and_b32 v5, 15, v2")
    A("v_lshlrev_b32 v8, 2, v4")
    A("v_xor_b32 v5, v5, v8")
    A(f"s_lshl_b32 s{sB0}, s{sW4}, 10")
    A(f"s_mov_b32 s{sBASE}, s{sB0}")
    A(f"s_mov_b32 s{sCNT}, 0")
    def dma(off, ins):
        A(f"s_add_u32 m0, s{sBASE}, {off}")
        A("s_nop 0")
        A(ins)
    def adv(stage):
        A(f"s_add_u32 s{sBASE}, s{sBASE}, {stage}")
        A(f"s_cmp_ge_u32 s{sBASE}, s{sLIM}")
        A(f"s_cselect_b32 s{sBASE}, s{sB0}, s{sBASE}")
        A(f"s_add_u32 s{sCNT}, s{sCNT}, 1")
    xl = lambda n: (n * 4096, f"buffer_load_dwordx4 v{VX}, s[{SX}:{SX+3}], s{sXO+n} offen lds")
    A(f"s_cmp_eq_u32 s{sTYPE}, 1")
    A("s_cbranch_scc1 K1_LY")
    A(f"s_lshl_b32 s{sT1}, s{sRB}, 4")
    A(f"s_add_u32 s{sT1}, s{sT1}, s{sW4}")
    A(f"s_lshl_b32 s{sT1}, s{sT1}, 14")
    for n in range(4):
        A(f"s_add_u32 s{sT0}, s{sROT}, {n}")
        A(f"s_and_b32 s{sT0}, s{sT0}, 3")
        A(f"s_lshl_b32 s{sT0}, s{sT0}, 16")
        A(f"s_add_u32 s{sXO+n}, s{sT0}, s{sT1}")
    A(f"s_lshl_b32 s{sT0}, s{sCBG}, 8")
    A(f"v_lshl_add_u32 v8, v5, 4, s{sT0}")
    A(f"v_lshl_add_u32 v{VW}, v4, 11, v8")
    A(f"s_lshl_b32 s{sWO}, s{sW4}, 13")
    for n in range(1, 4):
        A(f"s_add_u32 s{sWO+n}, s{sWO}, {n*16*2048}")
    A(f"v_lshl_add_u32 v{VE}, v2, 4, s{sB0}")
    A(f"s_add_u32 s{sLIM}, s{sB0}, {4*XS}")
    A("s_waitcnt lgkmcnt(0)")
    srd(SX, pBX, 4 << 20)
    srd(SW, pBWQ, 2 << 20)
    srd_e()
    stamp(0)
    A("s_branch K1_XINB")
    A.label("K1_XLB")
    A(f"s_cmp_lt_u32 s{sCNT}, 2")
    A("s_cbranch_scc1 K1_XINB")
    A("s_waitcnt vmcnt(9)")
    A("s_barrier")
    A.label("K1_XINB")
    wl = lambda n, v: (XWOFF + n * 4096, f"buffer_load_dwordx4 v{v}, s[{SW}:{SW+3}], s{sWO+n} offen lds")
    for off, ins in (xl(0), wl(0, VW), (XEOFF, f"buffer_load_dwordx4 v{VE}, s[{SE}:{SE+3}], 0 offen lds"), xl(1), wl(1, VW), xl(2), wl(2, VW), xl(3), wl(3, VW)):
        dma(off, ins)
    A(f"v_add_u32 v{VX}, 128, v{VX}")
    A(f"v_add_u32 v{VW}, {64*2048}, v{VW}")
    A(f"v_add_u32 v{VE}, 4096, v{VE}")
    adv(XS)
    A(f"s_cmp_lt_u32 s{sCNT}, 16")
    A("s_cbranch_scc1 K1_XLB")
    srd(SX, pAX, 4 << 20)
    srd(SW, pAW, 6 << 20)
    A(f"v_subrev_u32 v{VX}, 2048, v{VX}")
    A(f"v_mul_u32_u24 v{VW2}, 6144, v4")
    A(f"v_add_u32 v{VW2}, v{VW2}, v8")
    A(f"s_mul_i32 s{sWO}, s{sW4}, {4*6144}")
    for n in range(1, 4):
        A(f"s_add_u32 s{sWO+n}, s{sWO}, {n*16*6144}")
    A.label("K1_XLA")
    A("s_waitcnt vmcnt(8)")
    A("s_barrier")
    for off, ins in (xl(0), wl(0, VW2), xl(1), wl(1, VW2), xl(2), wl(2, VW2), xl(3), wl(3, VW2)):
        dma(off, ins)
    A(f"v_add_u32 v{VX}, 128, v{VX}")
    A(f"v_add_u32 v{VW2}, {64*6144}, v{VW2}")
    adv(XS)
    A(f"s_cmp_lt_u32 s{sCNT}, 32")
    A("s_cbranch_scc1 K1_XLA")
    A("s_waitcnt vmcnt(8)")
    A("s_branch K1_LTAIL")
    A.label("K1_LY")
    A(f"s_lshl_b32 s{sT1}, s{sRB}, 5")
    A(f"s_add_u32 s{sT1}, s{sT1}, s{sW4}")
    A(f"s_lshl_b32 s{sXO}, s{sT1}, 14")
    for n in range(1, 8):
        A(f"s_add_u32 s{sXO+n}, s{sXO}, {n<<16}")
    A(f"v_mul_u32_u24 v{VW}, 6144, v4")
    A("v_and_b32 v8, 3, v5")
    A(f"v_lshl_add_u32 v{VW}, v8, 4, v{VW}")
    A("v_bfe_u32 v8, v5, 2, 1")
    A(f"v_lshl_add_u32 v{VW}, v8, 11, v{VW}")
    A("v_bfe_u32 v8, v5, 3, 1")
    A(f"v_lshl_add_u32 v{VW}, v8, 6, v{VW}")
    A(f"s_lshl_b32 s{sT0}, s{sCBG}, 7")
    A(f"s_add_u32 s{sT0}, s{sT0}, 2048")
    A(f"v_add_u32 v{VW}, s{sT0}, v{VW}")
    A(f"s_mul_i32 s{sWO}, s{sW4}, {4*6144}")
    for n in range(1, 4):
        A(f"s_add_u32 s{sWO+n}, s{sWO}, {n*16*6144}")
    A(f"s_add_u32 s{sLIM}, s{sB0}, {3*P1_STAGE}")
    A("s_waitcnt lgkmcnt(0)")
    srd(SX, pAX, 4 << 20)
    srd(SW, pAW, 6 << 20)
    stamp(0)
    PF = 1 if OPT["pf1"] else 0
    n = 12 + 2 * PF
    sI, sO, sG, sM = 88, 92, 38, 39
    A("s_branch K1_YIN")
    A.label("K1_YL")
    A(f"s_cmp_lt_u32 s{sCNT}, 2")
    A("s_cbranch_scc1 K1_YIN")
    A(f"s_waitcnt vmcnt({n})")
    A("s_barrier")
    A.label("K1_YIN")
    seq = [xl(i) for i in range(8)] + [(P1_WOFF + i * 4096, f"buffer_load_dwordx4 v{VW}, s[{SW}:{SW+3}], s{sWO+i} offen lds") for i in range(4)]
    for i in [0, 8, 1, 2, 9, 3, 4, 10, 5, 6, 11, 7]:
        dma(*seq[i])
    if PF:
        A(f"s_cmp_eq_u32 s{sCNT}, 0")
        A("s_cbranch_scc0 K1_PFS")
        A(f"s_bfe_u32 s{sG}, s{sIDX}, 0x10003")
        A(f"s_and_b32 s{sM}, s{sIDX}, 7")
        A(f"s_lshl_b32 s{sM}, s{sM}, 3")
        A(f"s_add_u32 s{sM}, s{sM}, s{sXCD}")
        pf_setup(sW4, sM)
        A(f"s_add_u32 s{sM}, s{sG}, {OPT['pf0']}")
        A(f"s_mul_i32 s{sM}, s{sM}, s{sPFA}")
        A(f"s_add_u32 s{sPFO}, s{sPFO}, s{sM}")
        A(f"s_lshl_b32 s{sPFA}, s{sPFA}, 1")
        sched = [int(c, 16) for c in str(OPT["pfs"])[1:]][:8 - OPT["pf0"]]
        masks = [sum(1 << it for it in sched[g::2]) for g in range(2)]
        A(f"s_cmp_eq_u32 s{sG}, 0")
        A(f"s_mov_b32 s{sI}, {masks[1]}")
        A(f"s_cselect_b32 s{sI}, {masks[0]}, s{sI}")
        A.label("K1_PFS")
        A(f"s_bitcmp1_b32 s{sI}, s{sCNT}")
        A("s_cbranch_scc0 K1_PFX")
        A(f"buffer_load_dword v{VPFD}, v{VPFA}, s[{SPF}:{SPF+3}], s{sPFO} offen")
        A(f"s_add_u32 s{sPFO}, s{sPFO}, s{sPFA}")
        A("s_branch K1_PFY")
        A.label("K1_PFX")
        A(f"s_mov_b32 s{sT2}, {OOB}")
        A(f"buffer_load_dword v{VPFD}, off, s[{SPF}:{SPF+3}], s{sT2}")
        A.label("K1_PFY")
    A(f"v_add_u32 v{VX}, 128, v{VX}")
    A(f"v_add_u32 v{VW}, {64*6144}, v{VW}")
    adv(P1_STAGE)
    A(f"s_cmp_lt_u32 s{sCNT}, 16")
    A("s_cbranch_scc1 K1_YL")
    A(f"s_waitcnt vmcnt({n})")
    A.label("K1_LTAIL")
    A("s_barrier")
    build_srds_common()
    A("v_mov_b32 v119, 0")
    cnt_load(SDBG, "0 offen", 120, 119)
    A("s_waitcnt vmcnt(0)")
    A("s_barrier")
    cnt_check(SDBG, "0 offen", 1, 120, 119)
    A(f"s_and_b32 s92, s2, 63")
    A(f"s_lshl_b32 s92, s92, 7")
    A(f"s_add_u32 s92, s92, {WS_FL + FL_B}")
    A(f"s_lshl_b32 s93, s2, 7")
    A(f"s_add_u32 s93, s93, {WS_FL + FL_A}")
    cnt_load(SWS, "s92 offen", 120, 119)
    cnt_load(SWS, "s93 offen offset:4", 121, 119)
    A("s_barrier")
    stamp(1)

VSG = 172
sSG = 74
def p1_compute():
    A.label("K1_COMPUTE")
    XA, WA, EA = 16, 20, 22
    VPF, VINI, VZ = 24, 28, 29
    FB = [32, 60]
    FX = lambda b, t: FB[b] + 4 * t
    FW = lambda b, u: FB[b] + 16 + 4 * u
    FE = lambda b: FB[b] + 24
    XACC = 96
    ACC = lambda t, u: 112 + 16 * (2 * t + u)
    A(f"s_lshr_b32 s{sWM}, s{sWAVE}, 1")
    A(f"s_and_b32 s{sWN}, s{sWAVE}, 1")
    A("v_and_b32 v3, 31, v2")
    A("v_lshrrev_b32 v4, 5, v2")
    A("s_waitcnt lgkmcnt(0)")
    build_srds_common()
    stamp(0)
    lite(0)
    A(f"s_cmp_eq_u32 s{sWAVE}, 0")
    A("s_cbranch_scc0 K1_NW0")
    A("v_and_b32 v10, 15, v2")
    A("v_lshlrev_b32 v10, 2, v10")
    A(f"v_add_u32 v10, {MISC}, v10")
    A("v_mov_b32 v12, 0")
    A("v_mov_b32 v13, 0")
    A("ds_write_b32 v10, v12")
    A("v_lshlrev_b32 v10, 7, v2")
    A("s_cmp_eq_u32 s2, 255")
    A("s_cbranch_scc1 K1_INIT")
    if OPT["pf1"]:
        A("s_bitcmp1_b32 s2, 0")
        A(f"s_cselect_b64 s[62:63], s[{pBWV}:{pBWV+1}], s[{pBWK}:{pBWK+1}]")
        srd(SPF, 62, 65536)
        A(f"s_lshr_b32 s{sT0}, s2, 1")
        A(f"s_lshl_b32 s{sT0}, s{sT0}, 13")
        A("s_cmp_lt_u32 s2, 16")
        A("s_cbranch_scc0 K1_WD")
        A(f"buffer_load_dword v{VPF}, v10, s[{SPF}:{SPF+3}], s{sT0} offen")
    A("s_branch K1_WD")
    A.label("K1_INIT")
    A(f"s_mov_b32 s{sT0}, {WS_FL}")
    for i in range(9):
        A(f"buffer_store_dwordx2 v[12:13], v10, s[{SWS}:{SWS+3}], s{sT0} offen sc1")
        A(f"s_add_u32 s{sT0}, s{sT0}, 8192")
    A("v_mov_b32 v14, 1")
    A("s_waitcnt vmcnt(0)")
    A(f"buffer_store_dword v14, v12, s[{SDBG}:{SDBG+3}], 0 offen sc1")
    A("s_branch K1_WD")
    A.label("K1_NW0")
    A(f"s_cmp_eq_u32 s{sWAVE}, 3")
    A("s_cbranch_scc1 K1_W3")
    if OPT["pf0"]:
        A(f"s_cmp_le_u32 s{sWAVE}, {OPT['pf0']}")
        A("s_cbranch_scc0 K1_WD")
        A(f"s_and_b32 s{sT0}, s{sIDX}, 3")
        A(f"s_lshr_b32 s{sT1}, s2, 5")
        A(f"s_lshl_b32 s{sT1}, s{sT1}, 3")
        A(f"s_add_u32 s{sT1}, s{sT1}, s{sXCD}")
        pf_setup(sT0, sT1)
        A(f"s_cmp_eq_u32 s{sWAVE}, 2")
        A(f"s_cselect_b32 s{sPFA}, s{sPFA}, 0")
        A(f"s_add_u32 s{sPFO}, s{sPFO}, s{sPFA}")
        A(f"buffer_load_dword v{VPF+1}, v{VPFA}, s[{SPF}:{SPF+3}], s{sPFO} offen")
    A("s_branch K1_WD")
    A.label("K1_W3")
    if OPT["pfc"]:
        A("s_getpc_b64 s[62:63]")
        A.label("K1_PC")
        A(f"s_sub_u32 s62, s62, K1_PC-{KNAME}_kernel")
        A("s_subb_u32 s63, s63, 0")
        A(f"s_cmp_lt_u32 s{sIDX}, 28")
        A("s_cbranch_scc1 K1_TLB")
        A(f"s_and_b32 s{sT0}, s{sIDX}, 3")
        A(f"s_lshl_b32 s{sT0}, s{sT0}, 13")
        A(f"v_lshl_add_u32 v10, v2, 7, s{sT0}")
        A(f"v_min_u32 v10, K2_SLOW-{KNAME}_kernel, v10")
        A(f"global_load_dword v{VPF+2}, v10, s[62:63]")
        A("s_branch K1_WD")
    A.label("K1_TLB")
    if OPT["tlb"]:
        A(f"s_cmp_lt_u32 s{sIDX}, 20")
        A("s_cbranch_scc1 K1_WD")
        A(f"s_cmp_lt_u32 s{sIDX}, 24")
        A("s_cbranch_scc0 K1_TLB2")
        A(f"s_and_b32 s{sT0}, s{sIDX}, 3")
        A(f"s_mul_i32 s{sT0}, s{sT0}, {REG}")
        A(f"s_add_u32 s{sT0}, s{sT0}, 65536")
        A(f"s_mov_b32 s{sT1}, {RTS}")
        A(f"v_mul_lo_u32 v10, v2, s{sT1}")
        A(f"buffer_load_dword v{VPF+2}, v10, s[{SWS}:{SWS+3}], s{sT0} offen")
        A("s_branch K1_WD")
        A.label("K1_TLB2")
        A(f"s_cmp_eq_u32 s{sIDX}, 26")
        A(f"s_cselect_b64 s[62:63], s[{pAWO}:{pAWO+1}], s[{pOUT}:{pOUT+1}]")
        A(f"s_cmp_eq_u32 s{sIDX}, 27")
        A(f"s_cselect_b64 s[62:63], s[{pBWO}:{pBWO+1}], s[62:63]")
        A(f"s_cmp_lt_u32 s{sIDX}, 26")
        A(f"s_cselect_b32 s{sT1}, 8, 2")
        srd(SPF, 62, f"s_lshl_b32 s{SPF+2}, s{sT1}, 20")
        A(f"s_cmp_eq_u32 s{sIDX}, 25")
        A(f"s_cselect_b32 s{sT0}, {4<<20}, 0")
        A("v_lshlrev_b32 v10, 16, v2")
        A(f"buffer_load_dword v{VPF+2}, v10, s[{SPF}:{SPF+3}], s{sT0} offen")
    A.label("K1_WD")
    A(f"s_add_u32 s{sT0}, s{sTYPE}, 13")
    A(f"s_lshl_b32 s{sT0}, s{sWM}, s{sT0}")
    A("v_bfe_u32 v5, v2, 1, 3")
    A(f"v_lshl_add_u32 v6, v3, 7, s{sT0}")
    for ks in range(4):
        A(f"v_add_u32 v7, {2*ks}, v4")
        A("v_xor_b32 v7, v7, v5")
        A(f"v_lshl_add_u32 v{XA+ks}, v7, 4, v6")
    A("v_bfe_u32 v5, v2, 2, 2")
    A("v_lshl_add_u32 v6, v4, 3, v5")
    A("v_bfe_u32 v7, v2, 4, 1")
    A("v_bfe_u32 v8, v2, 1, 1")
    A("v_lshl_add_u32 v7, v7, 1, v8")
    A("v_and_b32 v8, 1, v2")
    A("v_lshlrev_b32 v8, 3, v8")
    A("v_lshl_add_u32 v8, v6, 8, v8")
    for u in range(2):
        A(f"s_lshl_b32 s{sT0}, s{sWN}, 1")
        A(f"s_add_u32 s{sT0}, s{sT0}, {u}")
        A(f"v_xor_b32 v9, s{sT0}, v5")
        A("v_lshl_add_u32 v9, v9, 2, v7")
        A(f"v_lshl_add_u32 v{WA+u}, v9, 4, v8")
    A("v_bfe_u32 v7, v2, 4, 1")
    A("v_lshlrev_b32 v7, 5, v7")
    A("v_and_b32 v8, 3, v2")
    A("v_lshl_add_u32 v7, v8, 3, v7")
    A(f"v_lshl_add_u32 v{EA}, v6, 6, v7")
    A(f"s_mov_b32 s{sBASE}, 0")
    A(f"s_mov_b32 s{sCNT}, 16")
    A("v_lshlrev_b32 v3, 4, v2")

    def reads(b, ks, extra, nt, woff):
        R = [f"ds_read_b128 {vr(FX(b,0),4)}, v{XA+ks} offset:0"]
        for u in range(2):
            R.append(f"ds_read_b64_tr_b16 {vr(FW(b,u),2)}, v{WA+u} offset:{woff+ks*4096}")
            R.append(f"ds_read_b64_tr_b16 {vr(FW(b,u)+2,2)}, v{WA+u} offset:{woff+ks*4096+1024}")
        for t in range(1, nt):
            R.append(f"ds_read_b128 {vr(FX(b,t),4)}, v{XA+ks} offset:{t*4096}")
        if extra:
            R.append(f"ds_read_b64_tr_b16 {vr(FE(b),2)}, v{EA} offset:{XEOFF+ks*1024}")
            R.append(f"ds_read_b64_tr_b16 {vr(FE(b)+2,2)}, v{EA} offset:{XEOFF+ks*1024+256}")
        return R
    def mainloop(tag, isX, extra, par=None):
        ex = lambda st: extra if (st & 1) == par else None
        nt, woff, nsl, stg = (2, XWOFF, 4, XS) if isX else (4, P1_WOFF, 3, P1_STAGE)
        A.label(f"K1_ML{tag}")
        A("s_barrier")
        stamp(1)
        lite(1)
        for r in reads(0, 0, ex(0), nt, woff): A(r)
        A.label(f"K1_LOOP{tag}")
        start = len(A.lines)
        for s in range(4):
            b = s & 1
            mf = []
            for t in range(nt):
                for u in range(2):
                    mf.append(mfma32(ACC(t,u), FW(b,u), FX(b,t)) if isX else mfma32(ACC(t,u), FX(b,t), FW(b,u)))
            if ex(s) == "K": mf.append(mfma32(XACC, FE(b), FX(b,0)))
            if ex(s) == "V": mf.append(mfma32(XACC, FX(b,0), FE(b)))
            fill = reads(b ^ 1, (s + 1) & 3, ex(s + 1), nt, woff)
            post = []
            if s == 1:
                post = [f"s_add_u32 s{sBASE}, s{sBASE}, 1", f"s_cmp_eq_u32 s{sBASE}, {nsl}",
                        f"s_cselect_b32 s{sDELTA}, {-(nsl-1)*stg & 0xffffffff}, s{sSTG}", f"s_cselect_b32 s{sBASE}, 0, s{sBASE}"]
            if s == 2: post = [f"v_add_u32 v{XA+i}, s{sDELTA}, v{XA+i}" for i in range(7 if extra else 6)]
            if s == 3: post = [f"s_sub_u32 s{sCNT}, s{sCNT}, 1", f"s_cmp_lg_u32 s{sCNT}, 0"]
            A("s_waitcnt lgkmcnt(0)")
            per = 4 if isX else 2
            for k, m in enumerate(mf):
                if k == len(mf) - 1:
                    assert not fill
                    while post: A(post.pop(0))
                A(m)
                if s == 3 and k == 0: A("s_barrier")
                if fill:
                    for _ in range(per):
                        if fill: A(fill.pop(0))
                else:
                    for _ in range(4):
                        if post: A(post.pop(0))
        A(f"s_cbranch_scc1 K1_LOOP{tag}")
        body = A.lines[start:]
        chk(body + body, f"k1 loop {tag}")

    XF = lambda ks: [32, 52, 72, 176][ks]
    def xreads(ks, extra):
        o = XF(ks)
        R = [f"ds_read_b128 {vr(o,4)}, v{XA+ks}"]
        for u in range(2):
            R.append(f"ds_read_b64_tr_b16 {vr(o+8+4*u,2)}, v{WA+u} offset:{XWOFF+ks*4096}")
            R.append(f"ds_read_b64_tr_b16 {vr(o+10+4*u,2)}, v{WA+u} offset:{XWOFF+ks*4096+1024}")
        R.append(f"ds_read_b128 {vr(o+4,4)}, v{XA+ks} offset:4096")
        if extra:
            R.append(f"ds_read_b64_tr_b16 {vr(o+16,2)}, v{EA} offset:{XEOFF+ks*1024}")
            R.append(f"ds_read_b64_tr_b16 {vr(o+18,2)}, v{EA} offset:{XEOFF+ks*1024+256}")
        return R
    def xloop(tag, extra, par=None):
        ex = lambda st: extra if (st & 1) == par else None
        A.label(f"K1_ML{tag}")
        A("s_barrier")
        stamp(1)
        lite(1)
        for ks in range(2):
            for r in xreads(ks, ex(ks)): A(r)
        A("s_waitcnt lgkmcnt(0)")
        body = []
        for s in range(4):
            o = XF(s)
            mf = [mfma32(ACC(t,u), o + 8 + 4 * u, o + 4 * t) for t in range(2) for u in range(2)]
            if ex(s) == "K": mf.append(mfma32(XACC, o + 16, o))
            if ex(s) == "V": mf.append(mfma32(XACC, o, o + 16))
            fill = xreads((s + 2) & 3, ex(s))
            post = []
            if s == 0:
                post = [f"s_add_u32 s{sBASE}, s{sBASE}, 1", f"s_cmp_eq_u32 s{sBASE}, 4",
                        f"s_cselect_b32 s{sDELTA}, {-3*XS & 0xffffffff}, s{sSTG}", f"s_cselect_b32 s{sBASE}, 0, s{sBASE}",
                        f"v_add_u32 v{XA}, s{sDELTA}, v{XA}", f"v_add_u32 v{XA+1}, s{sDELTA}, v{XA+1}", f"v_add_u32 v{XA+2}, s{sDELTA}, v{XA+2}"]
            if s == 1: post = [f"v_add_u32 v{XA+i}, s{sDELTA}, v{XA+i}" for i in range(3, 7 if extra else 6)]
            if s == 3: post = [f"s_sub_u32 s{sCNT}, s{sCNT}, 1", f"s_cmp_lg_u32 s{sCNT}, 0"]
            per = -(-len(fill) // (len(mf) - 1))
            for k, m in enumerate(mf):
                if k == len(mf) - 1:
                    assert not fill
                    body += post; post = []
                body.append(m)
                if s == 2 and k == 0: body.append("s_barrier")
                for _ in range(per):
                    if fill: body.append(fill.pop(0))
        body = auto_waits(body)
        A.label(f"K1_LOOP{tag}")
        for l in body: A(l)
        A(f"s_cbranch_scc1 K1_LOOP{tag}")
        chk(body + body, f"k1 loop {tag}")

    VC1, VC2, VEPS = 4, 6, 8
    def consts():
        A(f"v_mov_b32 v{VC1}, {hexf(LOG2E)}")
        A(f"v_mov_b32 v{VC1+1}, {hexf(LOG2E)}")
        A(f"v_mov_b32 v{VC2}, {hexf(-EPS*LOG2E)}")
        A(f"v_mov_b32 v{VC2+1}, {hexf(-EPS*LOG2E)}")
        A(f"v_mov_b32 v{VEPS}, {hexf(EPS)}")
    def pack_tile(base, dst=None):
        dst = base if dst is None else dst
        return [f"v_cvt_pk_bf16_f32 v{dst+i}, v{base+2*i}, v{base+2*i+1}" for i in range(8)]
    def phi_tile(base, TMP):
        L = [f"v_pk_fma_f32 {vr(TMP+2*i,2)}, {vr(base+2*i,2)}, {vr(VC1,2)}, {vr(VC2,2)}" for i in range(8)]
        for i in range(16):
            L += [f"v_exp_f32 v{TMP+i}, v{TMP+i} clamp", f"v_max_f32 v{base+i}, v{base+i}, v{VEPS}"]
        L += [f"v_pk_add_f32 {vr(base+2*i,2)}, {vr(base+2*i,2)}, {vr(TMP+2*i,2)}" for i in range(8)]
        return L + pack_tile(base)
    def q_store(t, u, src):
        for half in range(2):
            A(f"buffer_store_dwordx4 {vr(src+4*half,4)}, v3, s[{SWS}:{SWS+3}], s{sXO+t} offen offset:{u*2048+half*1024} sc1")
    sPH, sEXW = 33, 32

    A(f"s_cmp_eq_u32 s{sTYPE}, 1")
    A("s_cbranch_scc1 K1_Y")
    for r in range(80): A(f"v_mov_b32 v{XACC+r}, 0")
    A(f"s_mov_b32 s{sSTG}, {XS}")
    A(f"s_lshl_b32 s{sT1}, s{sCBG}, 1")
    A(f"s_add_u32 s{sT1}, s{sT1}, s{sWN}")
    A(f"s_lshl_b32 s{sSG}, s{sT1}, 8")
    A(f"s_lshl_b32 s{sT1}, s{sT1}, 12")
    A(f"s_add_u32 s{sT1}, s{sT1}, {WS_QB}")
    A(f"s_lshl_b32 s{sXO+4}, s{sRB}, 2")
    A(f"s_add_u32 s{sXO+5}, s{sXO+4}, s{sROT}")
    for t in range(2):
        A(f"s_lshl_b32 s{sT0}, s{sWM}, 1")
        A(f"s_add_u32 s{sT0}, s{sT0}, s{sROT}")
        A(f"s_add_u32 s{sT0}, s{sT0}, {t}")
        A(f"s_and_b32 s{sT0}, s{sT0}, 3")
        A(f"s_add_u32 s{sT0}, s{sT0}, s{sXO+4}")
        A(f"s_mul_i32 s{sT0}, s{sT0}, {RTS}")
        A(f"s_add_u32 s{sXO+t}, s{sT0}, s{sT1}")
    A(f"s_lshr_b32 s{sT0}, s{sRB}, 1")
    A(f"s_lshl_b32 s{sT0}, s{sT0}, 12")
    A(f"s_add_u32 s{sSG}, s{sSG}, s{sT0}")
    A(f"s_add_u32 s{sSG}, s{sSG}, {WS_FL + FL_A}")
    A(f"v_lshlrev_b32 v{240}, 7, v2")
    A("s_mov_b64 s[92:93], 3")
    A(f"s_mov_b32 s{sPH}, 0")
    A(f"s_mov_b32 s{sEXW}, 0")
    A(f"v_mov_b32 v{VZ}, 0")
    A(f"v_add_u32 v30, {L_XX}, v3")
    A(f"s_mov_b32 s{sT1}, {L_XF}")
    A("s_waitcnt lgkmcnt(0)")
    A(f"s_cmp_eq_u32 s{sWM}, 1")
    A("s_cbranch_scc1 K1_MLX")
    A(f"s_cmp_eq_u32 s{sWN}, 1")
    A("s_cbranch_scc1 K1_X1")
    A(f"s_bitcmp1_b32 s{sCBG}, 2")
    A("s_cbranch_scc1 K1_MLV0")
    xloop("K0", "K", 0)
    A(f"s_mov_b32 s{sT0}, {WS_KV}")
    A(f"v_mov_b32 v{VC1}, {hexf(KSCALE)}")
    A("s_branch K1_EPX")
    xloop("V0", "V", 0)
    A(f"s_mov_b32 s{sT0}, {WS_KV + 2048}")
    A(f"v_mov_b32 v{VC1}, 1.0")
    A.label("K1_EPX")
    A(f"v_mov_b32 v{VC1+1}, v{VC1}")
    A(f"s_lshl_b32 s{sXO+5}, s{sXO+5}, 12")
    A(f"s_add_u32 s{sXO+5}, s{sXO+5}, s{sT0}")
    A(f"s_mov_b32 s{sEXW}, 1")
    lds_flag_wait(sT1, 8, 9)
    TX = 176
    for q in range(4):
        A(f"ds_read_b128 {vr(TX+4*q,4)}, v30 offset:{q*1024}")
    A("s_waitcnt lgkmcnt(0)")
    for i in range(8):
        A(f"v_pk_add_f32 {vr(XACC+2*i,2)}, {vr(XACC+2*i,2)}, {vr(TX+2*i,2)}")
    for i in range(8):
        A(f"v_pk_mul_f32 {vr(XACC+2*i,2)}, {vr(XACC+2*i,2)}, {vr(VC1,2)}")
    for ins in pack_tile(XACC): A(ins)
    for half in range(2):
        A(f"buffer_store_dwordx4 {vr(XACC+4*half,4)}, v3, s[{SWS}:{SWS+3}], s{sXO+5} offen offset:{half*1024} sc1")
    A("s_branch K1_EPB")
    A.label("K1_X1")
    A(f"s_bitcmp1_b32 s{sCBG}, 2")
    A("s_cbranch_scc1 K1_MLV1")
    xloop("K1", "K", 1)
    A("s_branch K1_EPX1")
    xloop("V1", "V", 1)
    A.label("K1_EPX1")
    A("s_nop 11")
    for q in range(4):
        A(f"ds_write_b128 v30, {vr(XACC+4*q,4)} offset:{q*1024}")
    lds_flag_set(sT1, 8, 9)
    A("s_branch K1_EPB")
    xloop("X", None)
    A(f"s_cmp_eq_u32 s{sPH}, 1")
    A("s_cbranch_scc1 K1_XDEF")
    A(f"s_cmp_eq_u32 s{sPH}, 2")
    A("s_cbranch_scc1 K1_EPA")
    A("s_nop 7")
    A.label("K1_EPB")
    stamp(2)
    A(f"s_mov_b32 s{sT0}, {hexf(EPS)}")
    for t in range(2):
        for u in range(2):
            d = 196 + 8 * (2 * t + u)
            for ins in pack_tile(ACC(t,u), d): A(ins)
            q_store(t, u, d)
    cnt_load(SDBG, "0 offen", VINI, VZ)
    for r in range(64): A(f"v_mov_b32 v{ACC(0,0)+r}, s{sT0}")
    for t in range(2): A(f"s_sub_u32 s{sXO+t}, s{sXO+t}, {WS_QB - WS_QA}")
    A(f"s_mov_b32 s{sPH}, 1")
    A(f"s_mov_b32 s{sCNT}, {OPT['defat']}")
    A("s_waitcnt lgkmcnt(0)")
    A("s_branch K1_LOOPX")
    A.label("K1_XDEF")
    A("s_waitcnt vmcnt(0)")
    cnt_check(SDBG, "0 offen", 1, VINI, VZ)
    A(f"v_mov_b32 v{VINI}, 1")
    A(f"s_mov_b32 s{sPH}, 2")
    A(f"s_mov_b32 s{sCNT}, {16 - OPT['defat']}")
    A(f"s_cmp_eq_u32 s{sEXW}, 0")
    A("s_cbranch_scc1 K1_XDE2")
    A(f"s_mov_b32 s{sT0}, {WS_FL + FL_B}")
    A(f"buffer_atomic_add v{VINI}, v240, s[{SWS}:{SWS+3}], s{sT0} offen sc1")
    A.label("K1_XDE2")
    A("s_mov_b64 exec, 3")
    A(f"buffer_atomic_add v{VINI}, v240, s[{SWS}:{SWS+3}], s{sSG} offen offset:4 sc1")
    A("s_mov_b64 exec, -1")
    A("s_branch K1_LOOPX")
    A.label("K1_EPA")
    stamp(3)
    consts()
    A("s_nop 3")
    for t in range(2):
        for u in range(2):
            for ins in phi_tile(ACC(t,u), 176): A(ins)
            q_store(t, u, ACC(t,u))
    A(f"v_mov_b32 v{VSG}, v240")
    A("s_branch K1_DONE")
    A.label("K1_Y")
    A(f"s_mov_b32 s{sSTG}, {P1_STAGE}")
    A(f"s_mov_b32 s{sT0}, {hexf(EPS)}")
    for t in range(4):
        for r in range(16):
            A(f"v_mov_b32 v{ACC(t,0)+r}, s{sT0}")
            A(f"v_mov_b32 v{ACC(t,1)+r}, 0")
    A("s_waitcnt lgkmcnt(0)")
    mainloop("Y", False, None)
    stamp(2)
    stamp(3)
    consts()
    ONES, TMP, KVD, ZD = 12, 32, 64, 80
    for i in range(4): A(f"v_mov_b32 v{ONES+i}, 0x3f803f80")
    A("s_waitcnt vmcnt(0) lgkmcnt(0)")
    TMP = 96
    def kvm(t):
        M = []
        for half in range(2):
            first = (t == 0 and half == 0)
            M.append(mfma32(KVD, ACC(t,0)+4*half, ACC(t,1)+4*half, "0" if first else None))
            M.append(mfma32(ZD, ONES, ACC(t,0)+4*half, "0" if first else None))
        return M
    pend = []
    for t in range(4):
        V = phi_tile(ACC(t,0), TMP) + pack_tile(ACC(t,1))
        for i, v in enumerate(V):
            if pend and i % 8 == 2 and i >= 10: A(pend.pop(0))
            A(v)
        assert not pend
        pend = kvm(t)
    A(f"s_lshl_b32 s{sT0}, s{sWN}, 13")
    A(f"v_add_u32 v5, s{sT0}, v3")
    for m in pend: A(m)
    A(f"s_lshl_b32 s{sT0}, s{sCBG}, 1")
    A(f"s_add_u32 s{sT0}, s{sT0}, s{sWN}")
    A(f"s_lshl_b32 s{sSG}, s{sT0}, 7")
    A(f"s_add_u32 s{sSG}, s{sSG}, {WS_FL + FL_A}")
    A(f"s_lshl_b32 s{sXO}, s{sT0}, 3")
    A(f"s_add_u32 s{sXO}, s{sXO}, s{sRB}")
    A(f"s_lshl_b32 s{sXO+1}, s{sXO}, 7")
    A(f"s_add_u32 s{sXO+1}, s{sXO+1}, {WS_ZP}")
    A(f"s_lshl_b32 s{sXO}, s{sXO}, 12")
    A(f"s_add_u32 s{sXO}, s{sXO}, {WS_KVP}")
    A("v_and_b32 v4, 31, v2")
    A("v_lshlrev_b32 v4, 2, v4")
    A(f"v_lshlrev_b32 v{VSG}, 12, v2")
    A(f"s_lshl_b32 s{sT0}, s{sWN}, 2")
    A(f"s_add_u32 s{sT0}, s{sT0}, {L_XF}")
    A(f"s_cmp_eq_u32 s{sWM}, 0")
    A("s_cbranch_scc1 K1_KVR")
    for q in range(4):
        A(f"ds_write_b128 v5, {vr(KVD+4*q,4)} offset:{q*1024}")
    A(f"ds_write_b32 v5, v{ZD} offset:4096")
    lds_flag_set(sT0, 8, 9)
    A("s_mov_b64 s[92:93], 0")
    A("s_branch K1_DONE")
    A.label("K1_KVR")
    lds_flag_wait(sT0, 8, 9)
    TMP = 32
    for q in range(4):
        A(f"ds_read_b128 {vr(TMP+4*q,4)}, v5 offset:{q*1024}")
    A(f"ds_read_b32 v{TMP+16}, v5 offset:4096")
    A("s_mov_b64 s[92:93], 0xff")
    A("s_waitcnt lgkmcnt(0)")
    for i in range(8):
        A(f"v_pk_add_f32 {vr(KVD+2*i,2)}, {vr(KVD+2*i,2)}, {vr(TMP+2*i,2)}")
    A(f"v_add_f32 v{ZD}, v{ZD}, v{TMP+16}")
    for q in range(4):
        A(f"buffer_store_dwordx4 {vr(KVD+4*q,4)}, v3, s[{SWS}:{SWS+3}], s{sXO} offen offset:{q*1024} sc1")
    A(f"buffer_store_dword v{ZD}, v4, s[{SWS}:{SWS+3}], s{sXO+1} offen sc1")
    A.label("K1_DONE")
    A("s_waitcnt lgkmcnt(0)")
    return None

sH, sRB8, sQO, sHW, sM0, sGO, sNB = 23, 24, 29, 26, 30, 31, 32
VL16 = 1
def p2_common():
    A(f"s_and_b32 s{sH}, s2, 31")
    A(f"s_lshr_b32 s{sRB8}, s2, 5")
    A(f"v_lshlrev_b32 v{VL16}, 4, v2")
    A("v_lshrrev_b32 v7, 5, v2")
    A(f"s_and_b32 s{sHW}, s{sWAVE}, 3")
    A(f"s_lshl_b32 s{sQO}, s{sRB8}, 2")
    A(f"s_add_u32 s{sQO}, s{sQO}, s{sHW}")
    A(f"s_mul_i32 s{sQO}, s{sQO}, {2*RTS}")
    A(f"s_lshl_b32 s{sT0}, s{sH}, 11")
    A(f"s_add_u32 s{sQO}, s{sQO}, s{sT0}")

AT = dict(Q=[16, 128], ONES=24, KF=28, VF=36, P=44, L=[52, 56], S=[64, 80], O=[96, 140], NEGM=[112, 156], T=60, VCUR=3, VNXT=4)
def p2_attn(sFL1):
    VCUR, VNXT = 3, 4
    Q, ONES, KF, VF, P, L, S, O, NEGM = (AT[k] for k in ("Q", "ONES", "KF", "VF", "P", "L", "S", "O", "NEGM"))
    p2_common()
    stamp(4)
    A("v_bfe_u32 v8, v2, 2, 1")
    A("v_bfe_u32 v9, v2, 4, 1")
    A("v_cmp_eq_u32 vcc, v8, v9")
    A("v_mov_b32 v8, 0x3f803f80")
    A(f"v_add_u32 v{VCUR}, {L_R}, v{VL16}")
    A(f"v_cndmask_b32 v{ONES}, 0, v8, vcc")
    if OPT["sumv"] == 3: A(f"v_mov_b32 v{ONES}, v8")
    for i in range(1, 4):
        A(f"v_mov_b32 v{ONES+i}, v{ONES}")
    for x in range(2):
        for i in range(16):
            A(f"v_mov_b32 v{O[x]+i}, 0")
        for i in range(4):
            A(f"v_mov_b32 v{L[x]+i}, 0")
    for i in range(4):
        A(f"v_mov_b32 v{VF+4+i}, 0")
        A(f"v_mov_b32 v{P+4+i}, 0")
    A(f"v_mov_b32 v{AT['T']}, 0")
    A(f"v_mov_b32 v{AT['T']+1}, 0")
    A(f"v_add_u32 v{VNXT}, 16384, v{VCUR}")
    A(f"s_lshl_b32 s{sT0}, s{sHW}, 12")
    A(f"v_add_u32 v5, s{sT0}, v{VL16}")
    A(f"s_mov_b32 s{sCNT}, 0")
    A("s_barrier")
    stamp(5)
    A(f"ds_read_b128 {vr(KF,4)}, v{VCUR}")
    A(f"ds_read_b128 {vr(Q[0],4)}, v5 offset:{L_QS}")
    A(f"ds_read_b128 {vr(Q[1],4)}, v5 offset:{L_QS+2048}")
    A(f"ds_read_b128 {vr(KF+4,4)}, v{VCUR} offset:1024")
    A(f"ds_read_b128 {vr(Q[0]+4,4)}, v5 offset:{L_QS+1024}")
    A(f"ds_read_b128 {vr(Q[1]+4,4)}, v5 offset:{L_QS+3072}")
    A(f"ds_read_b128 {vr(VF,4)}, v{VCUR} offset:2048")
    A("s_waitcnt lgkmcnt(4)")
    A(mfma32(S[0], KF, Q[0], "0"))
    A(mfma32(S[1], KF, Q[1], "0"))
    A("s_waitcnt lgkmcnt(1)")
    A(mfma32(S[0], KF+4, Q[0]+4))
    A(mfma32(S[1], KF+4, Q[1]+4))
    A("s_nop 10")
    for x in range(2):
        m = 8 + 2 * x
        A(f"v_max3_f32 v{m}, v{S[x]}, v{S[x]+1}, v{S[x]+2}")
        A(f"v_max3_f32 v{m+1}, v{S[x]+3}, v{S[x]+4}, v{S[x]+5}")
        for i in range(6, 14, 4):
            A(f"v_max3_f32 v{m}, v{m}, v{S[x]+i}, v{S[x]+i+1}")
            A(f"v_max3_f32 v{m+1}, v{m+1}, v{S[x]+i+2}, v{S[x]+i+3}")
        A(f"v_max3_f32 v{m}, v{m}, v{S[x]+14}, v{S[x]+15}")
        A(f"v_max_f32 v{m}, v{m}, v{m+1}")
        A(f"v_mov_b32 v{m+1}, v{m}")
    A("s_nop 0")
    A("v_permlane32_swap_b32 v8, v9")
    A("v_permlane32_swap_b32 v10, v11")
    A("v_max_f32 v8, v8, v9")
    A("v_max_f32 v10, v10, v11")
    for x, m in ((1, 10), (0, 8)):
        A(f"v_sub_f32 v{NEGM[x]}, 0, v{m}")
        A(f"v_sub_f32 v{NEGM[x]+1}, 0, v{m}")
        for i in range(1, 8):
            A(f"v_pk_mov_b32 {vr(NEGM[x]+2*i,2)}, {vr(NEGM[x],2)}, {vr(NEGM[x],2)}")
    for i in range(8):
        A(f"v_pk_add_f32 {vr(S[0]+2*i,2)}, {vr(S[0]+2*i,2)}, {vr(NEGM[0],2)}")
    stamp(6)
    lite(2)
    nb = [f"s_add_u32 s{sNB}, s{sCNT}, 2", f"s_and_b32 s{sNB}, s{sNB}, 3", f"s_lshl_b32 s{sNB}, s{sNB}, 14", f"s_add_u32 s{sNB}, s{sNB}, {L_R}"]
    sEND = 33
    A(f"s_mov_b32 s{sEND}, 1")
    cn = [f"s_add_u32 s{sCNT}, s{sCNT}, 1", f"s_cmp_lt_u32 s{sCNT}, s{sEND}"]
    B = attn_body(AT, False, {3: nb, 7: cn}, sumv=OPT['sumv']) + [f"v_mov_b32 v{VCUR}, v{VNXT}", f"v_add_u32 v{VNXT}, s{sNB}, v{VL16}"]
    A("s_waitcnt lgkmcnt(0)")
    A(B[0])
    A.label("K2_LOOP")
    for l in B[1:]: A(l)
    A(B[0])
    A("s_cbranch_scc1 K2_LOOP")
    chk(B + B, "k2 loop")
    A(f"s_cmp_eq_u32 s{sCNT}, 16")
    A("s_cbranch_scc1 K2_DONE")
    A(f"s_mov_b32 s{sEND}, 16")
    A("s_cmp_eq_u64 s[92:93], 0")
    A("s_cbranch_scc1 K2_LOOP")
    A(f"v_mov_b32 v{VSG+1}, 1")
    A("s_mov_b64 exec, s[92:93]")
    A("s_waitcnt vmcnt(0)")
    A(f"buffer_atomic_add v{VSG+1}, v{VSG}, s[{SWS}:{SWS+3}], s{sSG} offen sc1")
    A("s_mov_b64 exec, -1")
    A("s_branch K2_LOOP")
    A.label("K2_DONE")
    A(f"v_cvt_pk_bf16_f32 v{P+7}, v{AT['T']}, v{AT['T']+1}")
    A("s_nop 1")
    stamp(7)
    lite(3)
    A(mfma32(O[1], VF+4, P+4))
    if OPT["sumv"] == 3:
        A(f"v_mfma_f32_4x4x4_16b_bf16 {vr(L[1],4)}, {vr(ONES,2)}, {vr(P+4,2)}, {vr(L[1],4)}")
        A("s_nop 1")
        A(f"v_mfma_f32_4x4x4_16b_bf16 {vr(L[1],4)}, {vr(ONES,2)}, {vr(P+6,2)}, {vr(L[1],4)}")
        A("s_nop 7")
        for x in range(2):
            A(f"v_permlane32_swap_b32 v{L[x]}, v{L[x]+1}")
            A(f"v_add_f32 v{L[x]}, v{L[x]}, v{L[x]+1}")
    elif OPT["sumv"]:
        A(f"v_pk_add_f32 {vr(L[1]+2,2)}, {vr(L[1]+2,2)}, {vr(AT['T'],2)}")
        for x in range(2):
            A(f"v_pk_add_f32 {vr(L[x],2)}, {vr(L[x],2)}, {vr(L[x]+2,2)}")
            A(f"v_add_f32 v{L[x]}, v{L[x]}, v{L[x]+1}")
            A(f"v_mov_b32 v{L[x]+1}, v{L[x]}")
            A("s_nop 1")
            A(f"v_permlane32_swap_b32 v{L[x]}, v{L[x]+1}")
            A(f"v_add_f32 v{L[x]}, v{L[x]}, v{L[x]+1}")
            if OPT["sumv"] == 2: A(f"v_mov_b32 v{L[x]}, 1.0")
    else:
        A(mfma16(L[1], ONES, P+4))
    sO0, sO1, sFL = 68, 69, 70
    A(f"s_add_u32 s{sO0}, s{sQO}, {WS_OB}")
    A(f"s_add_u32 s{sO1}, s{sO0}, {RTS}")
    A(f"v_mov_b32 v10, {hexf(2.0**120)}")
    A(f"v_mov_b32 v11, {hexf(2.0**60)}")
    first = True
    for x in range(2):
        for i in range(0, 16, 2):
            if first:
                A(f"v_add_f32 v8, |v{O[x]}|, |v{O[x]+1}|"); A(f"v_mov_b32 v9, 0"); first = False
            else:
                A(f"v_add_f32 v8, v8, |v{O[x]+i}|")
                A(f"v_add_f32 v9, v9, |v{O[x]+i+1}|")
    A(f"v_cmp_nlt_f32 vcc, v{L[0]}, v11")
    A(f"v_cmp_nlt_f32 s[72:73], v{L[1]}, v11")
    A("v_add_f32 v8, v8, v9")
    A("v_cmp_nlt_f32 s[74:75], v8, v10")
    A("s_or_b64 vcc, vcc, s[72:73]")
    A("s_nop 1")
    A("s_or_b64 vcc, vcc, s[74:75]")
    A("s_cbranch_vccnz K2_SLOW")
    A.label("K2_FIN")
    A(f"v_rcp_f32 v8, v{L[0]}")
    A(f"v_rcp_f32 v10, v{L[1]}")
    A("v_mov_b32 v9, v8")
    A("v_mov_b32 v11, v10")
    for x in range(2):
        for i in range(8):
            A(f"v_pk_mul_f32 {vr(O[x]+2*i,2)}, {vr(O[x]+2*i,2)}, v[{8+2*x}:{9+2*x}]")
        for i in range(8):
            A(f"v_cvt_pk_bf16_f32 v{O[x]+i}, v{O[x]+2*i}, v{O[x]+2*i+1}")
        for half in range(2):
            A(f"buffer_store_dwordx4 {vr(O[x]+4*half,4)}, v{VL16}, s[{SWS}:{SWS+3}], s{sO0+x} offen offset:{half*1024} sc1")
    A(f"s_lshl_b32 s{sFL}, s{sRB8}, 11")
    A(f"s_add_u32 s{sFL}, s{sFL}, {WS_FL + FL_O + 128 * 128}")
    stamp(8)
    return sFL

def p2_slow():
    Q, ONES, KF, VF, P, L, S, O, NEGM = (AT[k] for k in ("Q", "ONES", "KF", "VF", "P", "L", "S", "O", "NEGM"))
    A.label("K2_SLOW")
    sK = 33
    for x in range(2):
        A(f"v_mov_b32 v8, 0xff800000")
        A(f"s_mov_b32 s{sK}, {WS_KV}")
        A(f"s_mov_b32 s{sCNT}, 0")
        A("s_waitcnt lgkmcnt(0)")
        A.label(f"K2_SLOW1{x}")
        A(f"buffer_load_dwordx4 {vr(KF,4)}, v{VL16}, s[{SWS}:{SWS+3}], s{sK} offen sc1")
        A(f"buffer_load_dwordx4 {vr(KF+4,4)}, v{VL16}, s[{SWS}:{SWS+3}], s{sK} offen offset:1024 sc1")
        A("s_waitcnt vmcnt(0)")
        A(mfma32(S[0], KF, Q[x], "0"))
        A(mfma32(S[0], KF+4, Q[x]+4))
        A("s_nop 15")
        for i in range(0, 16, 2):
            A(f"v_max3_f32 v8, v8, v{S[0]+i}, v{S[0]+i+1}")
        A(f"s_add_u32 s{sK}, s{sK}, 4096")
        A(f"s_add_u32 s{sCNT}, s{sCNT}, 1")
        A(f"s_cmp_lt_u32 s{sCNT}, 64")
        A(f"s_cbranch_scc1 K2_SLOW1{x}")
        A("v_mov_b32 v9, v8")
        A("s_nop 1")
        A("v_permlane32_swap_b32 v8, v9")
        A("v_max_f32 v8, v8, v9")
        for i in range(16):
            A(f"v_sub_f32 v{NEGM[0]+i}, 0, v8")
            A(f"v_mov_b32 v{O[x]+i}, 0")
        for i in range(4):
            A(f"v_mov_b32 v{L[x]+i}, 0")
        A(f"s_mov_b32 s{sK}, {WS_KV}")
        A(f"s_mov_b32 s{sCNT}, 0")
        A.label(f"K2_SLOW2{x}")
        for i in range(2):
            A(f"buffer_load_dwordx4 {vr(KF+4*i,4)}, v{VL16}, s[{SWS}:{SWS+3}], s{sK} offen offset:{1024*i} sc1")
            A(f"buffer_load_dwordx4 {vr(VF+4*i,4)}, v{VL16}, s[{SWS}:{SWS+3}], s{sK} offen offset:{2048+1024*i} sc1")
        A("s_waitcnt vmcnt(0)")
        A(mfma32(S[0], KF, Q[x], NEGM[0]))
        A(mfma32(S[0], KF+4, Q[x]+4))
        A("s_nop 15")
        for i in range(16):
            A(f"v_exp_f32 v{S[0]+i}, v{S[0]+i}")
        A("s_nop 0")
        for i in range(8):
            A(f"v_cvt_pk_bf16_f32 v{P+i}, v{S[0]+2*i}, v{S[0]+2*i+1}")
        A("s_nop 1")
        A(mfma32(O[x], VF, P))
        A(mfma16(L[x], ONES, P))
        A(mfma32(O[x], VF+4, P+4))
        A(mfma16(L[x], ONES, P+4))
        A("s_nop 15")
        A(f"s_add_u32 s{sK}, s{sK}, 4096")
        A(f"s_add_u32 s{sCNT}, s{sCNT}, 1")
        A(f"s_cmp_lt_u32 s{sCNT}, 64")
        A(f"s_cbranch_scc1 K2_SLOW2{x}")
    A("s_branch K2_FIN")

sBR, sRB16, sCB = 88, 89, 90
def p3_decode():
    A(f"s_lshr_b32 s{sBR}, s{sXCD}, 2")
    A(f"s_and_b32 s{sRB16}, s{sXCD}, 1")
    A(f"s_lshl_b32 s{sRB16}, s{sRB16}, 3")
    A(f"s_and_b32 s{sT0}, s{sIDX}, 7")
    A(f"s_add_u32 s{sRB16}, s{sRB16}, s{sT0}")
    A(f"s_bfe_u32 s{sCB}, s{sXCD}, 0x10001")
    A(f"s_lshl_b32 s{sCB}, s{sCB}, 2")
    A(f"s_lshr_b32 s{sT0}, s{sIDX}, 3")
    A(f"s_add_u32 s{sCB}, s{sCB}, s{sT0}")

def p23_helper():
    KVP, ZP, PQ, KVA, ZA, NUM, DEN, VPF, VW, VFL, VT = 16, 48, 52, 68, 76, 84, 100, 116, 117, 118, 120
    sA0, sA1, sFL, sAO = 68, 69, 70, 71
    vm = VM()
    A(f"s_setprio {OPT['hprio']}")
    p2_common()
    p3_decode()
    A(f"s_lshl_b32 s{sM0}, s{sHW}, 12")
    A(f"s_add_u32 s{sGO}, s{sM0}, {WS_KV}")
    A(f"s_add_u32 s{sA0}, s{sQO}, {WS_QB}")
    A(f"s_add_u32 s{sA1}, s{sA0}, {RTS - 2048}")
    A("s_waitcnt vmcnt(0)")
    cnt_check(SWS, "s92 offen", 128, 120, 119)
    cnt_check(SWS, "s93 offen offset:4", 4, 121, 119)
    stamp(2)
    nxt = [0]
    def dma_chunk():
        c = nxt[0]
        if c >= 16: return
        A(f"s_add_u32 m0, s{sM0}, {L_R + (c % 4) * 16384}")
        A("s_nop 0")
        for n in range(4):
            A(f"buffer_load_dwordx4 v{VL16}, s[{SWS}:{SWS+3}], s{sGO} offen offset:{n*1024} {OPT['ld']} lds")
        A(f"s_add_u32 s{sGO}, s{sGO}, 16384")
        vm.add(("c", c), 4)
        nxt[0] += 1
    A(f"s_add_u32 m0, s{sM0}, {L_QS}")
    A("s_nop 0")
    for n in range(4):
        A(f"buffer_load_dwordx4 v{VL16}, s[{SWS}:{SWS+3}], s{sA0 + (n >> 1)} offen offset:{n*1024} sc1 lds")
    vm.add("q", 4)
    dma_chunk()
    A(f"s_cmp_eq_u32 s{sBR}, 1")
    A(f"s_cselect_b64 s[62:63], s[{pBWO}:{pBWO+1}], s[{pAWO}:{pAWO+1}]")
    srd(SWO, 62, 2 << 20)
    A("v_lshrrev_b32 v4, 4, v2")
    A("v_and_b32 v5, 15, v2")
    A("v_lshlrev_b32 v8, 2, v4")
    A("v_xor_b32 v5, v5, v8")
    A("v_lshlrev_b32 v4, 11, v4")
    A(f"v_lshl_add_u32 v{VW}, v5, 4, v4")
    A(f"s_lshl_b32 s{sT0}, s{sCB}, 8")
    A(f"v_add_u32 v{VW}, s{sT0}, v{VW}")
    A(f"s_lshl_b32 s{sWO}, s{sHW}, 13")
    for n in range(1, 4):
        A(f"s_add_u32 s{sWO+n}, s{sWO}, {n*16*2048}")
    sWD = 80
    A(f"s_lshl_b32 s{sWD}, s{sHW}, 10")
    nw = [0]
    def dma_w():
        s_ = nw[0]
        if s_ >= 16: return
        for n in range(4):
            A(f"s_add_u32 m0, s{sWD}, {L_WR + (s_ % 5) * 16384 + n * 4096}")
            A("s_nop 0")
            A(f"buffer_load_dwordx4 v{VW}, s[{SWO}:{SWO+3}], s{sWO+n} offen lds")
        A(f"v_add_u32 v{VW}, {64*2048}, v{VW}")
        vm.add(("w", s_), 4)
        nw[0] += 1
    no = [0]
    def dma_o():
        s_ = no[0]
        if s_ >= 16: return
        A(f"s_add_u32 m0, s{sM0}, {L_R + (s_ % 4) * 16384}")
        A("s_nop 0")
        for n in range(4):
            A(f"buffer_load_dwordx4 v{VL16}, s[{SWS}:{SWS+3}], s{sAO} offen offset:{n*1024} {OPT['ld']} lds")
        A(f"s_add_u32 s{sAO}, s{sAO}, 4096")
        vm.add(("o", s_), 4)
        no[0] += 1
    def side_loads():
        A(f"s_lshl_b32 s{sT0}, s2, 7")
        A(f"s_add_u32 s{sT0}, s{sT0}, {WS_FL + FL_A}")
        poll_shared(f"s{sT0}", 12, L_GOA, VT)
        A(f"s_lshl_b32 s{sT0}, s{sH}, 15")
        A(f"s_lshl_b32 s{sT1}, s{sHW}, 10")
        A(f"s_add_u32 s{sT0}, s{sT0}, s{sT1}")
        A(f"s_add_u32 s{sT0}, s{sT0}, {WS_KVP}")
        for p in range(8):
            A(f"buffer_load_dwordx4 {vr(KVP+4*p,4)}, v{VL16}, s[{SWS}:{SWS+3}], s{sT0} offen sc1")
            if p < 7: A(f"s_add_u32 s{sT0}, s{sT0}, 4096")
        A("v_and_b32 v6, 31, v2")
        A("v_lshlrev_b32 v6, 2, v6")
        A("v_lshl_add_u32 v6, v7, 9, v6")
        A(f"s_lshl_b32 s{sT0}, s{sH}, 10")
        A(f"s_add_u32 s{sT0}, s{sT0}, {WS_ZP}")
        for i in range(4):
            A(f"buffer_load_dword v{ZP+i}, v6, s[{SWS}:{SWS+3}], s{sT0} offen offset:{i*128} sc1")
        A(f"s_add_u32 s{sA0}, s{sQO}, {WS_QA}")
        A(f"s_add_u32 s{sA1}, s{sA0}, {RTS}")
        for r in range(2):
            for half in range(2):
                A(f"buffer_load_dwordx4 {vr(PQ+8*r+4*half,4)}, v{VL16}, s[{SWS}:{SWS+3}], s{sA0+r} offen offset:{half*1024} sc1")
        vm.add("side", 16)
    def step_a():
        vm.wait(A, "side")
        n = 8
        while n > 1:
            n //= 2
            for i in range(n):
                for hf in range(2):
                    A(f"v_pk_add_f32 {vr(KVP+4*i+2*hf,2)}, {vr(KVP+4*i+2*hf,2)}, {vr(KVP+4*(i+n)+2*hf,2)}")
        A(f"s_lshr_b32 s{sT0}, s{sHW}, 1")
        A(f"s_lshl_b32 s{sT0}, s{sT0}, 10")
        A(f"s_and_b32 s{sT1}, s{sHW}, 1")
        A(f"s_lshl_b32 s{sT1}, s{sT1}, 3")
        A(f"s_add_u32 s{sT0}, s{sT0}, s{sT1}")
        A(f"s_add_u32 s{sT0}, s{sT0}, {L_KVX}")
        A(f"v_add_u32 v8, s{sT0}, v{VL16}")
        A(f"v_cvt_pk_bf16_f32 v{KVP}, v{KVP}, v{KVP+1}")
        A(f"v_cvt_pk_bf16_f32 v{KVP+1}, v{KVP+2}, v{KVP+3}")
        A(f"ds_write_b64 v8, {vr(KVP,2)}")
        A(f"s_cmp_eq_u32 s{sHW}, 0")
        A("s_cbranch_scc0 K2_NOZ")
        A(f"v_pk_add_f32 {vr(ZP,2)}, {vr(ZP,2)}, {vr(ZP+2,2)}")
        A("v_and_b32 v9, 31, v2")
        A(f"v_add_f32 v{ZP}, v{ZP}, v{ZP+1}")
        A("v_lshlrev_b32 v9, 1, v9")
        A(f"v_mov_b32 v{ZP+1}, v{ZP}")
        A(f"v_add_u32 v9, {L_ZX}, v9")
        A("s_nop 0")
        A(f"v_permlane32_swap_b32 v{ZP}, v{ZP+1}")
        A(f"v_add_f32 v{ZP}, v{ZP}, v{ZP+1}")
        A(f"v_cvt_pk_bf16_f32 v{ZP}, v{ZP}, v{ZP}")
        A(f"ds_write_b16 v9, v{ZP}")
        A.label("K2_NOZ")
        A("s_waitcnt lgkmcnt(0)")
    def step_b():
        A("v_lshlrev_b32 v10, 3, v7")
        A(f"v_add_u32 v10, {L_ZX}, v10")
        A(f"v_add_u32 v11, {L_KVX}, v{VL16}")
        A(f"ds_read2_b64 {vr(ZA,4)}, v10 offset0:0 offset1:2")
        A(f"ds_read2_b64 {vr(ZA+4,4)}, v10 offset0:4 offset1:6")
        A(f"ds_read_b128 {vr(KVA,4)}, v11")
        A(f"ds_read_b128 {vr(KVA+4,4)}, v11 offset:1024")
        A(f"s_add_u32 s{sA0}, s{sQO}, {WS_OA}")
        A(f"s_add_u32 s{sA1}, s{sA0}, {RTS}")
        A("s_waitcnt lgkmcnt(0)")
        NUMS, DENS = [NUM, 16], [DEN, 32]
        for r in range(2):
            A(mfma32(DENS[r], ZA, PQ+8*r, "0"))
            A(mfma32(DENS[r], ZA+4, PQ+8*r+4))
            A(mfma32(NUMS[r], KVA, PQ+8*r, "0"))
            A(mfma32(NUMS[r], KVA+4, PQ+8*r+4))
        A("s_nop 7")
        for r in range(2):
            N_ = NUMS[r]
            A(f"v_add_f32 v8, {hexf(EPS)}, v{DENS[r]}")
            A("v_rcp_f32 v8, v8")
            A("s_nop 0")
            A("v_mov_b32 v9, v8")
            for i in range(8):
                A(f"v_pk_mul_f32 {vr(N_+2*i,2)}, {vr(N_+2*i,2)}, v[8:9]")
            for i in range(8):
                A(f"v_cvt_pk_bf16_f32 v{N_+i}, v{N_+2*i}, v{N_+2*i+1}")
            for half in range(2):
                A(f"buffer_store_dwordx4 {vr(N_+4*half,4)}, v{VL16}, s[{SWS}:{SWS+3}], s{sA0+r} offen offset:{half*1024} sc1")
        vm.add("st", 4)
    def sig_oa():
        A(f"s_lshl_b32 s{sFL}, s{sRB8}, 11")
        A(f"s_add_u32 s{sFL}, s{sFL}, {WS_FL + FL_O}")
        A("v_lshlrev_b32 v10, 7, v2")
        signal(L_CNTA, sFL, 10, "0xffff", 8, 9)
        vm.clear()
        vm.add("flagst")
    def pf_wo():
        A("s_cmp_ge_u32 s2, 128")
        A(f"s_cselect_b64 s[62:63], s[{pBWO}:{pBWO+1}], s[{pAWO}:{pAWO+1}]")
        srd(SPF, 62, 2 << 20)
        A("v_lshlrev_b32 v8, 7, v2")
        A(f"s_and_b32 s{sT0}, s2, 127")
        A(f"s_lshl_b32 s{sT0}, s{sT0}, 1")
        A(f"s_add_u32 s{sT0}, s{sT0}, s{sHW}")
        A(f"s_lshl_b32 s{sT0}, s{sT0}, 13")
        A(f"s_cmp_lt_u32 s{sHW}, {2 if OPT['pf2'] else 0}")
        A(f"s_cselect_b32 s{sT0}, s{sT0}, {OOB}")
        A(f"buffer_load_dword v{VPF}, v8, s[{SPF}:{SPF+3}], s{sT0} offen")
        vm.add("pf")
    vm.wait(A, "q", ("c", 0))
    stamp(3)
    A("s_barrier")
    for c in range(1, 17):
        if c == 8: sig_oa()
        if c == 4 and not OPT["nosp"] & 1: side_loads()
        lim = min(15, c + 1) if c >= 3 else 3
        k = 0
        while nxt[0] <= lim and k < 2:
            dma_chunk(); k += 1
        if c == 5 and not OPT["nosp"] & 2: pf_wo()
        if c == 6 and not OPT["nosp"] & 1: step_a()
        if c == 7 and not OPT["nosp"] & 1: step_b()
        if 10 <= c < 10 + OPT["wpre"]: dma_w()
        vm.wait(A, ("c", c))
        A("s_barrier")
    stamp(4)
    A(f"s_lshl_b32 s{sAO}, s{sRB16}, 2")
    A(f"s_add_u32 s{sAO}, s{sAO}, s{sHW}")
    A(f"s_mul_i32 s{sAO}, s{sAO}, {RTS}")
    A(f"s_mul_i32 s{sT0}, s{sBR}, {REG}")
    A(f"s_add_u32 s{sAO}, s{sAO}, s{sT0}")
    A(f"s_add_u32 s{sAO}, s{sAO}, {WS_OA}")
    A(f"s_lshl_b32 s{sT0}, s{sBR}, 4")
    A(f"s_add_u32 s{sT0}, s{sT0}, s{sRB16}")
    A(f"s_lshl_b32 s{sT0}, s{sT0}, 3")
    A(f"s_add_u32 s{sT0}, s{sT0}, s{sCB}")
    A(f"s_lshl_b32 s{sT0}, s{sT0}, 7")
    A(f"s_add_u32 s{sT0}, s{sT0}, {WS_FL + FL_O}")
    while nw[0] < 5: dma_w()
    poll_shared(f"s{sT0}", 32, L_GOO, VT)
    stamp(5)
    dma_o(); dma_o(); dma_o()
    for i in range(16):
        vm.wait(A, ("o", i), ("w", i))
        if i == 0: stamp(6)
        A("s_barrier")
        if no[0] <= i + 3: dma_o()
        if i >= 1 and nw[0] <= i + 4: dma_w()
    stamp(7)
    stamp_out()
    A("s_endpgm")

def p3_compute(sFL2):
    AA, WA = 16, 17
    FB = [32, 48]
    FA = lambda b, t: FB[b] + 4 * t
    FW = lambda b, u: FB[b] + 8 + 4 * u
    ACC = lambda t, u: 176 + 16 * (2 * t + u)
    sBO, sBW, sDO, sDW, sOUT = 30, 31, 32, 33, 71
    p3_decode()
    srd(SOUT, pOUT, 8 << 20)
    A(f"s_lshl_b32 s{sT0}, s{sWM}, 13")
    A(f"s_add_u32 s{sT0}, s{sT0}, {L_R}")
    A(f"v_lshl_add_u32 v{AA}, v2, 4, s{sT0}")
    A("v_lshrrev_b32 v4, 5, v2")
    A("v_bfe_u32 v5, v2, 2, 2")
    A("v_lshl_add_u32 v6, v4, 2, v5")
    A("v_bfe_u32 v7, v2, 4, 1")
    A("v_bfe_u32 v8, v2, 1, 1")
    A("v_lshl_add_u32 v7, v7, 1, v8")
    A("v_and_b32 v8, 1, v2")
    A("v_lshlrev_b32 v8, 3, v8")
    A("v_lshl_add_u32 v8, v6, 8, v8")
    for u in range(2):
        A(f"s_lshl_b32 s{sT0}, s{sWN}, 1")
        A(f"s_add_u32 s{sT0}, s{sT0}, {u}")
        A(f"v_xor_b32 v9, s{sT0}, v5")
        A("v_lshl_add_u32 v9, v9, 2, v7")
        A(f"v_lshl_add_u32 v{WA+u}, v9, 4, v8")
    for r in range(64):
        A(f"v_mov_b32 v{176+r}, 0")
    A(f"s_mov_b32 s{sSTG}, 16384")
    A(f"s_mov_b32 s{sBO}, 0")
    A(f"s_mov_b32 s{sBW}, 0")
    A(f"s_mov_b32 s{sCNT}, 16")
    RS = 144
    VEW, VER, VEG = 24, 25, 26
    A(f"s_mul_i32 s{sT0}, s{sWAVE}, {64*RS}")
    A("v_and_b32 v3, 31, v2")
    A(f"v_mul_u32_u24 v3, {RS}, v3")
    A("v_lshl_add_u32 v3, v4, 3, v3")
    A(f"v_add_u32 v{VEW}, s{sT0}, v3")
    A("v_lshrrev_b32 v3, 3, v2")
    A("v_and_b32 v5, 7, v2")
    A(f"v_mul_u32_u24 v6, {RS}, v3")
    A("v_lshl_add_u32 v6, v5, 4, v6")
    A(f"v_add_u32 v{VER}, s{sT0}, v6")
    A("v_lshlrev_b32 v3, 12, v3")
    A(f"v_lshl_add_u32 v{VEG}, v5, 4, v3")
    A(f"s_lshl_b32 s{sT0}, s{sRB16}, 1")
    A(f"s_add_u32 s{sT0}, s{sT0}, s{sWM}")
    A(f"s_lshl_b32 s{sT0}, s{sT0}, 18")
    A(f"s_lshl_b32 s{sT1}, s{sBR}, 3")
    A(f"s_add_u32 s{sT1}, s{sT1}, s{sCB}")
    A(f"s_lshl_b32 s{sT1}, s{sT1}, 1")
    A(f"s_add_u32 s{sT1}, s{sT1}, s{sWN}")
    A(f"s_lshl_b32 s{sT1}, s{sT1}, 7")
    A(f"s_add_u32 s{sOUT}, s{sT0}, s{sT1}")
    A("v_lshlrev_b32 v10, 7, v2")
    signal(L_CNTB, sFL2, 10, "0xffff", 8, 9)
    stamp(9)
    def reads(b, ks):
        R = [f"ds_read_b128 {vr(FA(b,0),4)}, v{AA} offset:{ks*1024}"]
        for u in range(2):
            R.append(f"ds_read_b64_tr_b16 {vr(FW(b,u),2)}, v{WA+u} offset:{L_WR+ks*4096}")
            R.append(f"ds_read_b64_tr_b16 {vr(FW(b,u)+2,2)}, v{WA+u} offset:{L_WR+ks*4096+2048}")
        R.append(f"ds_read_b128 {vr(FA(b,1),4)}, v{AA} offset:{4096+ks*1024}")
        return R
    A("s_waitcnt lgkmcnt(0)")
    A("s_barrier")
    stamp(10)
    lite(4)
    for r in reads(0, 0): A(r)
    A.label("K3_LOOP")
    start = len(A.lines)
    for s in range(4):
        b = s & 1
        mf = [mfma32(ACC(t,u), FW(b,u), FA(b,t)) for t in range(2) for u in range(2)]
        fill = reads(b ^ 1, (s + 1) & 3)
        post = []
        if s == 0:
            post = [f"s_add_u32 s{sBO}, s{sBO}, 1", f"s_cmp_eq_u32 s{sBO}, 4",
                    f"s_cselect_b32 s{sDO}, {-3*16384 & 0xffffffff}, s{sSTG}", f"s_cselect_b32 s{sBO}, 0, s{sBO}"]
        if s == 1:
            post = [f"s_add_u32 s{sBW}, s{sBW}, 1", f"s_cmp_eq_u32 s{sBW}, 5",
                    f"s_cselect_b32 s{sDW}, {-4*16384 & 0xffffffff}, s{sSTG}", f"s_cselect_b32 s{sBW}, 0, s{sBW}"]
        if s == 2:
            post = [f"v_add_u32 v{AA}, s{sDO}, v{AA}", f"v_add_u32 v{WA}, s{sDW}, v{WA}", f"v_add_u32 v{WA+1}, s{sDW}, v{WA+1}"]
        if s == 3:
            post = [f"s_sub_u32 s{sCNT}, s{sCNT}, 1", f"s_cmp_lg_u32 s{sCNT}, 0"]
        A("s_waitcnt lgkmcnt(0)")
        for k, m in enumerate(mf):
            A(m)
            if s == 3 and k == 0: A("s_barrier")
            n = 3
            while n and fill:
                A(fill.pop(0)); n -= 1
            if n == 3:
                while post: A(post.pop(0))
    A("s_cbranch_scc1 K3_LOOP")
    body = A.lines[start:]
    chk(body + body, "k3 loop")
    stamp(11)
    A("s_waitcnt lgkmcnt(0)")
    A("s_nop 7")
    for t in range(2):
        for u in range(2):
            b = ACC(t,u)
            for g in range(4):
                A(f"v_cvt_pk_bf16_f32 v{b+4*g}, v{b+4*g}, v{b+4*g+1}")
                A(f"v_cvt_pk_bf16_f32 v{b+4*g+1}, v{b+4*g+2}, v{b+4*g+3}")
                A(f"ds_write_b64 v{VEW}, {vr(b+4*g,2)} offset:{t*32*RS + u*64 + g*16}")
    A("s_waitcnt lgkmcnt(0)")
    for i in range(8):
        A(f"ds_read_b128 {vr(32+4*i,4)}, v{VER} offset:{i*8*RS}")
    for i in range(8):
        A(f"s_waitcnt lgkmcnt({7-i})")
        A(f"buffer_store_dwordx4 {vr(32+4*i,4)}, v{VEG}, s[{SOUT}:{SOUT+3}], s{sOUT} offen sc1")
        if i < 7: A(f"s_add_u32 s{sOUT}, s{sOUT}, {8*4096}")
    stamp(12)
    if DIAG or OPT["lite"]: A("s_waitcnt vmcnt(0)")
    lite(5)
    lite_out()
    stamp(13)
    stamp_out()
    A.label("K_END")
    A("s_endpgm")

def main():
    pos = [a for a in sys.argv[1:] if not a.startswith("--") and "=" not in a]
    out = pos[0] if pos else f"cdna_kernels/{KNAME}.s"
    entry()
    p1_loader()
    p23_helper()
    f1 = p1_compute()
    f2 = p2_attn(f1)
    p3_compute(f2)
    p2_slow()
    chk(A.lines, "all")
    name = f"{KNAME}_kernel"
    ref = open(f"cdna_kernels/{KNAME}.s.ref").read().split("\n")
    head = [l for l in ref if l.startswith(";") and "@launch" not in l and "Override" not in l and "grid=ceil" not in l]
    if OPT["aslist"]: head.append(f"; @launch kernel={name} grid=(256,1,1) block=(512,1,1) lds={LDS_TOTAL}")
    else: head.append(f"; @launch grid=(256,1,1) block=(512,1,1) lds={LDS_TOTAL}")
    nv = 256 if DIAG else 248
    txt = "\n".join(head) + f'''
.amdgcn_target "amdgcn-amd-amdhsa--gfx950"
.text
.globl {name}
.p2align 8
.type {name},@function
{name}:
''' + A.text() + f'''
.section .rodata,"a"
.p2align 6
.amdhsa_kernel {name}
  .amdhsa_next_free_vgpr {nv}
  .amdhsa_next_free_sgpr 102
  .amdhsa_accum_offset {nv}
  .amdhsa_group_segment_fixed_size 0
  .amdhsa_kernarg_size 88
  .amdhsa_user_sgpr_count 2
  .amdhsa_user_sgpr_kernarg_segment_ptr 1
  .amdhsa_system_sgpr_workgroup_id_x 1
.end_amdhsa_kernel
'''
    open(out, "w").write(txt)
    seen = set()
    for p in PROBS:
        if p not in seen:
            print("HAZARD", p); seen.add(p)
    print("written", out, len(txt))
main()
```

```python
import sys, math, os
from asmlib import *
from attn_body import attn_body, auto_waits

KNAME = "concat_heads__linear_attn_block__grouped_kv_mqa__prompt"
OPT = dict(pf1=1, pfs="x012345", pf0=2, defat=3, pf2=1, hprio=2, aslist=0, wpre=5, slp=1, ld="", pfc=1, sumv=0, nosp=0, lite=0, la=0, lb=5, tlb=1, lw0=5, lw1=130, lw2=254)
for a in sys.argv[1:]:
    if "=" in a:
        k, v = a.lstrip("-").split("=", 1)
        OPT[k] = int(v) if v.lstrip("-").isdigit() else v.replace("+", " ")
DIAG = "--diag" in sys.argv

RTS = 65536 + 256
REG = 64 * RTS
WS_QA = 0
WS_QB = REG
WS_OA = 2 * REG
WS_OB = 3 * REG
WS_KV = 4 * REG
WS_KVP = WS_KV + (256 << 10)
WS_ZP = WS_KVP + (1 << 20)
WS_FL = WS_ZP + (32 << 10)
FL_A, FL_O, FL_B = 0, 256 * 128, 512 * 128
WS_USED = WS_FL + (576 * 128)
WS_DIAG = 24 << 20
if DIAG: WS_USED = WS_DIAG + (2 << 20)

LOG2E = 1.4426950408889634
KSCALE = (32 ** -0.5) * LOG2E
EPS = 1e-6
OOB = 0x40000000

P1_STAGE, P1_WOFF, P1_EOFF = 53248, 32768, 49152
MISC = 3 * P1_STAGE
L_CNT1, L_CNTA, L_CNTB, L_XF = MISC, MISC + 4, MISC + 8, MISC + 16
L_GOB, L_GOA, L_GOO = MISC + 32, MISC + 36, MISC + 40
L_ZX = MISC + 64
L_KVX = MISC + 2048
L_WR = 0
L_QS = 16384
L_R = 81920
LDS_TOTAL = 163840

PROBS = []
def chk(lines, name):
    PROBS.extend(check_hazards(lines, name))
def mfma32(d, a, b, c=None):
    cs = vr(d, 16) if c is None else (vr(c, 16) if isinstance(c, int) else c)
    return f"v_mfma_f32_32x32x16_bf16 {vr(d,16)}, {vr(a,4)}, {vr(b,4)}, {cs}"
def mfma16(d, a, b, c=None):
    cs = vr(d, 4) if c is None else (vr(c, 4) if isinstance(c, int) else c)
    return f"v_mfma_f32_16x16x32_bf16 {vr(d,4)}, {vr(a,4)}, {vr(b,4)}, {cs}"

class VM:
    def __init__(self): self.q = []
    def add(self, tag, n=1): self.q += [tag] * n
    def has(self, tag): return tag in self.q
    def wait(self, A, *tags):
        idxs = [i for i, t in enumerate(self.q) if t in tags]
        if not idxs: return
        idx = max(idxs)
        n = len(self.q) - 1 - idx
        assert n <= 63
        A(f"s_waitcnt vmcnt({n})")
        self.q = self.q[idx + 1:]
    def clear(self): self.q = []

A = Asm()
pAX, pAW, pAWO, pBX, pBWQ, pBWK, pBWV, pBWO, pOUT, pDBG, pWS = 40, 42, 44, 46, 48, 50, 52, 54, 56, 58, 60
SX, SW, SE, SWS, SPF, SDBG = 4, 8, 12, 16, 64, 84
SWO, SOUT = 4, 8
sXCD, sIDX, sWAVE, sRB, sCBG, sT0, sW4, sT1 = 20, 21, 22, 23, 24, 25, 26, 27
sTYPE, sCOL, sS1, sS2, sWSTR, sROT, sBASE, sCNT, sDELTA, sWADV = 28, 29, 30, 31, 32, 33, 34, 35, 36, 37
sWM, sWN = 38, 39
sXO, sWO, sSTG = 68, 76, 80
sPOLL = 96

def srd(dst, lo, nbytes):
    A(f"s_mov_b32 s{dst}, s{lo}")
    A(f"s_and_b32 s{dst+1}, s{lo+1}, 0xffff")
    if isinstance(nbytes, int): A(f"s_mov_b32 s{dst+2}, {nbytes}")
    else: A(nbytes)
    A(f"s_mov_b32 s{dst+3}, 0x20000")

def stamp(i):
    if not DIAG: return
    A("s_memtime s[98:99]")
    A("s_memrealtime s[100:101]")
    A("s_waitcnt lgkmcnt(0)")
    A(f"v_writelane_b32 v255, s98, {i}")
    A(f"v_writelane_b32 v255, s100, {32+i}")
def stamp_out():
    if not DIAG: return
    A("s_getreg_b32 s98, hwreg(HW_REG_XCC_ID)")
    A("s_and_b32 s98, s98, 15")
    A("v_writelane_b32 v255, s98, 30")
    A(f"v_writelane_b32 v255, s{sTYPE}, 31")
    A("v_and_b32 v254, 63, v0")
    A("v_lshlrev_b32 v254, 2, v254")
    A("s_lshl_b32 s98, s2, 3")
    A(f"s_add_u32 s98, s98, s{sWAVE}")
    A("s_lshl_b32 s98, s98, 8")
    A(f"s_add_u32 s98, s98, {WS_DIAG}")
    A(f"buffer_store_dword v255, v254, s[{SWS}:{SWS+3}], s98 offen")

def lite(i, inv=False):
    if not OPT["lite"]: return
    A("s_memrealtime s[100:101]")
    A("s_waitcnt lgkmcnt(0)")
    if i == 0:
        A("s_mov_b32 s99, s100"); A("v_mov_b32 v245, 0"); return
    A("s_sub_u32 s100, s100, s99")
    A(f"v_writelane_b32 v245, s100, {i-1}")
def lite_out():
    if not OPT["lite"]: return
    D = U("LO")
    A(f"s_cmp_eq_u32 s{sWAVE}, 0")
    A(f"s_cbranch_scc0 {D}")
    if OPT["lite"] == 2:
        la, lb = OPT["la"], OPT["lb"]
        A(f"v_readlane_b32 s98, v245, {lb-1}")
        if la:
            A(f"v_readlane_b32 s97, v245, {la-1}")
            A("s_nop 3")
            A("s_sub_u32 s98, s98, s97")
        A("v_readlane_b32 s97, v245, 4")
        A("s_nop 3")
        A("s_lshl_b32 s98, s98, 1")
        A("s_add_u32 s98, s98, s97")
        A("s_min_u32 s98, s98, 100000")
        L_ = U("SP")
        A.label(L_)
        A("s_memrealtime s[100:101]")
        A("s_waitcnt lgkmcnt(0)")
        A("s_sub_u32 s100, s100, s99")
        A("s_cmp_lt_u32 s100, s98")
        A(f"s_cbranch_scc1 {L_}")
        A.label(D)
        return
    A("s_mov_b32 s98, 0x40000000")
    for k, w in enumerate((OPT["lw0"], OPT["lw1"], OPT["lw2"])):
        A(f"s_cmp_eq_u32 s2, {w}")
        A(f"s_cselect_b32 s98, {4 + 20*k}, s98")
    A("v_lshlrev_b32 v246, 2, v2")
    A("s_mov_b64 exec, 31")
    A(f"buffer_store_dword v245, v246, s[{SDBG}:{SDBG+3}], s98 offen")
    A.label(D)
uid = [0]
def U(p):
    uid[0] += 1
    return f"{p}_{uid[0]}"

def poll(srdreg, soff, need, vtmp):
    L, D = U("POLL"), U("POLLD")
    A(f"s_mov_b32 s{sPOLL}, 300000")
    A(f"v_mov_b32 v{vtmp+1}, 0")
    A.label(L)
    A(f"buffer_load_dword v{vtmp}, v{vtmp+1}, s[{srdreg}:{srdreg+3}], {soff} offen sc1")
    A("s_waitcnt vmcnt(0)")
    A(f"v_cmp_gt_u32 vcc, {need}, v{vtmp}")
    A(f"s_sub_u32 s{sPOLL}, s{sPOLL}, 1")
    A(f"s_cbranch_vccz {D}")
    if OPT["slp"]: A(f"s_sleep {OPT['slp']}")
    A(f"s_cmp_lg_u32 s{sPOLL}, 0")
    A(f"s_cbranch_scc1 {L}")
    A.label(D)

def poll_shared(soff, need, lgo, vtmp):
    O_, D = U("PSO"), U("PSD")
    A(f"s_mov_b32 s{sPOLL+1}, {lgo}")
    A(f"s_cmp_eq_u32 s{sW4}, 0")
    A(f"s_cbranch_scc0 {O_}")
    poll(SWS, soff, need, vtmp)
    lds_flag_set(sPOLL + 1, vtmp, vtmp + 1)
    A(f"s_branch {D}")
    A.label(O_)
    lds_flag_wait(sPOLL + 1, vtmp, vtmp + 1, sleep=1)
    A.label(D)

def signal(lcnt, sfl, voff, smask, va, vb):
    D = U("SIG")
    A(f"v_mov_b32 v{va}, {lcnt}")
    A(f"v_mov_b32 v{vb}, 1")
    A("s_mov_b64 exec, 1")
    A("s_waitcnt vmcnt(0)")
    A(f"ds_add_rtn_u32 v{va}, v{va}, v{vb}")
    A("s_waitcnt lgkmcnt(0)")
    A(f"v_readfirstlane_b32 s{sPOLL}, v{va}")
    A(f"s_mov_b64 exec, {smask}")
    A(f"s_cmp_eq_u32 s{sPOLL}, 3")
    A(f"s_cbranch_scc0 {D}")
    A(f"buffer_atomic_add v{vb}, v{voff}, s[{SWS}:{SWS+3}], s{sfl} offen sc1")
    A.label(D)
    A("s_mov_b64 exec, -1")

def lds_flag_set(addr_sgpr, va, vb):
    A(f"v_mov_b32 v{va}, s{addr_sgpr}")
    A(f"v_mov_b32 v{vb}, 1")
    A("s_waitcnt lgkmcnt(0)")
    A(f"ds_write_b32 v{va}, v{vb}")
def lds_flag_wait(addr_sgpr, va, vb, sleep=0):
    L = U("LFW")
    A(f"v_mov_b32 v{va}, s{addr_sgpr}")
    A.label(L)
    if sleep: A(f"s_sleep {sleep}")
    A(f"ds_read_b32 v{vb}, v{va}")
    A("s_waitcnt lgkmcnt(0)")
    A(f"v_cmp_eq_u32 vcc, 0, v{vb}")
    A("s_nop 0")
    A(f"s_cbranch_vccnz {L}")

XS, XWOFF, XEOFF = 36864, 16384, 32768
L_XX = 147456
def cnt_load(srdreg, soff, vdst, vzero):
    A(f"buffer_load_dword v{vdst}, v{vzero}, s[{srdreg}:{srdreg+3}], {soff} sc1")
def cnt_check(srdreg, soff, need, vdst, vzero):
    L, D = U("POLL"), U("POLLD")
    A(f"s_mov_b32 s{sPOLL}, 300000")
    A.label(L)
    A(f"v_cmp_gt_u32 vcc, {need}, v{vdst}")
    A(f"s_sub_u32 s{sPOLL}, s{sPOLL}, 1")
    A(f"s_cbranch_vccz {D}")
    A("s_sleep 2")
    cnt_load(srdreg, soff, vdst, vzero)
    A("s_waitcnt vmcnt(0)")
    A(f"s_cmp_lg_u32 s{sPOLL}, 0")
    A(f"s_cbranch_scc1 {L}")
    A.label(D)

def entry():
    A("s_cmp_ge_u32 s2, 256")
    A("s_cbranch_scc1 K_END")
    A("s_load_dwordx16 s[40:55], s[0:1], 0")
    A("s_load_dwordx4 s[56:59], s[0:1], 64")
    A("s_load_dwordx2 s[60:61], s[0:1], 80")
    if DIAG: A("v_mov_b32 v255, 0")
    A("v_lshrrev_b32 v1, 6, v0")
    A("v_and_b32 v2, 63, v0")
    A(f"s_and_b32 s{sXCD}, s2, 7")
    A(f"s_lshr_b32 s{sIDX}, s2, 3")
    A(f"v_readfirstlane_b32 s{sWAVE}, v1")
    A(f"s_and_b32 s{sT1}, s{sXCD}, 3")
    A(f"s_lshr_b32 s{sW4}, s{sXCD}, 2")
    A(f"s_cmp_lt_u32 s{sIDX}, 16")
    A("s_cbranch_scc0 K1_MAPY")
    A(f"s_lshl_b32 s{sRB}, s{sT1}, 2")
    A(f"s_and_b32 s{sT0}, s{sIDX}, 3")
    A(f"s_add_u32 s{sRB}, s{sRB}, s{sT0}")
    A(f"s_lshl_b32 s{sCBG}, s{sW4}, 2")
    A(f"s_lshr_b32 s{sT0}, s{sIDX}, 2")
    A(f"s_add_u32 s{sCBG}, s{sCBG}, s{sT0}")
    A(f"s_mov_b32 s{sTYPE}, 0")
    A(f"s_and_b32 s{sROT}, s{sCBG}, 3")
    A("s_branch K1_MAPD")
    A.label("K1_MAPY")
    A(f"s_lshl_b32 s{sRB}, s{sT1}, 1")
    A(f"s_and_b32 s{sT0}, s{sIDX}, 1")
    A(f"s_add_u32 s{sRB}, s{sRB}, s{sT0}")
    A(f"s_lshl_b32 s{sCBG}, s{sW4}, 3")
    A(f"s_bfe_u32 s{sT0}, s{sIDX}, 0x30001")
    A(f"s_add_u32 s{sCBG}, s{sCBG}, s{sT0}")
    A(f"s_mov_b32 s{sTYPE}, 1")
    A(f"s_mov_b32 s{sROT}, 0")
    A.label("K1_MAPD")
    A(f"s_and_b32 s{sW4}, s{sWAVE}, 3")
    A(f"s_cmp_lt_u32 s{sWAVE}, 4")
    A("s_cbranch_scc1 K1_COMPUTE")

def srd_e():
    A(f"s_bitcmp1_b32 s{sCBG}, 2")
    A(f"s_cselect_b64 s[62:63], s[{pBWV}:{pBWV+1}], s[{pBWK}:{pBWK+1}]")
    srd(SE, 62, 65536)
def build_srds_common():
    srd(SWS, pWS, WS_USED)
    srd(SDBG, pDBG, 256)

VPFA, VPFD = 10, 11
sPFO, sPFA, sT2, sT3 = 82, 83, 30, 31
def pf_setup(role, member):
    W, D = U("PFW"), U("PFD")
    A(f"s_cmp_lt_u32 s{role}, 2")
    A(f"s_cbranch_scc0 {W}")
    A("v_lshrrev_b32 v12, 1, v2")
    A(f"v_lshlrev_b32 v{VPFA}, 11, v12")
    A("v_and_b32 v12, 1, v2")
    A(f"v_lshl_add_u32 v{VPFA}, v12, 7, v{VPFA}")
    A(f"s_lshl_b32 s{sPFO}, s{member}, 16")
    A(f"s_mov_b32 s{sPFA}, 256")
    A(f"s_cmp_eq_u32 s{role}, 1")
    A(f"s_cselect_b64 s[62:63], s[{pBX}:{pBX+1}], s[{pAX}:{pAX+1}]")
    A(f"s_mov_b32 s{sT2}, 4")
    A(f"s_branch {D}")
    A.label(W)
    A(f"v_lshlrev_b32 v{VPFA}, 7, v2")
    A(f"s_lshl_b32 s{sT2}, s{member}, 1")
    A(f"s_add_u32 s{sT2}, s{sT2}, s{role}")
    A(f"s_sub_u32 s{sT2}, s{sT2}, 2")
    A(f"s_sub_u32 s{sT3}, s{sT2}, 96")
    A(f"s_cmp_lt_u32 s{sT2}, 96")
    A(f"s_cselect_b32 s{sPFO}, s{sT2}, s{sT3}")
    A(f"s_cselect_b64 s[62:63], s[{pAW}:{pAW+1}], s[{pBWQ}:{pBWQ+1}]")
    A(f"s_cselect_b32 s{sT2}, 6, 2")
    A(f"s_lshl_b32 s{sPFA}, s{sT2}, 17")
    A(f"s_lshl_b32 s{sPFO}, s{sPFO}, 13")
    A.label(D)
    srd(SPF, 62, f"s_lshl_b32 s{SPF+2}, s{sT2}, 20")

def p1_loader():
    VX, VW, VE, VW2 = 3, 6, 7, 9
    sLIM, sB0 = 29, 37
    A("v_lshrrev_b32 v4, 4, v2")
    A(f"s_lshl_b32 s{sT0}, s{sW4}, 2")
    A(f"v_add_u32 v4, s{sT0}, v4")
    A("v_and_b32 v4, 7, v4")
    A("v_and_b32 v5, 7, v2")
    A("v_xor_b32 v4, v4, v5")
    A("v_lshlrev_b32 v4, 4, v4")
    A("v_lshrrev_b32 v5, 3, v2")
    A(f"v_lshl_add_u32 v{VX}, v5, 11, v4")
    A("v_lshrrev_b32 v4, 4, v2")
    A("v_and_b32 v5, 15, v2")
    A("v_lshlrev_b32 v8, 2, v4")
    A("v_xor_b32 v5, v5, v8")
    A(f"s_lshl_b32 s{sB0}, s{sW4}, 10")
    A(f"s_mov_b32 s{sBASE}, s{sB0}")
    A(f"s_mov_b32 s{sCNT}, 0")
    def dma(off, ins):
        A(f"s_add_u32 m0, s{sBASE}, {off}")
        A("s_nop 0")
        A(ins)
    def adv(stage):
        A(f"s_add_u32 s{sBASE}, s{sBASE}, {stage}")
        A(f"s_cmp_ge_u32 s{sBASE}, s{sLIM}")
        A(f"s_cselect_b32 s{sBASE}, s{sB0}, s{sBASE}")
        A(f"s_add_u32 s{sCNT}, s{sCNT}, 1")
    xl = lambda n: (n * 4096, f"buffer_load_dwordx4 v{VX}, s[{SX}:{SX+3}], s{sXO+n} offen lds")
    A(f"s_cmp_eq_u32 s{sTYPE}, 1")
    A("s_cbranch_scc1 K1_LY")
    A(f"s_lshl_b32 s{sT1}, s{sRB}, 4")
    A(f"s_add_u32 s{sT1}, s{sT1}, s{sW4}")
    A(f"s_lshl_b32 s{sT1}, s{sT1}, 14")
    for n in range(4):
        A(f"s_add_u32 s{sT0}, s{sROT}, {n}")
        A(f"s_and_b32 s{sT0}, s{sT0}, 3")
        A(f"s_lshl_b32 s{sT0}, s{sT0}, 16")
        A(f"s_add_u32 s{sXO+n}, s{sT0}, s{sT1}")
    A(f"s_lshl_b32 s{sT0}, s{sCBG}, 8")
    A(f"v_lshl_add_u32 v8, v5, 4, s{sT0}")
    A(f"v_lshl_add_u32 v{VW}, v4, 11, v8")
    A(f"s_lshl_b32 s{sWO}, s{sW4}, 13")
    for n in range(1, 4):
        A(f"s_add_u32 s{sWO+n}, s{sWO}, {n*16*2048}")
    A(f"v_lshl_add_u32 v{VE}, v2, 4, s{sB0}")
    A(f"s_add_u32 s{sLIM}, s{sB0}, {4*XS}")
    A("s_waitcnt lgkmcnt(0)")
    srd(SX, pBX, 4 << 20)
    srd(SW, pBWQ, 2 << 20)
    srd_e()
    stamp(0)
    A("s_branch K1_XINB")
    A.label("K1_XLB")
    A(f"s_cmp_lt_u32 s{sCNT}, 2")
    A("s_cbranch_scc1 K1_XINB")
    A("s_waitcnt vmcnt(9)")
    A("s_barrier")
    A.label("K1_XINB")
    wl = lambda n, v: (XWOFF + n * 4096, f"buffer_load_dwordx4 v{v}, s[{SW}:{SW+3}], s{sWO+n} offen lds")
    for off, ins in (xl(0), wl(0, VW), (XEOFF, f"buffer_load_dwordx4 v{VE}, s[{SE}:{SE+3}], 0 offen lds"), xl(1), wl(1, VW), xl(2), wl(2, VW), xl(3), wl(3, VW)):
        dma(off, ins)
    A(f"v_add_u32 v{VX}, 128, v{VX}")
    A(f"v_add_u32 v{VW}, {64*2048}, v{VW}")
    A(f"v_add_u32 v{VE}, 4096, v{VE}")
    adv(XS)
    A(f"s_cmp_lt_u32 s{sCNT}, 16")
    A("s_cbranch_scc1 K1_XLB")
    srd(SX, pAX, 4 << 20)
    srd(SW, pAW, 6 << 20)
    A(f"v_subrev_u32 v{VX}, 2048, v{VX}")
    A(f"v_mul_u32_u24 v{VW2}, 6144, v4")
    A(f"v_add_u32 v{VW2}, v{VW2}, v8")
    A(f"s_mul_i32 s{sWO}, s{sW4}, {4*6144}")
    for n in range(1, 4):
        A(f"s_add_u32 s{sWO+n}, s{sWO}, {n*16*6144}")
    A.label("K1_XLA")
    A("s_waitcnt vmcnt(8)")
    A("s_barrier")
    for off, ins in (xl(0), wl(0, VW2), xl(1), wl(1, VW2), xl(2), wl(2, VW2), xl(3), wl(3, VW2)):
        dma(off, ins)
    A(f"v_add_u32 v{VX}, 128, v{VX}")
    A(f"v_add_u32 v{VW2}, {64*6144}, v{VW2}")
    adv(XS)
    A(f"s_cmp_lt_u32 s{sCNT}, 32")
    A("s_cbranch_scc1 K1_XLA")
    A("s_waitcnt vmcnt(8)")
    A("s_branch K1_LTAIL")
    A.label("K1_LY")
    A(f"s_lshl_b32 s{sT1}, s{sRB}, 5")
    A(f"s_add_u32 s{sT1}, s{sT1}, s{sW4}")
    A(f"s_lshl_b32 s{sXO}, s{sT1}, 14")
    for n in range(1, 8):
        A(f"s_add_u32 s{sXO+n}, s{sXO}, {n<<16}")
    A(f"v_mul_u32_u24 v{VW}, 6144, v4")
    A("v_and_b32 v8, 3, v5")
    A(f"v_lshl_add_u32 v{VW}, v8, 4, v{VW}")
    A("v_bfe_u32 v8, v5, 2, 1")
    A(f"v_lshl_add_u32 v{VW}, v8, 11, v{VW}")
    A("v_bfe_u32 v8, v5, 3, 1")
    A(f"v_lshl_add_u32 v{VW}, v8, 6, v{VW}")
    A(f"s_lshl_b32 s{sT0}, s{sCBG}, 7")
    A(f"s_add_u32 s{sT0}, s{sT0}, 2048")
    A(f"v_add_u32 v{VW}, s{sT0}, v{VW}")
    A(f"s_mul_i32 s{sWO}, s{sW4}, {4*6144}")
    for n in range(1, 4):
        A(f"s_add_u32 s{sWO+n}, s{sWO}, {n*16*6144}")
    A(f"s_add_u32 s{sLIM}, s{sB0}, {3*P1_STAGE}")
    A("s_waitcnt lgkmcnt(0)")
    srd(SX, pAX, 4 << 20)
    srd(SW, pAW, 6 << 20)
    stamp(0)
    PF = 1 if OPT["pf1"] else 0
    n = 12 + 2 * PF
    sI, sO, sG, sM = 88, 92, 38, 39
    A("s_branch K1_YIN")
    A.label("K1_YL")
    A(f"s_cmp_lt_u32 s{sCNT}, 2")
    A("s_cbranch_scc1 K1_YIN")
    A(f"s_waitcnt vmcnt({n})")
    A("s_barrier")
    A.label("K1_YIN")
    seq = [xl(i) for i in range(8)] + [(P1_WOFF + i * 4096, f"buffer_load_dwordx4 v{VW}, s[{SW}:{SW+3}], s{sWO+i} offen lds") for i in range(4)]
    for i in [0, 8, 1, 2, 9, 3, 4, 10, 5, 6, 11, 7]:
        dma(*seq[i])
    if PF:
        A(f"s_cmp_eq_u32 s{sCNT}, 0")
        A("s_cbranch_scc0 K1_PFS")
        A(f"s_bfe_u32 s{sG}, s{sIDX}, 0x10003")
        A(f"s_and_b32 s{sM}, s{sIDX}, 7")
        A(f"s_lshl_b32 s{sM}, s{sM}, 3")
        A(f"s_add_u32 s{sM}, s{sM}, s{sXCD}")
        pf_setup(sW4, sM)
        A(f"s_add_u32 s{sM}, s{sG}, {OPT['pf0']}")
        A(f"s_mul_i32 s{sM}, s{sM}, s{sPFA}")
        A(f"s_add_u32 s{sPFO}, s{sPFO}, s{sM}")
        A(f"s_lshl_b32 s{sPFA}, s{sPFA}, 1")
        sched = [int(c, 16) for c in str(OPT["pfs"])[1:]][:8 - OPT["pf0"]]
        masks = [sum(1 << it for it in sched[g::2]) for g in range(2)]
        A(f"s_cmp_eq_u32 s{sG}, 0")
        A(f"s_mov_b32 s{sI}, {masks[1]}")
        A(f"s_cselect_b32 s{sI}, {masks[0]}, s{sI}")
        A.label("K1_PFS")
        A(f"s_bitcmp1_b32 s{sI}, s{sCNT}")
        A("s_cbranch_scc0 K1_PFX")
        A(f"buffer_load_dword v{VPFD}, v{VPFA}, s[{SPF}:{SPF+3}], s{sPFO} offen")
        A(f"s_add_u32 s{sPFO}, s{sPFO}, s{sPFA}")
        A("s_branch K1_PFY")
        A.label("K1_PFX")
        A(f"s_mov_b32 s{sT2}, {OOB}")
        A(f"buffer_load_dword v{VPFD}, off, s[{SPF}:{SPF+3}], s{sT2}")
        A.label("K1_PFY")
    A(f"v_add_u32 v{VX}, 128, v{VX}")
    A(f"v_add_u32 v{VW}, {64*6144}, v{VW}")
    adv(P1_STAGE)
    A(f"s_cmp_lt_u32 s{sCNT}, 16")
    A("s_cbranch_scc1 K1_YL")
    A(f"s_waitcnt vmcnt({n})")
    A.label("K1_LTAIL")
    A("s_barrier")
    build_srds_common()
    A("v_mov_b32 v119, 0")
    cnt_load(SDBG, "0 offen", 120, 119)
    A("s_waitcnt vmcnt(0)")
    A("s_barrier")
    cnt_check(SDBG, "0 offen", 1, 120, 119)
    A(f"s_and_b32 s92, s2, 63")
    A(f"s_lshl_b32 s92, s92, 7")
    A(f"s_add_u32 s92, s92, {WS_FL + FL_B}")
    A(f"s_lshl_b32 s93, s2, 7")
    A(f"s_add_u32 s93, s93, {WS_FL + FL_A}")
    cnt_load(SWS, "s92 offen", 120, 119)
    cnt_load(SWS, "s93 offen offset:4", 121, 119)
    A("s_barrier")
    stamp(1)

VSG = 172
sSG = 74
def p1_compute():
    A.label("K1_COMPUTE")
    XA, WA, EA = 16, 20, 22
    VPF, VINI, VZ = 24, 28, 29
    FB = [32, 60]
    FX = lambda b, t: FB[b] + 4 * t
    FW = lambda b, u: FB[b] + 16 + 4 * u
    FE = lambda b: FB[b] + 24
    XACC = 96
    ACC = lambda t, u: 112 + 16 * (2 * t + u)
    A(f"s_lshr_b32 s{sWM}, s{sWAVE}, 1")
    A(f"s_and_b32 s{sWN}, s{sWAVE}, 1")
    A("v_and_b32 v3, 31, v2")
    A("v_lshrrev_b32 v4, 5, v2")
    A("s_waitcnt lgkmcnt(0)")
    build_srds_common()
    stamp(0)
    lite(0)
    A(f"s_cmp_eq_u32 s{sWAVE}, 0")
    A("s_cbranch_scc0 K1_NW0")
    A("v_and_b32 v10, 15, v2")
    A("v_lshlrev_b32 v10, 2, v10")
    A(f"v_add_u32 v10, {MISC}, v10")
    A("v_mov_b32 v12, 0")
    A("v_mov_b32 v13, 0")
    A("ds_write_b32 v10, v12")
    A("v_lshlrev_b32 v10, 7, v2")
    A("s_cmp_eq_u32 s2, 255")
    A("s_cbranch_scc1 K1_INIT")
    if OPT["pf1"]:
        A("s_bitcmp1_b32 s2, 0")
        A(f"s_cselect_b64 s[62:63], s[{pBWV}:{pBWV+1}], s[{pBWK}:{pBWK+1}]")
        srd(SPF, 62, 65536)
        A(f"s_lshr_b32 s{sT0}, s2, 1")
        A(f"s_lshl_b32 s{sT0}, s{sT0}, 13")
        A("s_cmp_lt_u32 s2, 16")
        A("s_cbranch_scc0 K1_WD")
        A(f"buffer_load_dword v{VPF}, v10, s[{SPF}:{SPF+3}], s{sT0} offen")
    A("s_branch K1_WD")
    A.label("K1_INIT")
    A(f"s_mov_b32 s{sT0}, {WS_FL}")
    for i in range(9):
        A(f"buffer_store_dwordx2 v[12:13], v10, s[{SWS}:{SWS+3}], s{sT0} offen sc1")
        A(f"s_add_u32 s{sT0}, s{sT0}, 8192")
    A("v_mov_b32 v14, 1")
    A("s_waitcnt vmcnt(0)")
    A(f"buffer_store_dword v14, v12, s[{SDBG}:{SDBG+3}], 0 offen sc1")
    A("s_branch K1_WD")
    A.label("K1_NW0")
    A(f"s_cmp_eq_u32 s{sWAVE}, 3")
    A("s_cbranch_scc1 K1_W3")
    if OPT["pf0"]:
        A(f"s_cmp_le_u32 s{sWAVE}, {OPT['pf0']}")
        A("s_cbranch_scc0 K1_WD")
        A(f"s_and_b32 s{sT0}, s{sIDX}, 3")
        A(f"s_lshr_b32 s{sT1}, s2, 5")
        A(f"s_lshl_b32 s{sT1}, s{sT1}, 3")
        A(f"s_add_u32 s{sT1}, s{sT1}, s{sXCD}")
        pf_setup(sT0, sT1)
        A(f"s_cmp_eq_u32 s{sWAVE}, 2")
        A(f"s_cselect_b32 s{sPFA}, s{sPFA}, 0")
        A(f"s_add_u32 s{sPFO}, s{sPFO}, s{sPFA}")
        A(f"buffer_load_dword v{VPF+1}, v{VPFA}, s[{SPF}:{SPF+3}], s{sPFO} offen")
    A("s_branch K1_WD")
    A.label("K1_W3")
    if OPT["pfc"]:
        A("s_getpc_b64 s[62:63]")
        A.label("K1_PC")
        A(f"s_sub_u32 s62, s62, K1_PC-{KNAME}_kernel")
        A("s_subb_u32 s63, s63, 0")
        A(f"s_cmp_lt_u32 s{sIDX}, 28")
        A("s_cbranch_scc1 K1_TLB")
        A(f"s_and_b32 s{sT0}, s{sIDX}, 3")
        A(f"s_lshl_b32 s{sT0}, s{sT0}, 13")
        A(f"v_lshl_add_u32 v10, v2, 7, s{sT0}")
        A(f"v_min_u32 v10, K2_SLOW-{KNAME}_kernel, v10")
        A(f"global_load_dword v{VPF+2}, v10, s[62:63]")
        A("s_branch K1_WD")
    A.label("K1_TLB")
    if OPT["tlb"]:
        A(f"s_cmp_lt_u32 s{sIDX}, 20")
        A("s_cbranch_scc1 K1_WD")
        A(f"s_cmp_lt_u32 s{sIDX}, 24")
        A("s_cbranch_scc0 K1_TLB2")
        A(f"s_and_b32 s{sT0}, s{sIDX}, 3")
        A(f"s_mul_i32 s{sT0}, s{sT0}, {REG}")
        A(f"s_add_u32 s{sT0}, s{sT0}, 65536")
        A(f"s_mov_b32 s{sT1}, {RTS}")
        A(f"v_mul_lo_u32 v10, v2, s{sT1}")
        A(f"buffer_load_dword v{VPF+2}, v10, s[{SWS}:{SWS+3}], s{sT0} offen")
        A("s_branch K1_WD")
        A.label("K1_TLB2")
        A(f"s_cmp_eq_u32 s{sIDX}, 26")
        A(f"s_cselect_b64 s[62:63], s[{pAWO}:{pAWO+1}], s[{pOUT}:{pOUT+1}]")
        A(f"s_cmp_eq_u32 s{sIDX}, 27")
        A(f"s_cselect_b64 s[62:63], s[{pBWO}:{pBWO+1}], s[62:63]")
        A(f"s_cmp_lt_u32 s{sIDX}, 26")
        A(f"s_cselect_b32 s{sT1}, 8, 2")
        srd(SPF, 62, f"s_lshl_b32 s{SPF+2}, s{sT1}, 20")
        A(f"s_cmp_eq_u32 s{sIDX}, 25")
        A(f"s_cselect_b32 s{sT0}, {4<<20}, 0")
        A("v_lshlrev_b32 v10, 16, v2")
        A(f"buffer_load_dword v{VPF+2}, v10, s[{SPF}:{SPF+3}], s{sT0} offen")
    A.label("K1_WD")
    A(f"s_add_u32 s{sT0}, s{sTYPE}, 13")
    A(f"s_lshl_b32 s{sT0}, s{sWM}, s{sT0}")
    A("v_bfe_u32 v5, v2, 1, 3")
    A(f"v_lshl_add_u32 v6, v3, 7, s{sT0}")
    for ks in range(4):
        A(f"v_add_u32 v7, {2*ks}, v4")
        A("v_xor_b32 v7, v7, v5")
        A(f"v_lshl_add_u32 v{XA+ks}, v7, 4, v6")
    A("v_bfe_u32 v5, v2, 2, 2")
    A("v_lshl_add_u32 v6, v4, 3, v5")
    A("v_bfe_u32 v7, v2, 4, 1")
    A("v_bfe_u32 v8, v2, 1, 1")
    A("v_lshl_add_u32 v7, v7, 1, v8")
    A("v_and_b32 v8, 1, v2")
    A("v_lshlrev_b32 v8, 3, v8")
    A("v_lshl_add_u32 v8, v6, 8, v8")
    for u in range(2):
        A(f"s_lshl_b32 s{sT0}, s{sWN}, 1")
        A(f"s_add_u32 s{sT0}, s{sT0}, {u}")
        A(f"v_xor_b32 v9, s{sT0}, v5")
        A("v_lshl_add_u32 v9, v9, 2, v7")
        A(f"v_lshl_add_u32 v{WA+u}, v9, 4, v8")
    A("v_bfe_u32 v7, v2, 4, 1")
    A("v_lshlrev_b32 v7, 5, v7")
    A("v_and_b32 v8, 3, v2")
    A("v_lshl_add_u32 v7, v8, 3, v7")
    A(f"v_lshl_add_u32 v{EA}, v6, 6, v7")
    A(f"s_mov_b32 s{sBASE}, 0")
    A(f"s_mov_b32 s{sCNT}, 16")
    A("v_lshlrev_b32 v3, 4, v2")

    def reads(b, ks, extra, nt, woff):
        R = [f"ds_read_b128 {vr(FX(b,0),4)}, v{XA+ks} offset:0"]
        for u in range(2):
            R.append(f"ds_read_b64_tr_b16 {vr(FW(b,u),2)}, v{WA+u} offset:{woff+ks*4096}")
            R.append(f"ds_read_b64_tr_b16 {vr(FW(b,u)+2,2)}, v{WA+u} offset:{woff+ks*4096+1024}")
        for t in range(1, nt):
            R.append(f"ds_read_b128 {vr(FX(b,t),4)}, v{XA+ks} offset:{t*4096}")
        if extra:
            R.append(f"ds_read_b64_tr_b16 {vr(FE(b),2)}, v{EA} offset:{XEOFF+ks*1024}")
            R.append(f"ds_read_b64_tr_b16 {vr(FE(b)+2,2)}, v{EA} offset:{XEOFF+ks*1024+256}")
        return R
    def mainloop(tag, isX, extra, par=None):
        ex = lambda st: extra if (st & 1) == par else None
        nt, woff, nsl, stg = (2, XWOFF, 4, XS) if isX else (4, P1_WOFF, 3, P1_STAGE)
        A.label(f"K1_ML{tag}")
        A("s_barrier")
        stamp(1)
        lite(1)
        for r in reads(0, 0, ex(0), nt, woff): A(r)
        A.label(f"K1_LOOP{tag}")
        start = len(A.lines)
        for s in range(4):
            b = s & 1
            mf = []
            for t in range(nt):
                for u in range(2):
                    mf.append(mfma32(ACC(t,u), FW(b,u), FX(b,t)) if isX else mfma32(ACC(t,u), FX(b,t), FW(b,u)))
            if ex(s) == "K": mf.append(mfma32(XACC, FE(b), FX(b,0)))
            if ex(s) == "V": mf.append(mfma32(XACC, FX(b,0), FE(b)))
            fill = reads(b ^ 1, (s + 1) & 3, ex(s + 1), nt, woff)
            post = []
            if s == 1:
                post = [f"s_add_u32 s{sBASE}, s{sBASE}, 1", f"s_cmp_eq_u32 s{sBASE}, {nsl}",
                        f"s_cselect_b32 s{sDELTA}, {-(nsl-1)*stg & 0xffffffff}, s{sSTG}", f"s_cselect_b32 s{sBASE}, 0, s{sBASE}"]
            if s == 2: post = [f"v_add_u32 v{XA+i}, s{sDELTA}, v{XA+i}" for i in range(7 if extra else 6)]
            if s == 3: post = [f"s_sub_u32 s{sCNT}, s{sCNT}, 1", f"s_cmp_lg_u32 s{sCNT}, 0"]
            A("s_waitcnt lgkmcnt(0)")
            per = 4 if isX else 2
            for k, m in enumerate(mf):
                if k == len(mf) - 1:
                    assert not fill
                    while post: A(post.pop(0))
                A(m)
                if s == 3 and k == 0: A("s_barrier")
                if fill:
                    for _ in range(per):
                        if fill: A(fill.pop(0))
                else:
                    for _ in range(4):
                        if post: A(post.pop(0))
        A(f"s_cbranch_scc1 K1_LOOP{tag}")
        body = A.lines[start:]
        chk(body + body, f"k1 loop {tag}")

    XF = lambda ks: [32, 52, 72, 176][ks]
    def xreads(ks, extra):
        o = XF(ks)
        R = [f"ds_read_b128 {vr(o,4)}, v{XA+ks}"]
        for u in range(2):
            R.append(f"ds_read_b64_tr_b16 {vr(o+8+4*u,2)}, v{WA+u} offset:{XWOFF+ks*4096}")
            R.append(f"ds_read_b64_tr_b16 {vr(o+10+4*u,2)}, v{WA+u} offset:{XWOFF+ks*4096+1024}")
        R.append(f"ds_read_b128 {vr(o+4,4)}, v{XA+ks} offset:4096")
        if extra:
            R.append(f"ds_read_b64_tr_b16 {vr(o+16,2)}, v{EA} offset:{XEOFF+ks*1024}")
            R.append(f"ds_read_b64_tr_b16 {vr(o+18,2)}, v{EA} offset:{XEOFF+ks*1024+256}")
        return R
    def xloop(tag, extra, par=None):
        ex = lambda st: extra if (st & 1) == par else None
        A.label(f"K1_ML{tag}")
        A("s_barrier")
        stamp(1)
        lite(1)
        for ks in range(2):
            for r in xreads(ks, ex(ks)): A(r)
        A("s_waitcnt lgkmcnt(0)")
        body = []
        for s in range(4):
            o = XF(s)
            mf = [mfma32(ACC(t,u), o + 8 + 4 * u, o + 4 * t) for t in range(2) for u in range(2)]
            if ex(s) == "K": mf.append(mfma32(XACC, o + 16, o))
            if ex(s) == "V": mf.append(mfma32(XACC, o, o + 16))
            fill = xreads((s + 2) & 3, ex(s))
            post = []
            if s == 0:
                post = [f"s_add_u32 s{sBASE}, s{sBASE}, 1", f"s_cmp_eq_u32 s{sBASE}, 4",
                        f"s_cselect_b32 s{sDELTA}, {-3*XS & 0xffffffff}, s{sSTG}", f"s_cselect_b32 s{sBASE}, 0, s{sBASE}",
                        f"v_add_u32 v{XA}, s{sDELTA}, v{XA}", f"v_add_u32 v{XA+1}, s{sDELTA}, v{XA+1}", f"v_add_u32 v{XA+2}, s{sDELTA}, v{XA+2}"]
            if s == 1: post = [f"v_add_u32 v{XA+i}, s{sDELTA}, v{XA+i}" for i in range(3, 7 if extra else 6)]
            if s == 3: post = [f"s_sub_u32 s{sCNT}, s{sCNT}, 1", f"s_cmp_lg_u32 s{sCNT}, 0"]
            per = -(-len(fill) // (len(mf) - 1))
            for k, m in enumerate(mf):
                if k == len(mf) - 1:
                    assert not fill
                    body += post; post = []
                body.append(m)
                if s == 2 and k == 0: body.append("s_barrier")
                for _ in range(per):
                    if fill: body.append(fill.pop(0))
        body = auto_waits(body)
        A.label(f"K1_LOOP{tag}")
        for l in body: A(l)
        A(f"s_cbranch_scc1 K1_LOOP{tag}")
        chk(body + body, f"k1 loop {tag}")

    VC1, VC2, VEPS = 4, 6, 8
    def consts():
        A(f"v_mov_b32 v{VC1}, {hexf(LOG2E)}")
        A(f"v_mov_b32 v{VC1+1}, {hexf(LOG2E)}")
        A(f"v_mov_b32 v{VC2}, {hexf(-EPS*LOG2E)}")
        A(f"v_mov_b32 v{VC2+1}, {hexf(-EPS*LOG2E)}")
        A(f"v_mov_b32 v{VEPS}, {hexf(EPS)}")
    def pack_tile(base, dst=None):
        dst = base if dst is None else dst
        return [f"v_cvt_pk_bf16_f32 v{dst+i}, v{base+2*i}, v{base+2*i+1}" for i in range(8)]
    def phi_tile(base, TMP):
        L = [f"v_pk_fma_f32 {vr(TMP+2*i,2)}, {vr(base+2*i,2)}, {vr(VC1,2)}, {vr(VC2,2)}" for i in range(8)]
        for i in range(16):
            L += [f"v_exp_f32 v{TMP+i}, v{TMP+i} clamp", f"v_max_f32 v{base+i}, v{base+i}, v{VEPS}"]
        L += [f"v_pk_add_f32 {vr(base+2*i,2)}, {vr(base+2*i,2)}, {vr(TMP+2*i,2)}" for i in range(8)]
        return L + pack_tile(base)
    def q_store(t, u, src):
        for half in range(2):
            A(f"buffer_store_dwordx4 {vr(src+4*half,4)}, v3, s[{SWS}:{SWS+3}], s{sXO+t} offen offset:{u*2048+half*1024} sc1")
    sPH, sEXW = 33, 32

    A(f"s_cmp_eq_u32 s{sTYPE}, 1")
    A("s_cbranch_scc1 K1_Y")
    for r in range(80): A(f"v_mov_b32 v{XACC+r}, 0")
    A(f"s_mov_b32 s{sSTG}, {XS}")
    A(f"s_lshl_b32 s{sT1}, s{sCBG}, 1")
    A(f"s_add_u32 s{sT1}, s{sT1}, s{sWN}")
    A(f"s_lshl_b32 s{sSG}, s{sT1}, 8")
    A(f"s_lshl_b32 s{sT1}, s{sT1}, 12")
    A(f"s_add_u32 s{sT1}, s{sT1}, {WS_QB}")
    A(f"s_lshl_b32 s{sXO+4}, s{sRB}, 2")
    A(f"s_add_u32 s{sXO+5}, s{sXO+4}, s{sROT}")
    for t in range(2):
        A(f"s_lshl_b32 s{sT0}, s{sWM}, 1")
        A(f"s_add_u32 s{sT0}, s{sT0}, s{sROT}")
        A(f"s_add_u32 s{sT0}, s{sT0}, {t}")
        A(f"s_and_b32 s{sT0}, s{sT0}, 3")
        A(f"s_add_u32 s{sT0}, s{sT0}, s{sXO+4}")
        A(f"s_mul_i32 s{sT0}, s{sT0}, {RTS}")
        A(f"s_add_u32 s{sXO+t}, s{sT0}, s{sT1}")
    A(f"s_lshr_b32 s{sT0}, s{sRB}, 1")
    A(f"s_lshl_b32 s{sT0}, s{sT0}, 12")
    A(f"s_add_u32 s{sSG}, s{sSG}, s{sT0}")
    A(f"s_add_u32 s{sSG}, s{sSG}, {WS_FL + FL_A}")
    A(f"v_lshlrev_b32 v{240}, 7, v2")
    A("s_mov_b64 s[92:93], 3")
    A(f"s_mov_b32 s{sPH}, 0")
    A(f"s_mov_b32 s{sEXW}, 0")
    A(f"v_mov_b32 v{VZ}, 0")
    A(f"v_add_u32 v30, {L_XX}, v3")
    A(f"s_mov_b32 s{sT1}, {L_XF}")
    A("s_waitcnt lgkmcnt(0)")
    A(f"s_cmp_eq_u32 s{sWM}, 1")
    A("s_cbranch_scc1 K1_MLX")
    A(f"s_cmp_eq_u32 s{sWN}, 1")
    A("s_cbranch_scc1 K1_X1")
    A(f"s_bitcmp1_b32 s{sCBG}, 2")
    A("s_cbranch_scc1 K1_MLV0")
    xloop("K0", "K", 0)
    A(f"s_mov_b32 s{sT0}, {WS_KV}")
    A(f"v_mov_b32 v{VC1}, {hexf(KSCALE)}")
    A("s_branch K1_EPX")
    xloop("V0", "V", 0)
    A(f"s_mov_b32 s{sT0}, {WS_KV + 2048}")
    A(f"v_mov_b32 v{VC1}, 1.0")
    A.label("K1_EPX")
    A(f"v_mov_b32 v{VC1+1}, v{VC1}")
    A(f"s_lshl_b32 s{sXO+5}, s{sXO+5}, 12")
    A(f"s_add_u32 s{sXO+5}, s{sXO+5}, s{sT0}")
    A(f"s_mov_b32 s{sEXW}, 1")
    lds_flag_wait(sT1, 8, 9)
    TX = 176
    for q in range(4):
        A(f"ds_read_b128 {vr(TX+4*q,4)}, v30 offset:{q*1024}")
    A("s_waitcnt lgkmcnt(0)")
    for i in range(8):
        A(f"v_pk_add_f32 {vr(XACC+2*i,2)}, {vr(XACC+2*i,2)}, {vr(TX+2*i,2)}")
    for i in range(8):
        A(f"v_pk_mul_f32 {vr(XACC+2*i,2)}, {vr(XACC+2*i,2)}, {vr(VC1,2)}")
    for ins in pack_tile(XACC): A(ins)
    for half in range(2):
        A(f"buffer_store_dwordx4 {vr(XACC+4*half,4)}, v3, s[{SWS}:{SWS+3}], s{sXO+5} offen offset:{half*1024} sc1")
    A("s_branch K1_EPB")
    A.label("K1_X1")
    A(f"s_bitcmp1_b32 s{sCBG}, 2")
    A("s_cbranch_scc1 K1_MLV1")
    xloop("K1", "K", 1)
    A("s_branch K1_EPX1")
    xloop("V1", "V", 1)
    A.label("K1_EPX1")
    A("s_nop 11")
    for q in range(4):
        A(f"ds_write_b128 v30, {vr(XACC+4*q,4)} offset:{q*1024}")
    lds_flag_set(sT1, 8, 9)
    A("s_branch K1_EPB")
    xloop("X", None)
    A(f"s_cmp_eq_u32 s{sPH}, 1")
    A("s_cbranch_scc1 K1_XDEF")
    A(f"s_cmp_eq_u32 s{sPH}, 2")
    A("s_cbranch_scc1 K1_EPA")
    A("s_nop 7")
    A.label("K1_EPB")
    stamp(2)
    A(f"s_mov_b32 s{sT0}, {hexf(EPS)}")
    for t in range(2):
        for u in range(2):
            d = 196 + 8 * (2 * t + u)
            for ins in pack_tile(ACC(t,u), d): A(ins)
            q_store(t, u, d)
    cnt_load(SDBG, "0 offen", VINI, VZ)
    for r in range(64): A(f"v_mov_b32 v{ACC(0,0)+r}, s{sT0}")
    for t in range(2): A(f"s_sub_u32 s{sXO+t}, s{sXO+t}, {WS_QB - WS_QA}")
    A(f"s_mov_b32 s{sPH}, 1")
    A(f"s_mov_b32 s{sCNT}, {OPT['defat']}")
    A("s_waitcnt lgkmcnt(0)")
    A("s_branch K1_LOOPX")
    A.label("K1_XDEF")
    A("s_waitcnt vmcnt(0)")
    cnt_check(SDBG, "0 offen", 1, VINI, VZ)
    A(f"v_mov_b32 v{VINI}, 1")
    A(f"s_mov_b32 s{sPH}, 2")
    A(f"s_mov_b32 s{sCNT}, {16 - OPT['defat']}")
    A(f"s_cmp_eq_u32 s{sEXW}, 0")
    A("s_cbranch_scc1 K1_XDE2")
    A(f"s_mov_b32 s{sT0}, {WS_FL + FL_B}")
    A(f"buffer_atomic_add v{VINI}, v240, s[{SWS}:{SWS+3}], s{sT0} offen sc1")
    A.label("K1_XDE2")
    A("s_mov_b64 exec, 3")
    A(f"buffer_atomic_add v{VINI}, v240, s[{SWS}:{SWS+3}], s{sSG} offen offset:4 sc1")
    A("s_mov_b64 exec, -1")
    A("s_branch K1_LOOPX")
    A.label("K1_EPA")
    stamp(3)
    consts()
    A("s_nop 3")
    for t in range(2):
        for u in range(2):
            for ins in phi_tile(ACC(t,u), 176): A(ins)
            q_store(t, u, ACC(t,u))
    A(f"v_mov_b32 v{VSG}, v240")
    A("s_branch K1_DONE")
    A.label("K1_Y")
    A(f"s_mov_b32 s{sSTG}, {P1_STAGE}")
    A(f"s_mov_b32 s{sT0}, {hexf(EPS)}")
    for t in range(4):
        for r in range(16):
            A(f"v_mov_b32 v{ACC(t,0)+r}, s{sT0}")
            A(f"v_mov_b32 v{ACC(t,1)+r}, 0")
    A("s_waitcnt lgkmcnt(0)")
    mainloop("Y", False, None)
    stamp(2)
    stamp(3)
    consts()
    ONES, TMP, KVD, ZD = 12, 32, 64, 80
    for i in range(4): A(f"v_mov_b32 v{ONES+i}, 0x3f803f80")
    A("s_waitcnt vmcnt(0) lgkmcnt(0)")
    TMP = 96
    def kvm(t):
        M = []
        for half in range(2):
            first = (t == 0 and half == 0)
            M.append(mfma32(KVD, ACC(t,0)+4*half, ACC(t,1)+4*half, "0" if first else None))
            M.append(mfma32(ZD, ONES, ACC(t,0)+4*half, "0" if first else None))
        return M
    pend = []
    for t in range(4):
        V = phi_tile(ACC(t,0), TMP) + pack_tile(ACC(t,1))
        for i, v in enumerate(V):
            if pend and i % 8 == 2 and i >= 10: A(pend.pop(0))
            A(v)
        assert not pend
        pend = kvm(t)
    A(f"s_lshl_b32 s{sT0}, s{sWN}, 13")
    A(f"v_add_u32 v5, s{sT0}, v3")
    for m in pend: A(m)
    A(f"s_lshl_b32 s{sT0}, s{sCBG}, 1")
    A(f"s_add_u32 s{sT0}, s{sT0}, s{sWN}")
    A(f"s_lshl_b32 s{sSG}, s{sT0}, 7")
    A(f"s_add_u32 s{sSG}, s{sSG}, {WS_FL + FL_A}")
    A(f"s_lshl_b32 s{sXO}, s{sT0}, 3")
    A(f"s_add_u32 s{sXO}, s{sXO}, s{sRB}")
    A(f"s_lshl_b32 s{sXO+1}, s{sXO}, 7")
    A(f"s_add_u32 s{sXO+1}, s{sXO+1}, {WS_ZP}")
    A(f"s_lshl_b32 s{sXO}, s{sXO}, 12")
    A(f"s_add_u32 s{sXO}, s{sXO}, {WS_KVP}")
    A("v_and_b32 v4, 31, v2")
    A("v_lshlrev_b32 v4, 2, v4")
    A(f"v_lshlrev_b32 v{VSG}, 12, v2")
    A(f"s_lshl_b32 s{sT0}, s{sWN}, 2")
    A(f"s_add_u32 s{sT0}, s{sT0}, {L_XF}")
    A(f"s_cmp_eq_u32 s{sWM}, 0")
    A("s_cbranch_scc1 K1_KVR")
    for q in range(4):
        A(f"ds_write_b128 v5, {vr(KVD+4*q,4)} offset:{q*1024}")
    A(f"ds_write_b32 v5, v{ZD} offset:4096")
    lds_flag_set(sT0, 8, 9)
    A("s_mov_b64 s[92:93], 0")
    A("s_branch K1_DONE")
    A.label("K1_KVR")
    lds_flag_wait(sT0, 8, 9)
    TMP = 32
    for q in range(4):
        A(f"ds_read_b128 {vr(TMP+4*q,4)}, v5 offset:{q*1024}")
    A(f"ds_read_b32 v{TMP+16}, v5 offset:4096")
    A("s_mov_b64 s[92:93], 0xff")
    A("s_waitcnt lgkmcnt(0)")
    for i in range(8):
        A(f"v_pk_add_f32 {vr(KVD+2*i,2)}, {vr(KVD+2*i,2)}, {vr(TMP+2*i,2)}")
    A(f"v_add_f32 v{ZD}, v{ZD}, v{TMP+16}")
    for q in range(4):
        A(f"buffer_store_dwordx4 {vr(KVD+4*q,4)}, v3, s[{SWS}:{SWS+3}], s{sXO} offen offset:{q*1024} sc1")
    A(f"buffer_store_dword v{ZD}, v4, s[{SWS}:{SWS+3}], s{sXO+1} offen sc1")
    A.label("K1_DONE")
    A("s_waitcnt lgkmcnt(0)")
    return None

sH, sRB8, sQO, sHW, sM0, sGO, sNB = 23, 24, 29, 26, 30, 31, 32
VL16 = 1
def p2_common():
    A(f"s_and_b32 s{sH}, s2, 31")
    A(f"s_lshr_b32 s{sRB8}, s2, 5")
    A(f"v_lshlrev_b32 v{VL16}, 4, v2")
    A("v_lshrrev_b32 v7, 5, v2")
    A(f"s_and_b32 s{sHW}, s{sWAVE}, 3")
    A(f"s_lshl_b32 s{sQO}, s{sRB8}, 2")
    A(f"s_add_u32 s{sQO}, s{sQO}, s{sHW}")
    A(f"s_mul_i32 s{sQO}, s{sQO}, {2*RTS}")
    A(f"s_lshl_b32 s{sT0}, s{sH}, 11")
    A(f"s_add_u32 s{sQO}, s{sQO}, s{sT0}")

AT = dict(Q=[16, 128], ONES=24, KF=28, VF=36, P=44, L=[52, 56], S=[64, 80], O=[96, 140], NEGM=[112, 156], T=60, VCUR=3, VNXT=4)
def p2_attn(sFL1):
    VCUR, VNXT = 3, 4
    Q, ONES, KF, VF, P, L, S, O, NEGM = (AT[k] for k in ("Q", "ONES", "KF", "VF", "P", "L", "S", "O", "NEGM"))
    p2_common()
    stamp(4)
    A("v_bfe_u32 v8, v2, 2, 1")
    A("v_bfe_u32 v9, v2, 4, 1")
    A("v_cmp_eq_u32 vcc, v8, v9")
    A("v_mov_b32 v8, 0x3f803f80")
    A(f"v_add_u32 v{VCUR}, {L_R}, v{VL16}")
    A(f"v_cndmask_b32 v{ONES}, 0, v8, vcc")
    if OPT["sumv"] == 3: A(f"v_mov_b32 v{ONES}, v8")
    for i in range(1, 4):
        A(f"v_mov_b32 v{ONES+i}, v{ONES}")
    for x in range(2):
        for i in range(16):
            A(f"v_mov_b32 v{O[x]+i}, 0")
        for i in range(4):
            A(f"v_mov_b32 v{L[x]+i}, 0")
    for i in range(4):
        A(f"v_mov_b32 v{VF+4+i}, 0")
        A(f"v_mov_b32 v{P+4+i}, 0")
    A(f"v_mov_b32 v{AT['T']}, 0")
    A(f"v_mov_b32 v{AT['T']+1}, 0")
    A(f"v_add_u32 v{VNXT}, 16384, v{VCUR}")
    A(f"s_lshl_b32 s{sT0}, s{sHW}, 12")
    A(f"v_add_u32 v5, s{sT0}, v{VL16}")
    A(f"s_mov_b32 s{sCNT}, 0")
    A("s_barrier")
    stamp(5)
    A(f"ds_read_b128 {vr(KF,4)}, v{VCUR}")
    A(f"ds_read_b128 {vr(Q[0],4)}, v5 offset:{L_QS}")
    A(f"ds_read_b128 {vr(Q[1],4)}, v5 offset:{L_QS+2048}")
    A(f"ds_read_b128 {vr(KF+4,4)}, v{VCUR} offset:1024")
    A(f"ds_read_b128 {vr(Q[0]+4,4)}, v5 offset:{L_QS+1024}")
    A(f"ds_read_b128 {vr(Q[1]+4,4)}, v5 offset:{L_QS+3072}")
    A(f"ds_read_b128 {vr(VF,4)}, v{VCUR} offset:2048")
    A("s_waitcnt lgkmcnt(4)")
    A(mfma32(S[0], KF, Q[0], "0"))
    A(mfma32(S[1], KF, Q[1], "0"))
    A("s_waitcnt lgkmcnt(1)")
    A(mfma32(S[0], KF+4, Q[0]+4))
    A(mfma32(S[1], KF+4, Q[1]+4))
    A("s_nop 10")
    for x in range(2):
        m = 8 + 2 * x
        A(f"v_max3_f32 v{m}, v{S[x]}, v{S[x]+1}, v{S[x]+2}")
        A(f"v_max3_f32 v{m+1}, v{S[x]+3}, v{S[x]+4}, v{S[x]+5}")
        for i in range(6, 14, 4):
            A(f"v_max3_f32 v{m}, v{m}, v{S[x]+i}, v{S[x]+i+1}")
            A(f"v_max3_f32 v{m+1}, v{m+1}, v{S[x]+i+2}, v{S[x]+i+3}")
        A(f"v_max3_f32 v{m}, v{m}, v{S[x]+14}, v{S[x]+15}")
        A(f"v_max_f32 v{m}, v{m}, v{m+1}")
        A(f"v_mov_b32 v{m+1}, v{m}")
    A("s_nop 0")
    A("v_permlane32_swap_b32 v8, v9")
    A("v_permlane32_swap_b32 v10, v11")
    A("v_max_f32 v8, v8, v9")
    A("v_max_f32 v10, v10, v11")
    for x, m in ((1, 10), (0, 8)):
        A(f"v_sub_f32 v{NEGM[x]}, 0, v{m}")
        A(f"v_sub_f32 v{NEGM[x]+1}, 0, v{m}")
        for i in range(1, 8):
            A(f"v_pk_mov_b32 {vr(NEGM[x]+2*i,2)}, {vr(NEGM[x],2)}, {vr(NEGM[x],2)}")
    for i in range(8):
        A(f"v_pk_add_f32 {vr(S[0]+2*i,2)}, {vr(S[0]+2*i,2)}, {vr(NEGM[0],2)}")
    stamp(6)
    lite(2)
    nb = [f"s_add_u32 s{sNB}, s{sCNT}, 2", f"s_and_b32 s{sNB}, s{sNB}, 3", f"s_lshl_b32 s{sNB}, s{sNB}, 14", f"s_add_u32 s{sNB}, s{sNB}, {L_R}"]
    sEND = 33
    A(f"s_mov_b32 s{sEND}, 1")
    cn = [f"s_add_u32 s{sCNT}, s{sCNT}, 1", f"s_cmp_lt_u32 s{sCNT}, s{sEND}"]
    B = attn_body(AT, False, {3: nb, 7: cn}, sumv=OPT['sumv']) + [f"v_mov_b32 v{VCUR}, v{VNXT}", f"v_add_u32 v{VNXT}, s{sNB}, v{VL16}"]
    A("s_waitcnt lgkmcnt(0)")
    A(B[0])
    A.label("K2_LOOP")
    for l in B[1:]: A(l)
    A(B[0])
    A("s_cbranch_scc1 K2_LOOP")
    chk(B + B, "k2 loop")
    A(f"s_cmp_eq_u32 s{sCNT}, 16")
    A("s_cbranch_scc1 K2_DONE")
    A(f"s_mov_b32 s{sEND}, 16")
    A("s_cmp_eq_u64 s[92:93], 0")
    A("s_cbranch_scc1 K2_LOOP")
    A(f"v_mov_b32 v{VSG+1}, 1")
    A("s_mov_b64 exec, s[92:93]")
    A("s_waitcnt vmcnt(0)")
    A(f"buffer_atomic_add v{VSG+1}, v{VSG}, s[{SWS}:{SWS+3}], s{sSG} offen sc1")
    A("s_mov_b64 exec, -1")
    A("s_branch K2_LOOP")
    A.label("K2_DONE")
    A(f"v_cvt_pk_bf16_f32 v{P+7}, v{AT['T']}, v{AT['T']+1}")
    A("s_nop 1")
    stamp(7)
    lite(3)
    A(mfma32(O[1], VF+4, P+4))
    if OPT["sumv"] == 3:
        A(f"v_mfma_f32_4x4x4_16b_bf16 {vr(L[1],4)}, {vr(ONES,2)}, {vr(P+4,2)}, {vr(L[1],4)}")
        A("s_nop 1")
        A(f"v_mfma_f32_4x4x4_16b_bf16 {vr(L[1],4)}, {vr(ONES,2)}, {vr(P+6,2)}, {vr(L[1],4)}")
        A("s_nop 7")
        for x in range(2):
            A(f"v_permlane32_swap_b32 v{L[x]}, v{L[x]+1}")
            A(f"v_add_f32 v{L[x]}, v{L[x]}, v{L[x]+1}")
    elif OPT["sumv"]:
        A(f"v_pk_add_f32 {vr(L[1]+2,2)}, {vr(L[1]+2,2)}, {vr(AT['T'],2)}")
        for x in range(2):
            A(f"v_pk_add_f32 {vr(L[x],2)}, {vr(L[x],2)}, {vr(L[x]+2,2)}")
            A(f"v_add_f32 v{L[x]}, v{L[x]}, v{L[x]+1}")
            A(f"v_mov_b32 v{L[x]+1}, v{L[x]}")
            A("s_nop 1")
            A(f"v_permlane32_swap_b32 v{L[x]}, v{L[x]+1}")
            A(f"v_add_f32 v{L[x]}, v{L[x]}, v{L[x]+1}")
            if OPT["sumv"] == 2: A(f"v_mov_b32 v{L[x]}, 1.0")
    else:
        A(mfma16(L[1], ONES, P+4))
    sO0, sO1, sFL = 68, 69, 70
    A(f"s_add_u32 s{sO0}, s{sQO}, {WS_OB}")
    A(f"s_add_u32 s{sO1}, s{sO0}, {RTS}")
    A(f"v_mov_b32 v10, {hexf(2.0**120)}")
    A(f"v_mov_b32 v11, {hexf(2.0**60)}")
    first = True
    for x in range(2):
        for i in range(0, 16, 2):
            if first:
                A(f"v_add_f32 v8, |v{O[x]}|, |v{O[x]+1}|"); A(f"v_mov_b32 v9, 0"); first = False
            else:
                A(f"v_add_f32 v8, v8, |v{O[x]+i}|")
                A(f"v_add_f32 v9, v9, |v{O[x]+i+1}|")
    A(f"v_cmp_nlt_f32 vcc, v{L[0]}, v11")
    A(f"v_cmp_nlt_f32 s[72:73], v{L[1]}, v11")
    A("v_add_f32 v8, v8, v9")
    A("v_cmp_nlt_f32 s[74:75], v8, v10")
    A("s_or_b64 vcc, vcc, s[72:73]")
    A("s_nop 1")
    A("s_or_b64 vcc, vcc, s[74:75]")
    A("s_cbranch_vccnz K2_SLOW")
    A.label("K2_FIN")
    A(f"v_rcp_f32 v8, v{L[0]}")
    A(f"v_rcp_f32 v10, v{L[1]}")
    A("v_mov_b32 v9, v8")
    A("v_mov_b32 v11, v10")
    for x in range(2):
        for i in range(8):
            A(f"v_pk_mul_f32 {vr(O[x]+2*i,2)}, {vr(O[x]+2*i,2)}, v[{8+2*x}:{9+2*x}]")
        for i in range(8):
            A(f"v_cvt_pk_bf16_f32 v{O[x]+i}, v{O[x]+2*i}, v{O[x]+2*i+1}")
        for half in range(2):
            A(f"buffer_store_dwordx4 {vr(O[x]+4*half,4)}, v{VL16}, s[{SWS}:{SWS+3}], s{sO0+x} offen offset:{half*1024} sc1")
    A(f"s_lshl_b32 s{sFL}, s{sRB8}, 11")
    A(f"s_add_u32 s{sFL}, s{sFL}, {WS_FL + FL_O + 128 * 128}")
    stamp(8)
    return sFL

def p2_slow():
    Q, ONES, KF, VF, P, L, S, O, NEGM = (AT[k] for k in ("Q", "ONES", "KF", "VF", "P", "L", "S", "O", "NEGM"))
    A.label("K2_SLOW")
    sK = 33
    for x in range(2):
        A(f"v_mov_b32 v8, 0xff800000")
        A(f"s_mov_b32 s{sK}, {WS_KV}")
        A(f"s_mov_b32 s{sCNT}, 0")
        A("s_waitcnt lgkmcnt(0)")
        A.label(f"K2_SLOW1{x}")
        A(f"buffer_load_dwordx4 {vr(KF,4)}, v{VL16}, s[{SWS}:{SWS+3}], s{sK} offen sc1")
        A(f"buffer_load_dwordx4 {vr(KF+4,4)}, v{VL16}, s[{SWS}:{SWS+3}], s{sK} offen offset:1024 sc1")
        A("s_waitcnt vmcnt(0)")
        A(mfma32(S[0], KF, Q[x], "0"))
        A(mfma32(S[0], KF+4, Q[x]+4))
        A("s_nop 15")
        for i in range(0, 16, 2):
            A(f"v_max3_f32 v8, v8, v{S[0]+i}, v{S[0]+i+1}")
        A(f"s_add_u32 s{sK}, s{sK}, 4096")
        A(f"s_add_u32 s{sCNT}, s{sCNT}, 1")
        A(f"s_cmp_lt_u32 s{sCNT}, 64")
        A(f"s_cbranch_scc1 K2_SLOW1{x}")
        A("v_mov_b32 v9, v8")
        A("s_nop 1")
        A("v_permlane32_swap_b32 v8, v9")
        A("v_max_f32 v8, v8, v9")
        for i in range(16):
            A(f"v_sub_f32 v{NEGM[0]+i}, 0, v8")
            A(f"v_mov_b32 v{O[x]+i}, 0")
        for i in range(4):
            A(f"v_mov_b32 v{L[x]+i}, 0")
        A(f"s_mov_b32 s{sK}, {WS_KV}")
        A(f"s_mov_b32 s{sCNT}, 0")
        A.label(f"K2_SLOW2{x}")
        for i in range(2):
            A(f"buffer_load_dwordx4 {vr(KF+4*i,4)}, v{VL16}, s[{SWS}:{SWS+3}], s{sK} offen offset:{1024*i} sc1")
            A(f"buffer_load_dwordx4 {vr(VF+4*i,4)}, v{VL16}, s[{SWS}:{SWS+3}], s{sK} offen offset:{2048+1024*i} sc1")
        A("s_waitcnt vmcnt(0)")
        A(mfma32(S[0], KF, Q[x], NEGM[0]))
        A(mfma32(S[0], KF+4, Q[x]+4))
        A("s_nop 15")
        for i in range(16):
            A(f"v_exp_f32 v{S[0]+i}, v{S[0]+i}")
        A("s_nop 0")
        for i in range(8):
            A(f"v_cvt_pk_bf16_f32 v{P+i}, v{S[0]+2*i}, v{S[0]+2*i+1}")
        A("s_nop 1")
        A(mfma32(O[x], VF, P))
        A(mfma16(L[x], ONES, P))
        A(mfma32(O[x], VF+4, P+4))
        A(mfma16(L[x], ONES, P+4))
        A("s_nop 15")
        A(f"s_add_u32 s{sK}, s{sK}, 4096")
        A(f"s_add_u32 s{sCNT}, s{sCNT}, 1")
        A(f"s_cmp_lt_u32 s{sCNT}, 64")
        A(f"s_cbranch_scc1 K2_SLOW2{x}")
    A("s_branch K2_FIN")

sBR, sRB16, sCB = 88, 89, 90
def p3_decode():
    A(f"s_lshr_b32 s{sBR}, s{sXCD}, 2")
    A(f"s_and_b32 s{sRB16}, s{sXCD}, 1")
    A(f"s_lshl_b32 s{sRB16}, s{sRB16}, 3")
    A(f"s_and_b32 s{sT0}, s{sIDX}, 7")
    A(f"s_add_u32 s{sRB16}, s{sRB16}, s{sT0}")
    A(f"s_bfe_u32 s{sCB}, s{sXCD}, 0x10001")
    A(f"s_lshl_b32 s{sCB}, s{sCB}, 2")
    A(f"s_lshr_b32 s{sT0}, s{sIDX}, 3")
    A(f"s_add_u32 s{sCB}, s{sCB}, s{sT0}")

def p23_helper():
    KVP, ZP, PQ, KVA, ZA, NUM, DEN, VPF, VW, VFL, VT = 16, 48, 52, 68, 76, 84, 100, 116, 117, 118, 120
    sA0, sA1, sFL, sAO = 68, 69, 70, 71
    vm = VM()
    A(f"s_setprio {OPT['hprio']}")
    p2_common()
    p3_decode()
    A(f"s_lshl_b32 s{sM0}, s{sHW}, 12")
    A(f"s_add_u32 s{sGO}, s{sM0}, {WS_KV}")
    A(f"s_add_u32 s{sA0}, s{sQO}, {WS_QB}")
    A(f"s_add_u32 s{sA1}, s{sA0}, {RTS - 2048}")
    A("s_waitcnt vmcnt(0)")
    cnt_check(SWS, "s92 offen", 128, 120, 119)
    cnt_check(SWS, "s93 offen offset:4", 4, 121, 119)
    stamp(2)
    nxt = [0]
    def dma_chunk():
        c = nxt[0]
        if c >= 16: return
        A(f"s_add_u32 m0, s{sM0}, {L_R + (c % 4) * 16384}")
        A("s_nop 0")
        for n in range(4):
            A(f"buffer_load_dwordx4 v{VL16}, s[{SWS}:{SWS+3}], s{sGO} offen offset:{n*1024} {OPT['ld']} lds")
        A(f"s_add_u32 s{sGO}, s{sGO}, 16384")
        vm.add(("c", c), 4)
        nxt[0] += 1
    A(f"s_add_u32 m0, s{sM0}, {L_QS}")
    A("s_nop 0")
    for n in range(4):
        A(f"buffer_load_dwordx4 v{VL16}, s[{SWS}:{SWS+3}], s{sA0 + (n >> 1)} offen offset:{n*1024} sc1 lds")
    vm.add("q", 4)
    dma_chunk()
    A(f"s_cmp_eq_u32 s{sBR}, 1")
    A(f"s_cselect_b64 s[62:63], s[{pBWO}:{pBWO+1}], s[{pAWO}:{pAWO+1}]")
    srd(SWO, 62, 2 << 20)
    A("v_lshrrev_b32 v4, 4, v2")
    A("v_and_b32 v5, 15, v2")
    A("v_lshlrev_b32 v8, 2, v4")
    A("v_xor_b32 v5, v5, v8")
    A("v_lshlrev_b32 v4, 11, v4")
    A(f"v_lshl_add_u32 v{VW}, v5, 4, v4")
    A(f"s_lshl_b32 s{sT0}, s{sCB}, 8")
    A(f"v_add_u32 v{VW}, s{sT0}, v{VW}")
    A(f"s_lshl_b32 s{sWO}, s{sHW}, 13")
    for n in range(1, 4):
        A(f"s_add_u32 s{sWO+n}, s{sWO}, {n*16*2048}")
    sWD = 80
    A(f"s_lshl_b32 s{sWD}, s{sHW}, 10")
    nw = [0]
    def dma_w():
        s_ = nw[0]
        if s_ >= 16: return
        for n in range(4):
            A(f"s_add_u32 m0, s{sWD}, {L_WR + (s_ % 5) * 16384 + n * 4096}")
            A("s_nop 0")
            A(f"buffer_load_dwordx4 v{VW}, s[{SWO}:{SWO+3}], s{sWO+n} offen lds")
        A(f"v_add_u32 v{VW}, {64*2048}, v{VW}")
        vm.add(("w", s_), 4)
        nw[0] += 1
    no = [0]
    def dma_o():
        s_ = no[0]
        if s_ >= 16: return
        A(f"s_add_u32 m0, s{sM0}, {L_R + (s_ % 4) * 16384}")
        A("s_nop 0")
        for n in range(4):
            A(f"buffer_load_dwordx4 v{VL16}, s[{SWS}:{SWS+3}], s{sAO} offen offset:{n*1024} {OPT['ld']} lds")
        A(f"s_add_u32 s{sAO}, s{sAO}, 4096")
        vm.add(("o", s_), 4)
        no[0] += 1
    def side_loads():
        A(f"s_lshl_b32 s{sT0}, s2, 7")
        A(f"s_add_u32 s{sT0}, s{sT0}, {WS_FL + FL_A}")
        poll_shared(f"s{sT0}", 12, L_GOA, VT)
        A(f"s_lshl_b32 s{sT0}, s{sH}, 15")
        A(f"s_lshl_b32 s{sT1}, s{sHW}, 10")
        A(f"s_add_u32 s{sT0}, s{sT0}, s{sT1}")
        A(f"s_add_u32 s{sT0}, s{sT0}, {WS_KVP}")
        for p in range(8):
            A(f"buffer_load_dwordx4 {vr(KVP+4*p,4)}, v{VL16}, s[{SWS}:{SWS+3}], s{sT0} offen sc1")
            if p < 7: A(f"s_add_u32 s{sT0}, s{sT0}, 4096")
        A("v_and_b32 v6, 31, v2")
        A("v_lshlrev_b32 v6, 2, v6")
        A("v_lshl_add_u32 v6, v7, 9, v6")
        A(f"s_lshl_b32 s{sT0}, s{sH}, 10")
        A(f"s_add_u32 s{sT0}, s{sT0}, {WS_ZP}")
        for i in range(4):
            A(f"buffer_load_dword v{ZP+i}, v6, s[{SWS}:{SWS+3}], s{sT0} offen offset:{i*128} sc1")
        A(f"s_add_u32 s{sA0}, s{sQO}, {WS_QA}")
        A(f"s_add_u32 s{sA1}, s{sA0}, {RTS}")
        for r in range(2):
            for half in range(2):
                A(f"buffer_load_dwordx4 {vr(PQ+8*r+4*half,4)}, v{VL16}, s[{SWS}:{SWS+3}], s{sA0+r} offen offset:{half*1024} sc1")
        vm.add("side", 16)
    def step_a():
        vm.wait(A, "side")
        n = 8
        while n > 1:
            n //= 2
            for i in range(n):
                for hf in range(2):
                    A(f"v_pk_add_f32 {vr(KVP+4*i+2*hf,2)}, {vr(KVP+4*i+2*hf,2)}, {vr(KVP+4*(i+n)+2*hf,2)}")
        A(f"s_lshr_b32 s{sT0}, s{sHW}, 1")
        A(f"s_lshl_b32 s{sT0}, s{sT0}, 10")
        A(f"s_and_b32 s{sT1}, s{sHW}, 1")
        A(f"s_lshl_b32 s{sT1}, s{sT1}, 3")
        A(f"s_add_u32 s{sT0}, s{sT0}, s{sT1}")
        A(f"s_add_u32 s{sT0}, s{sT0}, {L_KVX}")
        A(f"v_add_u32 v8, s{sT0}, v{VL16}")
        A(f"v_cvt_pk_bf16_f32 v{KVP}, v{KVP}, v{KVP+1}")
        A(f"v_cvt_pk_bf16_f32 v{KVP+1}, v{KVP+2}, v{KVP+3}")
        A(f"ds_write_b64 v8, {vr(KVP,2)}")
        A(f"s_cmp_eq_u32 s{sHW}, 0")
        A("s_cbranch_scc0 K2_NOZ")
        A(f"v_pk_add_f32 {vr(ZP,2)}, {vr(ZP,2)}, {vr(ZP+2,2)}")
        A("v_and_b32 v9, 31, v2")
        A(f"v_add_f32 v{ZP}, v{ZP}, v{ZP+1}")
        A("v_lshlrev_b32 v9, 1, v9")
        A(f"v_mov_b32 v{ZP+1}, v{ZP}")
        A(f"v_add_u32 v9, {L_ZX}, v9")
        A("s_nop 0")
        A(f"v_permlane32_swap_b32 v{ZP}, v{ZP+1}")
        A(f"v_add_f32 v{ZP}, v{ZP}, v{ZP+1}")
        A(f"v_cvt_pk_bf16_f32 v{ZP}, v{ZP}, v{ZP}")
        A(f"ds_write_b16 v9, v{ZP}")
        A.label("K2_NOZ")
        A("s_waitcnt lgkmcnt(0)")
    def step_b():
        A("v_lshlrev_b32 v10, 3, v7")
        A(f"v_add_u32 v10, {L_ZX}, v10")
        A(f"v_add_u32 v11, {L_KVX}, v{VL16}")
        A(f"ds_read2_b64 {vr(ZA,4)}, v10 offset0:0 offset1:2")
        A(f"ds_read2_b64 {vr(ZA+4,4)}, v10 offset0:4 offset1:6")
        A(f"ds_read_b128 {vr(KVA,4)}, v11")
        A(f"ds_read_b128 {vr(KVA+4,4)}, v11 offset:1024")
        A(f"s_add_u32 s{sA0}, s{sQO}, {WS_OA}")
        A(f"s_add_u32 s{sA1}, s{sA0}, {RTS}")
        A("s_waitcnt lgkmcnt(0)")
        NUMS, DENS = [NUM, 16], [DEN, 32]
        for r in range(2):
            A(mfma32(DENS[r], ZA, PQ+8*r, "0"))
            A(mfma32(DENS[r], ZA+4, PQ+8*r+4))
            A(mfma32(NUMS[r], KVA, PQ+8*r, "0"))
            A(mfma32(NUMS[r], KVA+4, PQ+8*r+4))
        A("s_nop 7")
        for r in range(2):
            N_ = NUMS[r]
            A(f"v_add_f32 v8, {hexf(EPS)}, v{DENS[r]}")
            A("v_rcp_f32 v8, v8")
            A("s_nop 0")
            A("v_mov_b32 v9, v8")
            for i in range(8):
                A(f"v_pk_mul_f32 {vr(N_+2*i,2)}, {vr(N_+2*i,2)}, v[8:9]")
            for i in range(8):
                A(f"v_cvt_pk_bf16_f32 v{N_+i}, v{N_+2*i}, v{N_+2*i+1}")
            for half in range(2):
                A(f"buffer_store_dwordx4 {vr(N_+4*half,4)}, v{VL16}, s[{SWS}:{SWS+3}], s{sA0+r} offen offset:{half*1024} sc1")
        vm.add("st", 4)
    def sig_oa():
        A(f"s_lshl_b32 s{sFL}, s{sRB8}, 11")
        A(f"s_add_u32 s{sFL}, s{sFL}, {WS_FL + FL_O}")
        A("v_lshlrev_b32 v10, 7, v2")
        signal(L_CNTA, sFL, 10, "0xffff", 8, 9)
        vm.clear()
        vm.add("flagst")
    def pf_wo():
        A("s_cmp_ge_u32 s2, 128")
        A(f"s_cselect_b64 s[62:63], s[{pBWO}:{pBWO+1}], s[{pAWO}:{pAWO+1}]")
        srd(SPF, 62, 2 << 20)
        A("v_lshlrev_b32 v8, 7, v2")
        A(f"s_and_b32 s{sT0}, s2, 127")
        A(f"s_lshl_b32 s{sT0}, s{sT0}, 1")
        A(f"s_add_u32 s{sT0}, s{sT0}, s{sHW}")
        A(f"s_lshl_b32 s{sT0}, s{sT0}, 13")
        A(f"s_cmp_lt_u32 s{sHW}, {2 if OPT['pf2'] else 0}")
        A(f"s_cselect_b32 s{sT0}, s{sT0}, {OOB}")
        A(f"buffer_load_dword v{VPF}, v8, s[{SPF}:{SPF+3}], s{sT0} offen")
        vm.add("pf")
    vm.wait(A, "q", ("c", 0))
    stamp(3)
    A("s_barrier")
    for c in range(1, 17):
        if c == 8: sig_oa()
        if c == 4 and not OPT["nosp"] & 1: side_loads()
        lim = min(15, c + 1) if c >= 3 else 3
        k = 0
        while nxt[0] <= lim and k < 2:
            dma_chunk(); k += 1
        if c == 5 and not OPT["nosp"] & 2: pf_wo()
        if c == 6 and not OPT["nosp"] & 1: step_a()
        if c == 7 and not OPT["nosp"] & 1: step_b()
        if 10 <= c < 10 + OPT["wpre"]: dma_w()
        vm.wait(A, ("c", c))
        A("s_barrier")
    stamp(4)
    A(f"s_lshl_b32 s{sAO}, s{sRB16}, 2")
    A(f"s_add_u32 s{sAO}, s{sAO}, s{sHW}")
    A(f"s_mul_i32 s{sAO}, s{sAO}, {RTS}")
    A(f"s_mul_i32 s{sT0}, s{sBR}, {REG}")
    A(f"s_add_u32 s{sAO}, s{sAO}, s{sT0}")
    A(f"s_add_u32 s{sAO}, s{sAO}, {WS_OA}")
    A(f"s_lshl_b32 s{sT0}, s{sBR}, 4")
    A(f"s_add_u32 s{sT0}, s{sT0}, s{sRB16}")
    A(f"s_lshl_b32 s{sT0}, s{sT0}, 3")
    A(f"s_add_u32 s{sT0}, s{sT0}, s{sCB}")
    A(f"s_lshl_b32 s{sT0}, s{sT0}, 7")
    A(f"s_add_u32 s{sT0}, s{sT0}, {WS_FL + FL_O}")
    while nw[0] < 5: dma_w()
    poll_shared(f"s{sT0}", 32, L_GOO, VT)
    stamp(5)
    dma_o(); dma_o(); dma_o()
    for i in range(16):
        vm.wait(A, ("o", i), ("w", i))
        if i == 0: stamp(6)
        A("s_barrier")
        if no[0] <= i + 3: dma_o()
        if i >= 1 and nw[0] <= i + 4: dma_w()
    stamp(7)
    stamp_out()
    A("s_endpgm")

def p3_compute(sFL2):
    AA, WA = 16, 17
    FB = [32, 48]
    FA = lambda b, t: FB[b] + 4 * t
    FW = lambda b, u: FB[b] + 8 + 4 * u
    ACC = lambda t, u: 176 + 16 * (2 * t + u)
    sBO, sBW, sDO, sDW, sOUT = 30, 31, 32, 33, 71
    p3_decode()
    srd(SOUT, pOUT, 8 << 20)
    A(f"s_lshl_b32 s{sT0}, s{sWM}, 13")
    A(f"s_add_u32 s{sT0}, s{sT0}, {L_R}")
    A(f"v_lshl_add_u32 v{AA}, v2, 4, s{sT0}")
    A("v_lshrrev_b32 v4, 5, v2")
    A("v_bfe_u32 v5, v2, 2, 2")
    A("v_lshl_add_u32 v6, v4, 2, v5")
    A("v_bfe_u32 v7, v2, 4, 1")
    A("v_bfe_u32 v8, v2, 1, 1")
    A("v_lshl_add_u32 v7, v7, 1, v8")
    A("v_and_b32 v8, 1, v2")
    A("v_lshlrev_b32 v8, 3, v8")
    A("v_lshl_add_u32 v8, v6, 8, v8")
    for u in range(2):
        A(f"s_lshl_b32 s{sT0}, s{sWN}, 1")
        A(f"s_add_u32 s{sT0}, s{sT0}, {u}")
        A(f"v_xor_b32 v9, s{sT0}, v5")
        A("v_lshl_add_u32 v9, v9, 2, v7")
        A(f"v_lshl_add_u32 v{WA+u}, v9, 4, v8")
    for r in range(64):
        A(f"v_mov_b32 v{176+r}, 0")
    A(f"s_mov_b32 s{sSTG}, 16384")
    A(f"s_mov_b32 s{sBO}, 0")
    A(f"s_mov_b32 s{sBW}, 0")
    A(f"s_mov_b32 s{sCNT}, 16")
    RS = 144
    VEW, VER, VEG = 24, 25, 26
    A(f"s_mul_i32 s{sT0}, s{sWAVE}, {64*RS}")
    A("v_and_b32 v3, 31, v2")
    A(f"v_mul_u32_u24 v3, {RS}, v3")
    A("v_lshl_add_u32 v3, v4, 3, v3")
    A(f"v_add_u32 v{VEW}, s{sT0}, v3")
    A("v_lshrrev_b32 v3, 3, v2")
    A("v_and_b32 v5, 7, v2")
    A(f"v_mul_u32_u24 v6, {RS}, v3")
    A("v_lshl_add_u32 v6, v5, 4, v6")
    A(f"v_add_u32 v{VER}, s{sT0}, v6")
    A("v_lshlrev_b32 v3, 12, v3")
    A(f"v_lshl_add_u32 v{VEG}, v5, 4, v3")
    A(f"s_lshl_b32 s{sT0}, s{sRB16}, 1")
    A(f"s_add_u32 s{sT0}, s{sT0}, s{sWM}")
    A(f"s_lshl_b32 s{sT0}, s{sT0}, 18")
    A(f"s_lshl_b32 s{sT1}, s{sBR}, 3")
    A(f"s_add_u32 s{sT1}, s{sT1}, s{sCB}")
    A(f"s_lshl_b32 s{sT1}, s{sT1}, 1")
    A(f"s_add_u32 s{sT1}, s{sT1}, s{sWN}")
    A(f"s_lshl_b32 s{sT1}, s{sT1}, 7")
    A(f"s_add_u32 s{sOUT}, s{sT0}, s{sT1}")
    A("v_lshlrev_b32 v10, 7, v2")
    signal(L_CNTB, sFL2, 10, "0xffff", 8, 9)
    stamp(9)
    def reads(b, ks):
        R = [f"ds_read_b128 {vr(FA(b,0),4)}, v{AA} offset:{ks*1024}"]
        for u in range(2):
            R.append(f"ds_read_b64_tr_b16 {vr(FW(b,u),2)}, v{WA+u} offset:{L_WR+ks*4096}")
            R.append(f"ds_read_b64_tr_b16 {vr(FW(b,u)+2,2)}, v{WA+u} offset:{L_WR+ks*4096+2048}")
        R.append(f"ds_read_b128 {vr(FA(b,1),4)}, v{AA} offset:{4096+ks*1024}")
        return R
    A("s_waitcnt lgkmcnt(0)")
    A("s_barrier")
    stamp(10)
    lite(4)
    for r in reads(0, 0): A(r)
    A.label("K3_LOOP")
    start = len(A.lines)
    for s in range(4):
        b = s & 1
        mf = [mfma32(ACC(t,u), FW(b,u), FA(b,t)) for t in range(2) for u in range(2)]
        fill = reads(b ^ 1, (s + 1) & 3)
        post = []
        if s == 0:
            post = [f"s_add_u32 s{sBO}, s{sBO}, 1", f"s_cmp_eq_u32 s{sBO}, 4",
                    f"s_cselect_b32 s{sDO}, {-3*16384 & 0xffffffff}, s{sSTG}", f"s_cselect_b32 s{sBO}, 0, s{sBO}"]
        if s == 1:
            post = [f"s_add_u32 s{sBW}, s{sBW}, 1", f"s_cmp_eq_u32 s{sBW}, 5",
                    f"s_cselect_b32 s{sDW}, {-4*16384 & 0xffffffff}, s{sSTG}", f"s_cselect_b32 s{sBW}, 0, s{sBW}"]
        if s == 2:
            post = [f"v_add_u32 v{AA}, s{sDO}, v{AA}", f"v_add_u32 v{WA}, s{sDW}, v{WA}", f"v_add_u32 v{WA+1}, s{sDW}, v{WA+1}"]
        if s == 3:
            post = [f"s_sub_u32 s{sCNT}, s{sCNT}, 1", f"s_cmp_lg_u32 s{sCNT}, 0"]
        A("s_waitcnt lgkmcnt(0)")
        for k, m in enumerate(mf):
            A(m)
            if s == 3 and k == 0: A("s_barrier")
            n = 3
            while n and fill:
                A(fill.pop(0)); n -= 1
            if n == 3:
                while post: A(post.pop(0))
    A("s_cbranch_scc1 K3_LOOP")
    body = A.lines[start:]
    chk(body + body, "k3 loop")
    stamp(11)
    A("s_waitcnt lgkmcnt(0)")
    A("s_nop 7")
    for t in range(2):
        for u in range(2):
            b = ACC(t,u)
            for g in range(4):
                A(f"v_cvt_pk_bf16_f32 v{b+4*g}, v{b+4*g}, v{b+4*g+1}")
                A(f"v_cvt_pk_bf16_f32 v{b+4*g+1}, v{b+4*g+2}, v{b+4*g+3}")
                A(f"ds_write_b64 v{VEW}, {vr(b+4*g,2)} offset:{t*32*RS + u*64 + g*16}")
    A("s_waitcnt lgkmcnt(0)")
    for i in range(8):
        A(f"ds_read_b128 {vr(32+4*i,4)}, v{VER} offset:{i*8*RS}")
    for i in range(8):
        A(f"s_waitcnt lgkmcnt({7-i})")
        A(f"buffer_store_dwordx4 {vr(32+4*i,4)}, v{VEG}, s[{SOUT}:{SOUT+3}], s{sOUT} offen sc1")
        if i < 7: A(f"s_add_u32 s{sOUT}, s{sOUT}, {8*4096}")
    stamp(12)
    if DIAG or OPT["lite"]: A("s_waitcnt vmcnt(0)")
    lite(5)
    lite_out()
    stamp(13)
    stamp_out()
    A.label("K_END")
    A("s_endpgm")

def main():
    pos = [a for a in sys.argv[1:] if not a.startswith("--") and "=" not in a]
    out = pos[0] if pos else f"cdna_kernels/{KNAME}.s"
    entry()
    p1_loader()
    p23_helper()
    f1 = p1_compute()
    f2 = p2_attn(f1)
    p3_compute(f2)
    p2_slow()
    chk(A.lines, "all")
    name = f"{KNAME}_kernel"
    ref = open(f"cdna_kernels/{KNAME}.s.ref").read().split("\n")
    head = [l for l in ref if l.startswith(";") and "@launch" not in l and "Override" not in l and "grid=ceil" not in l]
    if OPT["aslist"]: head.append(f"; @launch kernel={name} grid=(256,1,1) block=(512,1,1) lds={LDS_TOTAL}")
    else: head.append(f"; @launch grid=(256,1,1) block=(512,1,1) lds={LDS_TOTAL}")
    nv = 256 if DIAG else 248
    txt = "\n".join(head) + f'''
.amdgcn_target "amdgcn-amd-amdhsa--gfx950"
.text
.globl {name}
.p2align 8
.type {name},@function
{name}:
''' + A.text() + f'''
.section .rodata,"a"
.p2align 6
.amdhsa_kernel {name}
  .amdhsa_next_free_vgpr {nv}
  .amdhsa_next_free_sgpr 102
  .amdhsa_accum_offset {nv}
  .amdhsa_group_segment_fixed_size 0
  .amdhsa_kernarg_size 88
  .amdhsa_user_sgpr_count 2
  .amdhsa_user_sgpr_kernarg_segment_ptr 1
  .amdhsa_system_sgpr_workgroup_id_x 1
.end_amdhsa_kernel
'''
    open(out, "w").write(txt)
    seen = set()
    for p in PROBS:
        if p not in seen:
            print("HAZARD", p); seen.add(p)
    print("written", out, len(txt))
main()
```
